```python
import torch

def _softmax(x, axis=-1):
    return torch.softmax(x, dim=axis)
def _gelu(x):
    return torch.nn.functional.gelu(x, approximate="tanh")
def _silu(x):
    return torch.nn.functional.silu(x)
def _sigmoid(x):
    return torch.sigmoid(x)
def _layernorm(x, axis=-1, eps=1e-5):
    m = x.mean(dim=axis, keepdim=True)
    v = x.var(dim=axis, keepdim=True, unbiased=False)
    return (x - m) / torch.sqrt(v + eps)
def _scatter_add(tgt, idx, src, axis=0):
    return tgt.clone().index_add_(axis, idx, src)
def _segment_sum(src, seg, n):
    out = torch.zeros((n,) + src.shape[1:], dtype=src.dtype)
    return out.index_add_(0, seg, src)
def _pad(x, pw):
    flat = tuple(v for pair in reversed(pw) for v in pair)
    return torch.nn.functional.pad(x, flat)

kernel_name = 'recurrent_scan__ssm_conv_s4__swiglu_ffn__prompt'

def setup_inputs():

    _w = (lambda a: (lambda t: t.to(torch.bfloat16) if t.is_floating_point() else t)(torch.as_tensor(a)))
    def _A_setup():
        B, L, D, N = 1, 2048, 512, 128
        A_re = -(lambda _x: torch.exp(torch.as_tensor(_x)))((lambda *s: torch.randn(*s, dtype=torch.bfloat16) * 3.2)(D, N))
        A_im = torch.pi * (lambda *s: torch.randn(*s, dtype=torch.bfloat16) * 0.05)(D, N)
        B_re = (lambda *s: torch.randn(*s, dtype=torch.bfloat16) * 0.1)(D, N)
        B_im = (lambda *s: torch.randn(*s, dtype=torch.bfloat16) * 0.1)(D, N)
        C_re = (lambda *s: torch.randn(*s, dtype=torch.bfloat16) * 0.1)(D, N)
        C_im = (lambda *s: torch.randn(*s, dtype=torch.bfloat16) * 0.1)(D, N)
        log_dt = (lambda *s: torch.randn(*s, dtype=torch.bfloat16) * 0.05)(D) * 0.5 - 4.0
        Dskip = (lambda *s: torch.randn(*s, dtype=torch.bfloat16) * 0.05)(D)
        return {
            "u": _w((lambda *s: torch.randn(*s, dtype=torch.bfloat16) * 0.05)(B, L, D)),
            "A_re": _w(A_re),
            "A_im": _w(A_im),
            "B_re": _w(B_re),
            "B_im": _w(B_im),
            "C_re": _w(C_re),
            "C_im": _w(C_im),
            "log_dt": _w(log_dt),
            "Dskip": _w(Dskip),
        }
    _A_in = _A_setup()

    def _B_setup():
        B, S, D, F = 1, 2048, 512, 1792
        return {
            "x": _w((lambda *s: torch.randn(*s, dtype=torch.bfloat16) * 0.05)(B, S, D)),
            "w_gate": _w((lambda *s: torch.randn(*s, dtype=torch.bfloat16) * 0.05)(D, F)),
            "w_up": _w((lambda *s: torch.randn(*s, dtype=torch.bfloat16) * 0.05)(D, F)),
            "w_down": _w((lambda *s: torch.randn(*s, dtype=torch.bfloat16) * 0.05)(F, D)),
        }
    _B_in = _B_setup()

    return {
        "A_u": _A_in["u"],
        "A_A_re": _A_in["A_re"],
        "A_A_im": _A_in["A_im"],
        "A_B_re": _A_in["B_re"],
        "A_B_im": _A_in["B_im"],
        "A_C_re": _A_in["C_re"],
        "A_C_im": _A_in["C_im"],
        "A_log_dt": _A_in["log_dt"],
        "A_Dskip": _A_in["Dskip"],
        "B_x": _B_in["x"],
        "B_w_gate": _B_in["w_gate"],
        "B_w_up": _B_in["w_up"],
        "B_w_down": _B_in["w_down"],
    }

def reference(A_u, A_A_re, A_A_im, A_B_re, A_B_im, A_C_re, A_C_im, A_log_dt, A_Dskip, B_x, B_w_gate, B_w_up, B_w_down):
    def _A_ref(u, A_re, A_im, B_re, B_im, C_re, C_im, log_dt, Dskip):
        Bsz, L, D = u.shape
        dt = torch.exp(log_dt)[:, None]
        A = A_re + 1j * A_im
        Bc = B_re + 1j * B_im
        Cc = C_re + 1j * C_im
        logdA = dt * A
        dB = dt * Bc
        l = (lambda x, dt: x.to(dt))(torch.arange(L), A_re.dtype)
        P = torch.exp(logdA[:, :, None] * l[None, None, :])
        K = torch.einsum("dn,dnl,dn->dl", Cc, P, dB).real
        L2 = 2 * L
        Kp = _pad(K, ((0, 0), (0, L)))
        up = (lambda x, *d: x.permute(*d))(u, 0, 2, 1)
        up = _pad(up, ((0, 0), (0, 0), (0, L)))
        Kf = (lambda x, axes=(-2,-1): torch.fft.rfft2(x.float(), dim=axes))(Kp[:, None, :], axes=(-2, -1))
        Uf = (lambda x, axes=(-2,-1): torch.fft.rfft2(x.float(), dim=axes))(up[:, :, None, :], axes=(-2, -1))
        Yf = Uf * Kf[None, :, :, :]
        y = (lambda x, s, axes=(-2,-1): torch.fft.irfft2(x, s=s, dim=axes).to(torch.bfloat16))(Yf, (1, L2), axes=(-2, -1))[:, :, 0, :L]
        y = (lambda x, *d: x.permute(*d))(y, 0, 2, 1) + u * Dskip[None, None, :]
        return y

    def _B_ref(x, w_gate, w_up, w_down):
        g = _silu(x @ w_gate)
        u = x @ w_up
        return (g * u) @ w_down

    x = A_u
    xn = _layernorm(x, axis=-1)
    s = _A_ref(xn, A_A_re, A_A_im, A_B_re, A_B_im, A_C_re, A_C_im, A_log_dt, A_Dskip)
    g = _silu(_B_ref(xn, B_w_gate, B_w_up, B_w_down))
    return x + s * g
```

```python
import re

TRANS = {"v_exp_f32","v_log_f32","v_rcp_f32","v_rsq_f32","v_sqrt_f32","v_sin_f32","v_cos_f32"}
RMW_DST = {"v_fmac_f32","v_dot2c_f32_bf16","v_pk_fmac_f16","v_mac_f32","v_fmamk_f32_dummy"}
NO_VDST = ("v_cmp", "v_readlane", "v_readfirstlane", "v_nop")

def _expand(tok):
    tok = tok.strip()
    tok = tok.lstrip("-")
    if tok.startswith("abs(") or tok.startswith("|"):
        tok = tok.replace("abs(", "").replace(")", "").replace("|", "")
    m = re.fullmatch(r"([vsa])(\d+)", tok)
    if m: return {(m.group(1), int(m.group(2)))}
    m = re.fullmatch(r"([vsa])\[(\d+):(\d+)\]", tok)
    if m: return {(m.group(1), i) for i in range(int(m.group(2)), int(m.group(3)) + 1)}
    if tok in ("vcc", "vcc_lo", "vcc_hi"): return {("x", "vcc")}
    if tok in ("exec", "exec_lo", "exec_hi"): return {("x", "exec")}
    if tok == "m0": return {("x", "m0")}
    if tok == "scc": return {("x", "scc")}
    return set()

class Ins:
    __slots__ = ("text","op","kind","dst","src","states","skip","mf_pass","srcC","srcAB","dpp","is_store_wide","store_data","lds_dma","label","sdst","raw")
    def __init__(self, text):
        self.text = text
        self.raw = False
        t = text.split(";")[0].split("//")[0].strip()
        self.label = t.endswith(":")
        self.skip = None
        self.dst = set(); self.src = set(); self.srcC = set(); self.srcAB = set()
        self.mf_pass = 0; self.dpp = False; self.is_store_wide = False; self.store_data = set(); self.lds_dma = False
        self.states = 1
        if self.label or not t or t.startswith("."):
            self.op = ""; self.kind = "none"; self.states = 0
            return
        parts = t.split(None, 1)
        op = parts[0]; rest = parts[1] if len(parts) > 1 else ""
        for suf in ("_e32", "_e64", "_dpp", "_sdwa"):
            if op.endswith(suf):
                if suf == "_dpp": self.dpp = True
                op = op[: -len(suf)]
        self.op = op
        ops = []; cur = ""; depth = 0
        for ch in rest:
            if ch == "[": depth += 1
            if ch == "]": depth -= 1
            if ch == "," and depth == 0:
                ops.append(cur.strip()); cur = ""
            else:
                cur += ch
        if cur.strip(): ops.append(cur.strip())
        mods = ""
        if ops:
            last = ops[-1].split(None, 1)
            ops[-1] = last[0]
            if len(last) > 1: mods = last[1]
        if "row_shr" in mods or "row_shl" in mods or "quad_perm" in mods or "row_mirror" in mods or "row_half_mirror" in mods or "row_bcast" in mods or "wave_sh" in mods or "row_ror" in mods:
            self.dpp = True
        R = [_expand(o) for o in ops]
        if op == "s_nop":
            self.kind = "salu"; self.states = int(ops[0], 0) + 1; return
        if op.startswith("v_mfma"):
            self.kind = "mfma"
            self.mf_pass = 8 if "32x32x16" in op else (4 if "16x16x32" in op else 16)
            self.dst = R[0]; self.srcAB = R[1] | R[2]; self.srcC = R[3]; self.src = self.srcAB | self.srcC
            return
        if op.startswith("v_"):
            self.kind = "valu"
            if op.startswith("v_cmp"):
                self.dst = R[0]; self.src = set().union(*R[1:]) if len(R) > 1 else set()
            elif op.startswith("v_permlane") and "swap" in op:
                self.dst = R[0] | R[1]; self.src = R[0] | R[1]
            elif op in ("v_add_co_u32","v_sub_co_u32","v_addc_co_u32","v_subb_co_u32","v_subrev_co_u32"):
                self.dst = R[0] | R[1]; self.src = set().union(*R[2:])
            else:
                self.dst = R[0] if R else set()
                self.src = set().union(*R[1:]) if len(R) > 1 else set()
                if op in RMW_DST or op == "v_writelane_b32": self.src |= self.dst
                if op == "v_cndmask_b32" and len(ops) == 3: self.src |= {("x","vcc")}
                if self.dpp: self.src |= self.dst
                if "dst_unused:UNUSED_PRESERVE" in mods: self.src |= self.dst
            return
        if op.startswith("s_"):
            self.kind = "salu"
            if op.startswith(("s_cmp", "s_cbranch", "s_branch", "s_waitcnt", "s_barrier", "s_endpgm", "s_sleep", "s_setprio", "s_sethalt")):
                self.src = set().union(*R) if R else set()
                if op.startswith("s_cmp"): self.dst = {("x","scc")}
            elif op.startswith("s_load") or op.startswith("s_buffer_load") or op.startswith("s_mem"):
                self.kind = "smem"
                self.dst = R[0]; self.src = set().union(*R[1:]) if len(R) > 1 else set()
            else:
                self.dst = R[0] if R else set(); self.src = set().union(*R[1:]) if len(R) > 1 else set()
                if "saveexec" in op: self.dst |= {("x","exec")}
            return
        if op.startswith("ds_"):
            self.kind = "ds"
            if op.startswith(("ds_read", "ds_bpermute", "ds_permute", "ds_swizzle")) or "_rtn" in op:
                self.dst = R[0]; self.src = set().union(*R[1:])
            else:
                self.src = set().union(*R)
            return
        if op.startswith(("buffer_", "global_")):
            self.kind = "vmem"
            islds = " lds" in (" " + mods) or op.startswith("global_load_lds")
            if op in ("buffer_wbl2", "buffer_inv"): return
            if islds:
                self.lds_dma = True; self.src = set().union(*R) | {("x","m0")}
            elif "load" in op:
                self.dst = R[0]; self.src = set().union(*R[1:])
                if "d16" in op: self.src |= self.dst
            elif "atomic" in op:
                self.src = set().union(*R)
                if "sc0" in mods: self.dst = R[0] if op.startswith("buffer_") else R[0]
            else:
                self.src = set().union(*R)
                data = R[0] if op.startswith("buffer_") else R[1]
                if "x4" in op or "x3" in op:
                    self.is_store_wide = True; self.store_data = data
            return
        raise ValueError("unknown instruction: " + text)

def vregs(S): return {r for r in S if r[0] in ("v","a")}
def sregs(S): return {r for r in S if r[0] == "s" or r == ("x","vcc")}

def need(p, c):
    n = 0
    pv = vregs(p.dst)
    if p.kind == "valu":
        isdot = p.op.startswith("v_dot")
        if c.kind == "mfma" and pv & c.src: n = max(n, 3 if isdot else 2)
        if c.kind == "valu":
            if c.dpp and pv & c.src: n = max(n, 2)
            if c.op.startswith("v_permlane") and pv & c.src: n = max(n, 2)
            if c.op in ("v_readlane_b32","v_readfirstlane_b32") and pv & c.src: n = max(n, 1)
            if p.op in TRANS and c.op not in TRANS and pv & c.src: n = max(n, 1)
            if p.op in TRANS and c.op in TRANS and pv & c.src: n = max(n, 1)
            if isdot:
                if c.op == p.op:
                    srcab = c.src - c.dst
                    if pv & srcab: n = max(n, 3)
                elif pv & (c.src | c.dst): n = max(n, 3)
            ps = sregs(p.dst)
            if ps & c.src:
                n = max(n, 4 if (c.op in ("v_readlane_b32","v_writelane_b32")) else 2)
            if "sdwa" in p.text and pv & (c.src | c.dst): n = max(n, 1)
        if c.kind in ("vmem", "ds") and p.op.startswith("v_dot") and pv & c.src: n = max(n, 3)
        if c.kind == "vmem" and sregs(p.dst) & c.src: n = max(n, 5)
        if c.kind in ("salu","smem") and sregs(p.dst) & c.src: n = max(n, 1)
    if p.kind == "mfma":
        P = p.mf_pass
        full = {2:5, 4:8, 8:12, 16:20}[P]
        if c.kind == "mfma":
            if pv & c.srcAB: n = max(n, full)
            if pv & c.srcC:
                if c.srcC == p.dst and c.mf_pass == P: pass
                else: n = max(n, {2:4,4:6,8:10,16:18}[P])
            if (pv & vregs(c.dst)) and not (c.dst == p.dst and c.mf_pass == P):
                n = max(n, full)
        elif c.kind in ("valu","vmem","ds"):
            if pv & (c.src | c.dst): n = max(n, full)
        if c.kind == "valu" and vregs(p.srcC) & vregs(c.dst):
            n = max(n, {2:1,4:3,8:7,16:15}[P])
    if p.kind == "salu" and ("x","m0") in p.dst:
        if c.lds_dma or c.op in ("s_sendmsg",): n = max(n, 1)
    if p.kind == "vmem" and p.is_store_wide:
        if c.kind == "valu" and p.store_data & vregs(c.dst): n = max(n, 2)
        elif c.kind in ("vmem","ds") and p.store_data & vregs(c.dst): n = max(n, 1)
    return n

class Asm:
    def __init__(self):
        self.L = []
        self._skip = None
        self._nskip = 0
        self._nlab = 0
    def __call__(self, text):
        for line in text.split("\n"):
            line = line.strip()
            if not line: continue
            i = Ins(line); i.skip = self._skip
            self.L.append(i)
    def label(self, name):
        self(name + ":")
    def newlabel(self, base="L"):
        self._nlab += 1
        return f"{base}_{self._nlab}"
    def skip_begin(self):
        self._nskip += 1; self._skip = self._nskip
    def skip_end(self):
        self._skip = None
    def nop(self, n):
        while n > 0:
            k = min(n, 16); self(f"s_nop {k-1}"); n -= k
    def barrier_hazard(self):
        self("s_nop 15"); self("s_nop 3")
    def finalize(self, window=24):
        out = []
        total_nops = 0
        for ins in self.L:
            if ins.kind != "none":
                req = 0
                dist = 0
                for p in reversed(out):
                    if p.kind == "none": continue
                    if dist >= window: break
                    n = need(p, ins)
                    if n > dist: req = max(req, n - dist)
                    closed = (p.skip is not None and p.skip != ins.skip)
                    if not closed: dist += p.states
                while req > 0:
                    k = min(req, 16)
                    nop = Ins(f"s_nop {k-1}"); nop.skip = ins.skip
                    out.append(nop); req -= k; total_nops += 1
            out.append(ins)
        self.total_nops = total_nops
        lines = []
        for i in out:
            lines.append(i.text if (i.label or i.text.startswith(".")) else "    " + i.text)
        return "\n".join(lines)
```

```python
import sys, os
sys.path.insert(0, os.path.dirname(os.path.abspath(__file__)))
from asmlib import Asm

WS_HF   = 0x0000000
WS_WDF  = 0x0700000
WS_UT   = 0x08C0000
WS_ST   = 0x0AC0000
WS_FLAG = 0x0CC0000
WS_END  = 0x0E00000

LOG2E = 0x3fb8aa3b
def f2u(x):
    import struct
    return struct.unpack("<I", struct.pack("<f", x))[0]

OPT = dict(ldW=1, ldX=1, stats_in_loop=True, cs_in_loop=True, stamp=False)

def srd(a, s, lo, hi, nbytes):
    a(f"s_mov_b32 s{s}, s{lo}")
    a(f"s_mov_b32 s{s+1}, s{hi}")
    a(f"s_mov_b32 s{s+2}, {nbytes:#x}")
    a(f"s_mov_b32 s{s+3}, 0x00020000")

STAMP_BASE = 60
WS_STAMP = 0x0D00000
def stamp(a, i):
    if OPT["stamp"]:
        a(f"s_memtime s[{STAMP_BASE+2*i}:{STAMP_BASE+2*i+1}]")
        a("s_waitcnt lgkmcnt(0)")
def stamp_store(a, n, kidx, srdws=20, wave="s36"):
    if not OPT["stamp"]: return
    a("s_memrealtime s[76:77]")
    a("s_waitcnt vmcnt(0) lgkmcnt(0)")
    a(f"s_lshl_b32 s78, s2, 3"); a(f"s_add_u32 s78, s78, {wave}"); a("s_lshl_b32 s78, s78, 6")
    a(f"s_add_u32 s78, s78, {WS_STAMP + kidx*0x20000}")
    a("v_mov_b32 v1, 0")
    for i in range(n):
        a(f"v_mov_b32 v2, s{STAMP_BASE+2*i}")
        a(f"buffer_store_dword v2, v1, s[{srdws}:{srdws+3}], s78 offen offset:{4*i}")
        a("s_nop 1")
    a("v_mov_b32 v2, s76")
    a(f"buffer_store_dword v2, v1, s[{srdws}:{srdws+3}], s78 offen offset:60")
    a("s_waitcnt vmcnt(0)")

def bf16r(a, dst, src, tmp=None):
    a(f"v_cvt_pk_bf16_f32 v{dst}, v{src}, v{src}")
    a(f"v_lshlrev_b32 v{dst}, 16, v{dst}")

def gen_k1():
    a = Asm()
    K1_CSP = 131072
    K1_CSF = K1_CSP + 4096
    a("s_cmp_ge_u32 s2, 256")
    a("s_cbranch_scc1 K1_END")
    stamp(a, 0)
    a("s_load_dwordx2 s[4:5], s[0:1], 0")
    a("s_load_dwordx4 s[28:31], s[0:1], 80")
    a("s_load_dwordx2 s[6:7], s[0:1], 96")
    a("s_load_dwordx2 s[32:33], s[0:1], 120")
    a("v_lshrrev_b32 v1, 6, v0")
    a("v_readfirstlane_b32 s36, v1")
    a("v_and_b32 v1, 63, v0")
    a("s_and_b32 s37, s2, 7")
    a("s_lshr_b32 s38, s2, 3")
    a("s_waitcnt lgkmcnt(0)")
    srd(a, 8, 4, 5, 2048*512*2)
    srd(a, 12, 28, 29, 512*1792*2)
    srd(a, 16, 30, 31, 512*1792*2)
    srd(a, 20, 32, 33, WS_END)
    srd(a, 24, 6, 7, 1792*512*2)
    a("s_cmp_ge_u32 s38, 28")
    a("s_cbranch_scc1 K1_AUX")
    a("s_mul_i32 s41, s38, 37")
    a("s_lshr_b32 s41, s41, 8")
    a("s_mul_i32 s42, s41, 7")
    a("s_sub_u32 s42, s38, s42")
    a("s_lshr_b32 s39, s37, 2")
    a("s_lshl_b32 s39, s39, 2")
    a("s_add_u32 s39, s39, s41")
    a("s_and_b32 s40, s37, 3")
    a("s_mul_i32 s40, s40, 7")
    a("s_add_u32 s40, s40, s42")
    a("v_and_b32 v2, 15, v1")
    a("v_lshlrev_b32 v2, 10, v2")
    a("v_lshrrev_b32 v16, 4, v1")
    a("v_lshl_add_u32 v2, v16, 4, v2")
    a("v_lshrrev_b32 v3, 3, v1")
    a("v_mul_u32_u24 v3, 3584, v3")
    a("v_and_b32 v17, 1, v16")
    a("v_lshlrev_b32 v17, 2, v17")
    a("v_and_b32 v18, 7, v1")
    a("v_xor_b32 v17, v17, v18")
    a("v_lshl_add_u32 v3, v17, 4, v3")
    a("s_lshl_b32 s43, s39, 18")
    a("s_lshl_b32 s41, s36, 15")
    a("s_add_u32 s43, s43, s41")
    a("s_add_u32 s44, s43, 16384")
    a("s_mul_i32 s42, s36, 28672")
    a("s_lshl_b32 s41, s40, 7")
    a("s_add_u32 s42, s42, s41")
    a("s_lshl_b32 s45, s36, 10")
    XB = 128
    a("v_lshlrev_b32 v27, 4, v1")
    for j in range(8):
        a(f"s_add_u32 s41, s42, {j*229376}")
        a(f"s_add_u32 m0, s45, {j*8192}")
        a("s_nop 0")
        if OPT["ldW"]: a("buffer_load_dwordx4 v3, s[12:15], s41 offen lds")
        a(f"s_add_u32 m0, s45, {j*8192 + 65536}")
        a("s_nop 0")
        if OPT["ldW"]: a("buffer_load_dwordx4 v3, s[16:19], s41 offen lds")
        for c in (2*j, 2*j+1):
            if OPT["ldX"] == 1:
                a(f"buffer_load_dwordx4 v[{XB+8*c}:{XB+8*c+3}], v2, s[8:11], s43 offen offset:{64*c}")
                a(f"buffer_load_dwordx4 v[{XB+8*c+4}:{XB+8*c+7}], v2, s[8:11], s44 offen offset:{64*c}")
            elif OPT["ldX"] == 2:
                a(f"buffer_load_dwordx4 v[{XB+8*c}:{XB+8*c+3}], v27, s[8:11], s43 offen offset:{(2*c % 4)*1024}")
                a(f"buffer_load_dwordx4 v[{XB+8*c+4}:{XB+8*c+7}], v27, s[8:11], s43 offen offset:{((2*c+1) % 4)*1024}")
                if c % 2 == 1: a("v_add_u32 v27, 4096, v27")
    a("v_lshrrev_b32 v16, 5, v1")
    a("v_bfe_u32 v17, v1, 4, 1")
    a("v_bfe_u32 v18, v1, 2, 2")
    a("v_bfe_u32 v19, v1, 1, 1")
    a("v_and_b32 v20, 1, v1")
    a("v_lshl_add_u32 v21, v16, 4, v18")
    a("v_lshlrev_b32 v21, 7, v21")
    a("v_lshl_add_u32 v22, v17, 1, v19")
    a("v_lshl_add_u32 v21, v22, 4, v21")
    a("v_lshl_add_u32 v21, v20, 3, v21")
    a("v_lshrrev_b32 v23, 1, v18")
    a("v_lshl_add_u32 v4, v23, 6, v21")
    a("v_xor_b32 v23, 1, v23")
    a("v_lshl_add_u32 v5, v23, 6, v21")
    a("v_add_u32 v6, 65536, v4")
    a("v_add_u32 v7, 65536, v5")
    for r in range(8, 16): a(f"v_mov_b32 v{r}, 0")
    a("s_mov_b32 s46, 0x3f803f80")
    FB = 32
    ACC = 64
    def fragreg(buf, T): return FB + 16*buf + 4*T
    def reads(s):
        c, sB = s >> 1, s & 1
        L = []
        for T in range(4):
            base = fragreg(s & 1, T)
            for rd in range(2):
                off = (32*c + 8*sB + 4*rd) * 128
                L.append(f"ds_read_b64_tr_b16 v[{base+2*rd}:{base+2*rd+1}], v{4+T} offset:{off}")
        return L
    def stage_wait(j):
        per = (2 if OPT["ldW"] else 0) + (4 if OPT["ldX"] else 0)
        a(f"s_waitcnt vmcnt({per*(7-j)})")
        a("s_barrier")
        for c in (2*j, 2*j+1):
            for i in range(4):
                a(f"v_permlane16_swap_b32 v{XB+8*c+i}, v{XB+8*c+4+i}")
    stamp(a, 1)
    stage_wait(0)
    stamp(a, 2)
    for r in reads(0): a(r)
    for s in range(32):
        c, sB = s >> 1, s & 1
        xf = XB + 8*c + 4*sB
        nxt = reads(s+1) if s < 31 else []
        if s < 31 and (s+1) % 4 == 0:
            stage_wait((s+1)//4)
        def mf(T):
            cs = "0" if s == 0 else f"v[{ACC+16*T}:{ACC+16*T+15}]"
            b = fragreg(s & 1, T)
            a(f"v_mfma_f32_32x32x16_bf16 v[{ACC+16*T}:{ACC+16*T+15}], v[{b}:{b+3}], v[{xf}:{xf+3}], {cs}")
        if nxt:
            a("s_waitcnt lgkmcnt(6)"); mf(0)
            for r in nxt[0:4]: a(r)
            a("s_waitcnt lgkmcnt(8)"); mf(1)
            for r in nxt[4:8]: a(r)
            if OPT["stats_in_loop"]:
                for i in range(4):
                    a(f"v_dot2c_f32_bf16 v{8+(i&1)}, s46, v{xf+i}")
            a("s_waitcnt lgkmcnt(10)"); mf(2)
            if OPT["stats_in_loop"]:
                for i in range(4):
                    a(f"v_dot2c_f32_bf16 v{10+(i&1)}, v{xf+i}, v{xf+i}")
            a("s_waitcnt lgkmcnt(8)"); mf(3)
        else:
            a("s_waitcnt lgkmcnt(0)")
            mf(0); mf(1)
            if OPT["stats_in_loop"]:
                for i in range(4):
                    a(f"v_dot2c_f32_bf16 v{8+(i&1)}, s46, v{xf+i}")
            mf(2)
            if OPT["stats_in_loop"]:
                for i in range(4):
                    a(f"v_dot2c_f32_bf16 v{10+(i&1)}, v{xf+i}, v{xf+i}")
            mf(3)
        if OPT["cs_in_loop"]:
            lab = a.newlabel("K1_CS")
            a(f"s_cmp_eq_u32 s36, {s & 7}")
            a(f"s_cbranch_scc0 {lab}")
            a.skip_begin()
            for i in range(4):
                for T in range(4):
                    a(f"v_dot2c_f32_bf16 v{12+T}, s46, v{fragreg(s&1,T)+i}")
            a.skip_end()
            a.label(lab)
    stamp(a, 3)
    a("v_add_f32 v8, v8, v9")
    a("v_add_f32 v10, v10, v11")
    a("v_mov_b32 v16, v8")
    a("v_mov_b32 v17, v10")
    for T in range(4): a(f"v_mov_b32 v{20+T}, v{12+T}")
    a("v_permlane32_swap_b32 v8, v16")
    a("v_permlane32_swap_b32 v10, v17")
    for T in range(4): a(f"v_permlane32_swap_b32 v{12+T}, v{20+T}")
    a("v_add_f32 v8, v8, v16")
    a("v_add_f32 v10, v10, v17")
    for T in range(4): a(f"v_add_f32 v{12+T}, v{12+T}, v{20+T}")
    a("v_and_b32 v24, 31, v1")
    a("v_lshlrev_b32 v24, 2, v24")
    a("s_lshl_b32 s41, s36, 9")
    a(f"s_add_u32 s41, s41, {K1_CSP}")
    a("v_add_u32 v24, s41, v24")
    for T in range(4): a(f"ds_write_b32 v24, v{12+T} offset:{T*128}")
    a(f"v_mul_f32 v8, {f2u(1/512):#x}, v8")
    a(f"v_mul_f32 v10, {f2u(1/512):#x}, v10")
    a("v_fma_f32 v10, -v8, v8, v10")
    a("v_max_f32 v10, 0, v10")
    bf16r(a, 8, 8)
    bf16r(a, 10, 10)
    a(f"v_add_f32 v10, {f2u(1e-5):#x}, v10")
    bf16r(a, 10, 10)
    a("v_sqrt_f32 v10, v10")
    bf16r(a, 10, 10)
    a("v_rcp_f32 v10, v10")
    a("v_sub_f32 v18, 0, v8")
    a("v_sub_f32 v19, 0, v8")
    a(f"v_mul_f32 v20, {f2u(-1.4426950408889634):#x}, v10")
    a("v_mov_b32 v21, v20")
    a("v_mul_f32 v22, v10, v10")
    a("v_mov_b32 v23, v22")
    a("s_waitcnt lgkmcnt(0)")
    a("s_barrier")
    lab = a.newlabel("K1_RED")
    a("s_cmp_ge_u32 s36, 2")
    a(f"s_cbranch_scc1 {lab}")
    a.skip_begin()
    a("v_lshlrev_b32 v24, 2, v0")
    a(f"v_add_u32 v24, {K1_CSP}, v24")
    for w in range(8): a(f"ds_read_b32 v{26+w}, v24 offset:{w*512}")
    a("s_waitcnt lgkmcnt(0)")
    a("v_add_f32 v26, v26, v27"); a("v_add_f32 v28, v28, v29"); a("v_add_f32 v30, v30, v31"); a("v_add_f32 v32, v32, v33")
    a("v_add_f32 v26, v26, v28"); a("v_add_f32 v30, v30, v32"); a("v_add_f32 v26, v26, v30")
    a("ds_write_b32 v24, v26 offset:4096")
    a("s_waitcnt lgkmcnt(0)")
    a.skip_end()
    a.label(lab)
    a("s_barrier")
    a("v_lshrrev_b32 v25, 5, v1")
    a("v_lshlrev_b32 v25, 4, v25")
    a(f"v_add_u32 v25, {K1_CSF}, v25")
    CS = 128
    for T in range(4):
        for q in range(4):
            a(f"ds_read_b128 v[{CS+16*T+4*q}:{CS+16*T+4*q+3}], v25 offset:{T*128+q*32}")
    stamp(a, 4)
    a("s_mov_b32 s46, 1.0"); a("s_mov_b32 s47, 1.0")
    a("s_lshl_b32 s41, s39, 3"); a("s_add_u32 s41, s41, s36"); a("s_mul_i32 s41, s41, 112")
    a("s_lshl_b32 s48, s40, 2"); a("s_add_u32 s41, s41, s48"); a("s_lshl_b32 s48, s41, 10")
    if WS_HF: a(f"s_add_u32 s48, s48, {WS_HF}")
    a("v_lshlrev_b32 v26, 4, v1")
    a("s_waitcnt lgkmcnt(0)")
    HR = 192
    TM = 208
    for P in range(2):
        for half in range(2):
            prs = [8*half + 2*k for k in range(4)]
            G = lambda i: f"v[{ACC+16*P+i}:{ACC+16*P+i+1}]"
            U = lambda i: f"v[{ACC+32+16*P+i}:{ACC+32+16*P+i+1}]"
            CG = lambda i: f"v[{CS+16*P+i}:{CS+16*P+i+1}]"
            CU = lambda i: f"v[{CS+32+16*P+i}:{CS+32+16*P+i+1}]"
            Tm = lambda k: TM + 2*k
            for i in prs: a(f"v_pk_fma_f32 {G(i)}, {CG(i)}, v[18:19], {G(i)}")
            for i in prs: a(f"v_pk_fma_f32 {U(i)}, {CU(i)}, v[18:19], {U(i)}")
            for k, i in enumerate(prs): a(f"v_pk_mul_f32 v[{Tm(k)}:{Tm(k)+1}], {G(i)}, v[20:21]")
            for k, i in enumerate(prs):
                a(f"v_exp_f32 v{Tm(k)}, v{Tm(k)}"); a(f"v_exp_f32 v{Tm(k)+1}, v{Tm(k)+1}")
            for k, i in enumerate(prs): a(f"v_pk_mul_f32 {G(i)}, {G(i)}, {U(i)}")
            for k, i in enumerate(prs): a(f"v_pk_add_f32 v[{Tm(k)}:{Tm(k)+1}], v[{Tm(k)}:{Tm(k)+1}], s[46:47]")
            for k, i in enumerate(prs): a(f"v_pk_mul_f32 {G(i)}, {G(i)}, v[22:23]")
            for k, i in enumerate(prs):
                a(f"v_rcp_f32 v{Tm(k)}, v{Tm(k)}"); a(f"v_rcp_f32 v{Tm(k)+1}, v{Tm(k)+1}")
            for k, i in enumerate(prs): a(f"v_pk_mul_f32 {G(i)}, {G(i)}, v[{Tm(k)}:{Tm(k)+1}]")
            F = 2*P + half
            for k, i in enumerate(prs):
                a(f"v_cvt_pk_bf16_f32 v{HR+4*F+k}, v{ACC+16*P+i}, v{ACC+16*P+i+1}")
            a(f"buffer_store_dwordx4 v[{HR+4*F}:{HR+4*F+3}], v26, s[20:23], s48 offen offset:{F*1024}")
    stamp(a, 5)
    a("s_waitcnt vmcnt(0)")
    stamp(a, 6)
    stamp_store(a, 7, 0)
    a("s_branch K1_END")

    a.label("K1_AUX")
    a("s_sub_u32 s39, s38, 28"); a("s_lshl_b32 s39, s39, 3"); a("s_add_u32 s39, s39, s37")
    a("s_lshl_b32 s41, s39, 16"); a("s_lshl_b32 s42, s36, 13"); a("s_add_u32 s41, s41, s42")
    a("v_lshlrev_b32 v2, 4, v1")
    a("v_add_u32 v3, 4096, v2")
    for i in range(8):
        a(f"buffer_load_dwordx4 v[{32+4*i}:{32+4*i+3}], v{2 if i<4 else 3}, s[8:11], s41 offen offset:{(i&3)*1024}")
    labw = a.newlabel("K1_NOWD")
    a("s_cmp_ge_u32 s39, 28")
    a(f"s_cbranch_scc1 {labw}")
    a.skip_begin()
    for i in range(4):
        a(f"v_xor_b32 v{4+i}, {4*i}, v1")
        a(f"v_lshlrev_b32 v{4+i}, 4, v{4+i}")
    a("s_add_u32 s43, s42, 65536")
    for hf in range(2):
        a(f"s_add_u32 m0, s43, {hf*4096}")
        a(f"s_add_u32 s44, s41, {hf*4096}")
        for i in range(4):
            a(f"buffer_load_dwordx4 v{4+i}, s[24:27], s44 offen offset:{i*1024} lds")
    a.skip_end()
    a.label(labw)
    labf = a.newlabel("K1_NOFL")
    a("s_cmp_lg_u32 s39, 31"); a(f"s_cbranch_scc1 {labf}")
    a("s_cmp_lg_u32 s36, 0"); a(f"s_cbranch_scc1 {labf}")
    a.skip_begin()
    for r in range(8, 12): a(f"v_mov_b32 v{r}, 0")
    a(f"s_mov_b32 s45, {WS_FLAG}")
    a("buffer_store_dwordx4 v[8:11], v2, s[20:23], s45 offen")
    a.skip_end()
    a.label(labf)
    a("s_waitcnt vmcnt(0)")
    X = 64
    for i in range(8):
        for d in range(4):
            a(f"v_lshlrev_b32 v{X+8*i+2*d}, 16, v{32+4*i+d}")
            a(f"v_and_b32 v{X+8*i+2*d+1}, 0xffff0000, v{32+4*i+d}")
    def allreduce(regs, t):
        for mod in ("quad_perm:[1,0,3,2]", "quad_perm:[2,3,0,1]", "row_half_mirror", "row_mirror"):
            for r in regs: a(f"v_add_f32_dpp v{r}, v{r}, v{r} {mod} row_mask:0xf bank_mask:0xf")
        for sw in ("v_permlane16_swap_b32", "v_permlane32_swap_b32"):
            for k, r in enumerate(regs): a(f"v_mov_b32 v{t+k}, v{r}")
            for k, r in enumerate(regs): a(f"{sw} v{r}, v{t+k}")
            for k, r in enumerate(regs): a(f"v_add_f32 v{r}, v{r}, v{t+k}")
    S = 8
    for i in range(8):
        b = X + 8*i
        a(f"v_add_f32 v{S+i}, v{b}, v{b+1}")
    for k in range(2, 8):
        for i in range(8): a(f"v_add_f32 v{S+i}, v{S+i}, v{X+8*i+k}")
    allreduce([S+i for i in range(8)], 16)
    for i in range(8): a(f"v_mul_f32 v{S+i}, {f2u(1/512):#x}, v{S+i}")
    Q = 24
    D = 128
    for i in range(8):
        for k in range(8): a(f"v_sub_f32 v{D+8*i+k}, v{X+8*i+k}, v{S+i}")
    for i in range(8): a(f"v_mul_f32 v{Q+i}, v{D+8*i}, v{D+8*i}")
    for k in range(1, 8):
        for i in range(8): a(f"v_fmac_f32 v{Q+i}, v{D+8*i+k}, v{D+8*i+k}")
    allreduce([Q+i for i in range(8)], 16)
    for i in range(8): a(f"v_mul_f32 v{Q+i}, {f2u(1/512):#x}, v{Q+i}")
    for i in range(8): a(f"v_cvt_pk_bf16_f32 v{S+i}, v{S+i}, v{S+i}")
    for i in range(8): a(f"v_cvt_pk_bf16_f32 v{Q+i}, v{Q+i}, v{Q+i}")
    for i in range(8): a(f"v_lshlrev_b32 v{S+i}, 16, v{S+i}")
    for i in range(8): a(f"v_lshlrev_b32 v{Q+i}, 16, v{Q+i}")
    for i in range(8): a(f"v_add_f32 v{Q+i}, {f2u(1e-5):#x}, v{Q+i}")
    for i in range(8): a(f"v_cvt_pk_bf16_f32 v{Q+i}, v{Q+i}, v{Q+i}")
    for i in range(8): a(f"v_lshlrev_b32 v{Q+i}, 16, v{Q+i}")
    for i in range(8): a(f"v_sqrt_f32 v{Q+i}, v{Q+i}")
    for i in range(8): a(f"v_cvt_pk_bf16_f32 v{Q+i}, v{Q+i}, v{Q+i}")
    for i in range(8): a(f"v_lshlrev_b32 v{Q+i}, 16, v{Q+i}")
    for i in range(8): a(f"v_rcp_f32 v{Q+i}, v{Q+i}")
    for i in range(8):
        for k in range(8): a(f"v_sub_f32 v{D+8*i+k}, v{X+8*i+k}, v{S+i}")
        for d in range(4): a(f"v_cvt_pk_bf16_f32 v{32+4*i+d}, v{D+8*i+2*d}, v{D+8*i+2*d+1}")
        for d in range(4):
            a(f"v_lshlrev_b32 v{D+8*i+2*d}, 16, v{32+4*i+d}")
            a(f"v_and_b32 v{D+8*i+2*d+1}, 0xffff0000, v{32+4*i+d}")
        for k in range(8): a(f"v_mul_f32 v{D+8*i+k}, v{D+8*i+k}, v{Q+i}")
        for d in range(4): a(f"v_cvt_pk_bf16_f32 v{32+4*i+d}, v{D+8*i+2*d}, v{D+8*i+2*d+1}")
    a("s_and_b32 s43, s36, 1"); a("s_lshl_b32 s43, s43, 3")
    for i in range(4):
        a(f"v_xor_b32 v{4+i}, {2*i}, v1")
        a(f"v_xor_b32 v{4+i}, s43, v{4+i}")
        a(f"v_lshlrev_b32 v{4+i}, 4, v{4+i}")
        a(f"v_add_u32 v{4+i}, s42, v{4+i}")
    for i in range(8):
        a(f"ds_write_b128 v{4+(i&3)}, v[{32+4*i}:{32+4*i+3}] offset:{i*1024}")
    a("s_waitcnt lgkmcnt(0)")
    a("s_barrier")
    a("v_lshrrev_b32 v16, 4, v1")
    a("v_bfe_u32 v17, v1, 2, 2")
    a("v_bfe_u32 v18, v1, 1, 1")
    a("v_and_b32 v19, 1, v1")
    a("v_and_b32 v20, 1, v16")
    a("v_lshl_add_u32 v20, v20, 2, v17")
    a("v_xor_b32 v20, s36, v20")
    a("v_lshl_add_u32 v20, v20, 1, v18")
    a("v_lshlrev_b32 v20, 4, v20")
    a("v_lshl_add_u32 v20, v19, 3, v20")
    a("v_lshl_add_u32 v21, v16, 3, v17")
    a("v_lshl_add_u32 v20, v21, 10, v20")
    a("v_and_b32 v22, 15, v1"); a("v_lshlrev_b32 v22, 12, v22"); a("v_lshl_add_u32 v22, v16, 4, v22")
    a("s_lshl_b32 s44, s36, 16"); a("s_lshl_b32 s45, s39, 7"); a("s_add_u32 s44, s44, s45"); a(f"s_add_u32 s44, s44, {WS_UT}")
    for z in range(4):
        for ps in range(2):
            b = 32 + 4*(2*(z&1)+ps) + (16 if z >= 2 else 0)
            for rd in range(2):
                a(f"ds_read_b64_tr_b16 v[{b+2*rd}:{b+2*rd+1}], v20 offset:{256*z + 32768*ps + 4096*rd}")
    a("s_waitcnt lgkmcnt(0)")
    for z in range(4):
        a(f"s_add_u32 s45, s44, {z*524288}")
        for ps in range(2):
            b = 32 + 4*(2*(z&1)+ps) + (16 if z >= 2 else 0)
            a(f"buffer_store_dwordx4 v[{b}:{b+3}], v22, s[20:23], s45 offen offset:{64*ps}")
    a("s_cmp_ge_u32 s39, 28")
    a("s_cbranch_scc1 K1_AUXEND")
    a("v_lshrrev_b32 v16, 5, v1")
    a("v_bfe_u32 v17, v1, 4, 1")
    a("v_bfe_u32 v18, v1, 2, 2")
    a("v_bfe_u32 v19, v1, 1, 1")
    a("v_and_b32 v20, 1, v1")
    a("s_and_b32 s43, s36, 3")
    a("v_xor_b32 v21, s43, v18")
    a("v_lshlrev_b32 v21, 2, v21")
    a("v_lshl_add_u32 v21, v17, 1, v21")
    a("v_add_u32 v21, v21, v19")
    a("v_lshlrev_b32 v21, 4, v21")
    a("v_lshl_add_u32 v21, v20, 3, v21")
    a("v_lshl_add_u32 v22, v16, 2, v18")
    a("v_lshl_add_u32 v21, v22, 10, v21")
    a("s_and_b32 s43, s36, 4"); a("s_lshl_b32 s43, s43, 6"); a("s_add_u32 s43, s43, 65536")
    a("v_add_u32 v21, s43, v21")
    for y in range(2):
        for sp in range(4):
            b = 64 + 4*(4*y+sp)
            for rd in range(2):
                a(f"ds_read_b64_tr_b16 v[{b+2*rd}:{b+2*rd+1}], v21 offset:{sp*16384 + rd*8192 + y*512}")
    a("s_mul_i32 s44, s36, 112"); a("s_lshl_b32 s45, s39, 2"); a("s_add_u32 s44, s44, s45"); a("s_lshl_b32 s44, s44, 10")
    a(f"s_add_u32 s44, s44, {WS_WDF}")
    a("s_waitcnt lgkmcnt(0)")
    for y in range(2):
        if y: a(f"s_add_u32 s44, s44, {8*112*1024}")
        for sp in range(4):
            b = 64 + 4*(4*y+sp)
            a(f"buffer_store_dwordx4 v[{b}:{b+3}], v2, s[20:23], s44 offen offset:{sp*1024}")
    a.label("K1_AUXEND")
    stamp(a, 5)
    a("s_waitcnt vmcnt(0)")
    stamp(a, 6)
    stamp_store(a, 7, 0)
    a.label("K1_END")
    a("s_endpgm")
    return a, K1_CSF + 512

def kernel_text(name, a, vgpr=256, sgpr=96):
    body = a.finalize()
    return f""".globl {name}
.p2align 8
.type {name},@function
{name}:
{body}
"""
def kd_text(name, vgpr=256, sgpr=96, accum=256):
    return f""".amdhsa_kernel {name}
  .amdhsa_next_free_vgpr {vgpr}
  .amdhsa_next_free_sgpr {sgpr}
  .amdhsa_accum_offset {accum}
  .amdhsa_group_segment_fixed_size 0
  .amdhsa_kernarg_size 128
  .amdhsa_user_sgpr_count 2
  .amdhsa_user_sgpr_kernarg_segment_ptr 1
  .amdhsa_system_sgpr_workgroup_id_x 1
.end_amdhsa_kernel
"""

HEADER = open(os.path.join(os.path.dirname(os.path.abspath(__file__)), "..", "cdna_kernels", "recurrent_scan__ssm_conv_s4__swiglu_ffn__prompt.s.ref")).read().split("; Override launch geometry")[0]

def build(kernels, path):
    s = HEADER
    for name, a, grid, block, lds in kernels:
        s += f"; @launch kernel={name} grid=({grid},1,1) block=({block},1,1) lds={lds}\n"
    s += '.amdgcn_target "amdgcn-amd-amdhsa--gfx950"\n.text\n'
    for name, a, grid, block, lds in kernels:
        s += kernel_text(name, a)
    s += '.section .rodata,"a"\n'
    for name, a, grid, block, lds in kernels:
        s += ".p2align 6\n" + kd_text(name)
    open(path, "w").write(s)
```

```python
from asmlib import Asm
import gen as G
from gen import srd, bf16r, f2u, stamp, stamp_store, OPT

XYSZ = 57*288
L_P   = 4*XYSZ
P_PITCH = 272
L_STL = L_P + 4*64*P_PITCH
STL_PITCH = 144
L_CNT = L_STL + 64*STL_PITCH
LDS2  = L_CNT + 64
EXCH_OFF = 0
R0_OFF = 3072
R1_OFF = R0_OFF + 4160

def cmul(a_list, d, x, y, t):
    i1 = f"v_pk_mul_f32 v[{t}:{t+1}], v[{x}:{x+1}], v[{y}:{y+1}] op_sel:[0,0] op_sel_hi:[0,1]"
    i2 = f"v_pk_fma_f32 v[{d}:{d+1}], v[{x}:{x+1}], v[{y}:{y+1}], v[{t}:{t+1}] op_sel:[1,1,0] op_sel_hi:[1,0,1] neg_lo:[1,0,0]"
    return i1, i2

def gen_k2():
    a = Asm()
    a("s_cmp_ge_u32 s2, 256")
    a("s_cbranch_scc1 K2_END")
    stamp(a, 0)
    a("s_load_dwordx16 s[40:55], s[0:1], 0")
    a("s_load_dwordx2 s[56:57], s[0:1], 64")
    a("s_load_dwordx2 s[58:59], s[0:1], 104")
    a("s_load_dwordx2 s[32:33], s[0:1], 120")
    a("v_lshrrev_b32 v1, 6, v0")
    a("v_readfirstlane_b32 s36, v1")
    a("v_and_b32 v1, 63, v0")
    a("s_and_b32 s37, s2, 7")
    a("s_lshr_b32 s38, s2, 3")
    a("s_lshl_b32 s39, s37, 2"); a("s_lshr_b32 s3, s38, 3"); a("s_add_u32 s39, s39, s3")
    a("s_and_b32 s3, s38, 7")
    a(f"v_mov_b32 v2, {L_CNT}"); a("v_mov_b32 v3, 0")
    a("v_and_b32 v4, 15, v1"); a("v_lshl_add_u32 v2, v4, 2, v2")
    a("ds_write_b32 v2, v3")
    a("s_waitcnt lgkmcnt(0)")
    srd(a, 8, 40, 41, 2048*512*2)
    srd(a, 12, 58, 59, 2048*512*2)
    srd(a, 20, 32, 33, G.WS_END)
    a("v_lshrrev_b32 v5, 3, v1"); a("v_lshlrev_b32 v5, 10, v5")
    a("v_and_b32 v6, 7, v1"); a("v_lshl_add_u32 v5, v6, 4, v5")
    a("s_lshl_b32 s34, s39, 16"); a("s_lshl_b32 s35, s36, 13"); a("s_add_u32 s34, s34, s35")
    a("s_lshl_b32 s35, s3, 7"); a("s_add_u32 s34, s34, s35")
    a("buffer_load_dwordx4 v[8:11], v5, s[8:11], s34 offen")
    a("s_barrier")
    a("s_cmp_ge_u32 s36, 4")
    a("s_cbranch_scc1 K2_CONV")
    DEPTH = 8
    a("v_lshlrev_b32 v2, 4, v1")
    for q in range(7): a(f"v_add_u32 v{12+q}, {q*4096}, v2")
    a("s_mul_i32 s26, s39, 224"); a("s_mul_i32 s27, s36, 28"); a("s_add_u32 s26, s26, s27"); a("s_lshl_b32 s26, s26, 10")
    if G.WS_HF: a(f"s_add_u32 s26, s26, {G.WS_HF}")
    a("s_add_u32 s28, s26, 114688")
    a("s_mul_i32 s29, s3, 224"); a("s_add_u32 s29, s29, s27"); a("s_lshl_b32 s29, s29, 10"); a(f"s_add_u32 s29, s29, {G.WS_WDF}")
    a("s_add_u32 s30, s29, 114688")
    FR = 64; AC = 192
    def loads(s):
        b = FR + (s % DEPTH)*16
        for j, sr in enumerate(["s26","s28","s29","s30"]):
            a(f"buffer_load_dwordx4 v[{b+4*j}:{b+4*j+3}], v{12+s//4}, s[20:23], {sr} offen offset:{(s%4)*1024}")
    for s in range(DEPTH): loads(s)
    stamp(a, 1)
    for s in range(28):
        a(f"s_waitcnt vmcnt({4*min(DEPTH-1, 27-s)})")
        b = FR + (s % DEPTH)*16
        for nt2 in range(2):
            for rt in range(2):
                ac = AC + 16*(2*nt2+rt)
                c = "0" if s == 0 else f"v[{ac}:{ac+15}]"
                a(f"v_mfma_f32_32x32x16_bf16 v[{ac}:{ac+15}], v[{b+8+4*nt2}:{b+11+4*nt2}], v[{b+4*rt}:{b+3+4*rt}], {c}")
        if s + DEPTH < 28: loads(s + DEPTH)
    stamp(a, 2)
    a("v_and_b32 v2, 31, v1"); a(f"v_mul_u32_u24 v2, {P_PITCH}, v2")
    a("v_lshrrev_b32 v3, 5, v1"); a("v_lshl_add_u32 v2, v3, 4, v2")
    a(f"s_mul_i32 s26, s36, {64*P_PITCH}"); a(f"s_add_u32 s26, s26, {L_P}")
    a("v_add_u32 v2, s26, v2")
    for nt2 in range(2):
        for rt in range(2):
            ac = AC + 16*(2*nt2+rt)
            for q in range(4):
                a(f"ds_write_b128 v2, v[{ac+4*q}:{ac+4*q+3}] offset:{rt*32*P_PITCH + (32*nt2+8*q)*4}")
    a("s_waitcnt lgkmcnt(0)")
    stamp(a, 3)
    a("s_branch K2_FINAL")

    a.label("K2_CONV")
    a("s_setprio 2")
    a("s_sub_u32 s24, s36, 4")
    a("s_lshr_b32 s25, s24, 1")
    a("s_and_b32 s26, s24, 1")
    a("s_lshl_b32 s27, s2, 1"); a("s_add_u32 s27, s27, s25")
    a("s_lshl_b32 s28, s27, 8"); a("s_lshl_b32 s29, s26, 7"); a("s_add_u32 s28, s28, s29")
    a("v_lshl_add_u32 v2, v1, 1, s28")
    for i, base in enumerate((42, 44, 46, 48, 50, 52)):
        a(f"global_load_ushort v{12+i}, v2, s[{base}:{base+1}]")
    a("s_lshl_b32 s28, s2, 2")
    a("s_load_dword s30, s[54:55], s28")
    a("s_load_dword s31, s[56:57], s28")
    UB = 200
    UD = 216
    a("v_and_b32 v3, 15, v1"); a("v_lshrrev_b32 v4, 4, v1")
    a("v_lshlrev_b32 v6, 8, v3"); a("v_lshl_add_u32 v7, v4, 4, v6")
    a("s_lshl_b32 s28, s27, 12"); a(f"s_add_u32 s29, s28, {G.WS_UT}")
    for h in range(4):
        a(f"buffer_load_dwordx4 v[{UB+4*h}:{UB+4*h+3}], v7, s[20:23], s29 offen offset:{64*h}")
    a("v_lshl_add_u32 v7, v4, 3, v6")
    a("s_lshl_b32 s35, s26, 5"); a("v_add_u32 v7, s35, v7")
    for j in range(4):
        a(f"buffer_load_dwordx2 v[{UD+2*j}:{UD+2*j+1}], v7, s[20:23], s29 offen offset:{64*j}")
    a(f"s_mul_i32 s16, s24, {XYSZ}")
    a("s_andn2_b32 s17, s24, 1"); a(f"s_mul_i32 s17, s17, {XYSZ}")
    a(f"s_add_u32 s18, s17, {XYSZ}")
    EA = 224
    a("s_lshl_b32 s28, s26, 10")
    a("v_lshlrev_b32 v6, 4, v1"); a("v_add_u32 v6, s28, v6"); a("v_sub_u32 v6, 2047, v6")
    for e in range(17):
        a(f"v_subrev_u32 v{EA+e}, {e}, v6")
    for e in range(0, 17, 2):
        e2 = min(e+1, 16)
        a(f"v_cvt_f32_i32 v18, v{EA+e}"); a(f"v_cvt_f32_i32 v19, v{EA+e2}")
        a("v_cvt_pk_bf16_f32 v18, v18, v19")
        a("v_lshrrev_b32 v19, 16, v18"); a("v_and_b32 v18, 0xffff, v18")
        a("v_subrev_u32 v18, 17024, v18"); a("v_subrev_u32 v19, 17024, v19")
        a(f"v_cmp_gt_i32 vcc, 128, v{EA+e}")
        a(f"v_cndmask_b32 v{EA+e}, v18, v{EA+e}, vcc")
        if e2 != e:
            a(f"v_cmp_gt_i32 vcc, 128, v{EA+e2}")
            a(f"v_cndmask_b32 v{EA+e2}, v19, v{EA+e2}, vcc")
    a(f"v_cmp_gt_i32 vcc, 0, v{EA+16}")
    a("v_mov_b32 v18, 641")
    a(f"v_cndmask_b32 v{EA+16}, v{EA+16}, v18, vcc")
    for e in range(17):
        a(f"v_lshl_add_u32 v{EA+e}, v{EA+e}, 1, s17")
    stamp(a, 1)
    a("s_waitcnt vmcnt(8) lgkmcnt(0)")
    a("s_lshl_b32 s28, s25, 4")
    a("s_lshr_b32 s30, s30, s28"); a("s_lshl_b32 s30, s30, 16")
    a("s_lshr_b32 s31, s31, s28"); a("s_lshl_b32 s31, s31, 16")
    for i in range(6): a(f"v_lshlrev_b32 v{12+i}, 16, v{12+i}")
    a(f"v_mov_b32 v18, {G.LOG2E:#x}"); a("v_mul_f32 v18, s30, v18"); a("v_exp_f32 v18, v18")
    bf16r(a, 18, 18)
    a("v_mul_f32 v12, v18, v12")
    a("v_mul_f32 v13, v18, v13")
    a("v_mul_f32 v14, v18, v14"); a("v_mul_f32 v15, v18, v15")
    a(f"v_mul_f32 v12, {G.LOG2E:#x}, v12")
    a(f"v_mul_f32 v13, {f2u(0.15915494309189535):#x}, v13")
    F = lambda c: 20 + 2*(c-1)
    W1 = 34; V1 = 36; W2 = 38; V2 = 40; CB = 42
    def cexp(d, mult):
        if mult != 1:
            a(f"v_mul_f32 v48, {f2u(float(mult)):#x}, v12"); a(f"v_mul_f32 v49, {f2u(float(mult)):#x}, v13")
        else:
            a("v_mov_b32 v48, v12"); a("v_mov_b32 v49, v13")
        a("v_fract_f32 v49, v49")
        a("v_exp_f32 v48, v48")
        a(f"v_cos_f32 v{d}, v49"); a(f"v_sin_f32 v{d+1}, v49")
        a(f"v_mul_f32 v{d}, v{d}, v48"); a(f"v_mul_f32 v{d+1}, v{d+1}, v48")
    cexp(F(1), 1); cexp(W1, 8); cexp(V1, 128)
    def emit_cmuls(tasks):
        T0 = 50
        pairs = [cmul(None, d, x, y, T0 + 2*(k % 6)) for k, (d, x, y) in enumerate(tasks)]
        for i1, _ in pairs: a(i1)
        for _, i2 in pairs: a(i2)
    Y = lambda b: 64 + 2*b
    Gq = lambda q: 96 + 2*q
    a(f"v_mov_b32 v{Y(0)}, 1.0"); a(f"v_mov_b32 v{Y(0)+1}, 0")
    a(f"v_mov_b32 v{Y(1)}, v{W1}"); a(f"v_mov_b32 v{Y(1)+1}, v{W1+1}")
    emit_cmuls([(Gq(0), 16, 14), (F(2), F(1), F(1)), (W2, W1, W1), (V2, V1, V1)])
    emit_cmuls([(Gq(1), Gq(0), V1), (F(3), F(2), F(1)), (F(4), F(2), F(2)), (Y(2), Y(0), W2), (Y(3), Y(1), W2)])
    emit_cmuls([(Gq(2), Gq(0), V2), (Gq(3), Gq(1), V2), (F(5), F(4), F(1)), (F(6), F(4), F(2)), (F(7), F(4), F(3)), (Y(4), Y(2), W2)])
    rest = []
    for k in range(2, 8):
        t = [(Gq(2*k), Gq(2*k-2), V2)]
        if 2*k+1 <= 16: t.append((Gq(2*k+1), Gq(2*k-1), V2))
        yb = 2*k+1
        if yb <= 15: t.append((Y(yb), Y(yb-2), W2))
        if yb+1 <= 15: t.append((Y(yb+1), Y(yb-1), W2))
        emit_cmuls(t)
    emit_cmuls([(Gq(16), Gq(14), V2), (Y(15), Y(13), W2)])
    a("v_lshlrev_b32 v6, 2, v1"); a("v_add_u32 v6, s16, v6")
    pk = [0]
    def put(row, reg, neg):
        t = 56 + (pk[0] % 4); pk[0] += 1
        a(f"v_cvt_pk_bf16_f32 v{t}, v{reg}, {'-' if neg else ''}v{reg+1}")
        a(f"ds_write_b32 v6, v{t} offset:{row*288}")
    for b in range(16): put(41+b, Y(b), False)
    put(0, Gq(0), True); put(8, Gq(1), True); put(16, Gq(2), True); put(20, Gq(3), True)
    for q in range(4): put(24+2*q, Gq(4+q), True)
    for q in range(8): put(32+q, Gq(8+q), True)
    put(40, Gq(16), True)
    ex = []
    for c in range(1, 8): ex.append((c, 0, c)); ex.append((8+c, 1, c))
    for c in range(1, 4): ex.append((16+c, 2, 2*c)); ex.append((20+c, 3, 2*c))
    for q in range(4): ex.append((24+2*q+1, 4+q, 4))
    XT = 130
    for i in range(0, len(ex), 6):
        grp = ex[i:i+6]
        emit_cmuls([(XT+2*k, Gq(g), F(c)) for k, (row, g, c) in enumerate(grp)])
        for k, (row, g, c) in enumerate(grp): put(row, XT+2*k, True)
    a("v_mul_u32_u24 v44, 288, v3"); a("v_lshl_add_u32 v44, v4, 4, v44"); a("v_add_u32 v44, s16, v44")
    a("s_waitcnt lgkmcnt(0)")
    AF = 64; BF = 112; KA = 128
    for ks in range(4):
        a(f"ds_read_b128 v[{BF+4*ks}:{BF+4*ks+3}], v44 offset:{41*288 + ks*64}")
        for mt in range(3):
            b = AF + 4*(3*ks+mt)
            a(f"ds_read_b128 v[{b}:{b+3}], v44 offset:{mt*16*288 + ks*64}")
    a("s_waitcnt lgkmcnt(0)")
    for ks in range(4):
        for mt in range(3):
            b = AF + 4*(3*ks+mt)
            c = "0" if ks == 0 else f"v[{KA+4*mt}:{KA+4*mt+3}]"
            a(f"v_mfma_f32_16x16x32_bf16 v[{KA+4*mt}:{KA+4*mt+3}], v[{b}:{b+3}], v[{BF+4*ks}:{BF+4*ks+3}], {c}")
    def set_flag(off_sgpr_expr_fn):
        pass
    a(f"v_mov_b32 v45, {L_CNT}")
    a("s_lshl_b32 s28, s25, 2"); a("v_add_u32 v45, s28, v45")
    a("v_mov_b32 v46, 1")
    a("v_mul_u32_u24 v47, 48, v1"); a("v_add_u32 v47, s18, v47")
    labE = "K2_EVEN"; labX = "K2_EXPAND"
    a("s_cmp_eq_u32 s26, 0")
    a(f"s_cbranch_scc1 {labE}")
    for mt in range(3): a(f"ds_write_b128 v47, v[{KA+4*mt}:{KA+4*mt+3}] offset:{16*mt}")
    a("s_waitcnt lgkmcnt(0)")
    a("ds_write_b32 v45, v46")
    def spin(vaddr, off, lab):
        a.label(lab)
        a(f"ds_read_b32 v48, v{vaddr} offset:{off}")
        a("s_waitcnt lgkmcnt(0)")
        a("v_readfirstlane_b32 s28, v48")
        a("s_cmp_eq_u32 s28, 0")
        a(f"s_cbranch_scc1 {lab}")
    spin(45, 8, "K2_SP2")
    a(f"s_branch {labX}")
    a.label(labE)
    a.barrier_hazard()
    spin(45, 0, "K2_SP1")
    for mt in range(3): a(f"ds_read_b128 v[{64+4*mt}:{64+4*mt+3}], v47 offset:{16*mt}")
    a("v_lshrrev_b32 v48, 1, v4"); a("v_lshlrev_b32 v48, 7, v48")
    a("v_and_b32 v49, 1, v4"); a("v_lshl_add_u32 v48, v49, 2, v48"); a("v_lshl_add_u32 v48, v3, 3, v48")
    a("v_lshl_add_u32 v48, v48, 1, s17")
    a("v_lshlrev_b32 v49, 6, v4"); a("v_add_u32 v49, 256, v49")
    a("v_cmp_gt_u32 vcc, 2, v4")
    a("v_lshlrev_b32 v50, 2, v3"); a("v_lshlrev_b32 v51, 1, v3")
    a("v_cndmask_b32 v50, v51, v50, vcc")
    a("v_add_u32 v49, v49, v50"); a("v_lshl_add_u32 v49, v49, 1, s17")
    a("v_mov_b32 v50, 64"); a("v_mov_b32 v51, 4"); a("v_cndmask_b32 v50, v50, v51, vcc"); a("v_add_u32 v50, v49, v50")
    a("v_lshlrev_b32 v51, 6, v4"); a("v_add_u32 v51, v51, v3"); a("v_add_u32 v51, 512, v51")
    a("v_mov_b32 v52, 704"); a("v_cndmask_b32 v51, v52, v51, vcc")
    a("v_cmp_eq_u32 vcc, 32, v1"); a("v_mov_b32 v52, 640"); a("v_cndmask_b32 v51, v51, v52, vcc")
    a("v_lshl_add_u32 v51, v51, 1, s17")
    a("s_waitcnt lgkmcnt(0)")
    for i in range(12): a(f"v_add_f32 v{KA+i}, v{KA+i}, v{64+i}")
    for i in range(6): a(f"v_cvt_pk_bf16_f32 v{76+i}, v{KA+2*i}, v{KA+2*i+1}")
    a("ds_write_b64 v48, v[76:77]")
    a("ds_write_b32 v49, v78"); a("ds_write_b32 v50, v79")
    a("ds_write_b16 v51, v80"); a("ds_write_b16_d16_hi v51, v80 offset:32")
    a("ds_write_b16 v51, v81 offset:64"); a("ds_write_b16_d16_hi v51, v81 offset:96")
    a("v_mov_b32 v52, 0"); a("v_mov_b32 v53, s17"); a("ds_write_b16 v53, v52 offset:1282")
    a("s_waitcnt lgkmcnt(0)")
    a("ds_write_b32 v45, v46 offset:8")
    a.label(labX)
    a.barrier_hazard()
    DD = 88
    for e in range(17):
        a(f"ds_read_u16 v{DD+e}, v{EA+e}")
    a("s_lshl_b32 s28, s26, 11"); a("s_add_u32 s28, s28, s18")
    a("v_lshl_add_u32 v48, v1, 5, s28")
    a("v_mov_b32 v52, 0")
    a("v_and_b32 v49, 15, v1"); a("v_lshl_add_u32 v49, v49, 2, s18")
    a("s_waitcnt lgkmcnt(0)")
    for i in range(8): a(f"v_lshl_or_b32 v{64+i}, v{DD+2*i+1}, 16, v{DD+2*i}")
    for i in range(8): a(f"v_lshl_or_b32 v{76+i}, v{DD+2*i+2}, 16, v{DD+2*i+1}")
    a(f"ds_write_b128 v48, v[64:67] offset:{R0_OFF}"); a(f"ds_write_b128 v48, v[68:71] offset:{R0_OFF+16}")
    a(f"ds_write_b128 v48, v[76:79] offset:{R1_OFF}"); a(f"ds_write_b128 v48, v[80:83] offset:{R1_OFF+16}")
    a(f"ds_write_b32 v49, v52 offset:{R0_OFF+4096}"); a(f"ds_write_b32 v49, v52 offset:{R1_OFF+4096}")
    a("s_waitcnt lgkmcnt(0)")
    a(f"v_mov_b32 v48, {L_CNT+16}")
    a("s_lshl_b32 s28, s24, 2"); a("v_add_u32 v49, s28, v48")
    a("s_xor_b32 s28, s28, 4"); a("v_add_u32 v50, s28, v48")
    a("ds_write_b32 v49, v46")
    spin(50, 0, "K2_SP3")
    if OPT.get("dumpK"):
        a("s_lshl_b32 s28, s26, 11"); a("s_add_u32 s28, s28, s18")
        a("v_lshl_add_u32 v48, v1, 5, s28")
        a(f"ds_read_b128 v[64:67], v48 offset:{R0_OFF}"); a(f"ds_read_b128 v[68:71], v48 offset:{R0_OFF+16}")
        a(f"ds_read_b128 v[72:75], v48 offset:{R1_OFF}"); a(f"ds_read_b128 v[76:79], v48 offset:{R1_OFF+16}")
        a("s_waitcnt lgkmcnt(0)")
        a("v_lshlrev_b32 v48, 5, v1")
        a("s_lshl_b32 s28, s27, 13"); a("s_lshl_b32 s29, s26, 11"); a("s_add_u32 s28, s28, s29"); a(f"s_add_u32 s28, s28, {0x1000000}")
        a("s_mov_b32 s22, 0x2000000")
        a("buffer_store_dwordx4 v[64:67], v48, s[20:23], s28 offen"); a("buffer_store_dwordx4 v[68:71], v48, s[20:23], s28 offen offset:16")
        a("s_add_u32 s28, s28, 4096")
        a("buffer_store_dwordx4 v[72:75], v48, s[20:23], s28 offen"); a("buffer_store_dwordx4 v[76:79], v48, s[20:23], s28 offen offset:16")
        a("s_waitcnt vmcnt(0)")
    stamp(a, 2)
    a("v_lshlrev_b32 v48, 3, v4"); a("v_sub_u32 v48, v48, v3"); a("v_add_u32 v48, 2047, v48"); a("v_and_b32 v48, -2, v48"); a("v_lshlrev_b32 v48, 1, v48")
    a("v_and_b32 v49, 1, v3"); a("v_xor_b32 v49, 1, v49"); a("v_mul_u32_u24 v49, 4160, v49")
    a("v_add_u32 v48, v48, v49")
    a(f"s_add_u32 s28, s18, {R0_OFF}"); a("s_lshl_b32 s29, s26, 5"); a("s_sub_u32 s28, s28, s29")
    a("v_add_u32 v48, s28, v48")
    BZ = 52
    for z in range(4): a(f"v_subrev_u32 v{BZ+z}, {32*(32*z+30)}, v48")
    FRG = 64
    ACC = 112
    for i in range(16): a(f"v_mov_b32 v{ACC+i}, 0")
    def fr(q): return FRG + 4*(q % 12)
    def fread(q):
        z = q >> 4; o = 8*(32*z + 30 - 2*q); b = fr(q)
        a(f"ds_read2_b32 v[{b}:{b+1}], v{BZ+z} offset0:{o} offset1:{o+1}")
        a(f"ds_read2_b32 v[{b+2}:{b+3}], v{BZ+z} offset0:{o+2} offset1:{o+3}")
    for q in range(4): fread(q)
    a("s_waitcnt vmcnt(0)")
    for dl in range(16):
        a("s_waitcnt lgkmcnt(0)")
        if dl < 15:
            for q in range(4*(dl+1), 4*(dl+1)+4): fread(q)
        for h in (3, 2, 1, 0):
            for j in range(4):
                m = j - h
                q = 4*dl + m
                if q < 0: continue
                b = fr(q)
                a(f"v_mfma_f32_16x16x32_bf16 v[{ACC+4*j}:{ACC+4*j+3}], v[{b}:{b+3}], v[{UB+4*h}:{UB+4*h+3}], v[{ACC+4*j}:{ACC+4*j+3}]")
            if dl < 15:
                for i in range(4):
                    a(f"v_mov_b32_dpp v{UB+4*h+i}, v{UB+4*h+i} row_shr:1 row_mask:0xf bank_mask:0xf bound_ctrl:0")
    stamp(a, 3)
    a(f"s_lshl_b32 s28, s27, 12"); a(f"s_add_u32 s29, s28, {G.WS_ST}")
    for j in range(4):
        y = ACC + 4*j; t = 64 + 8*j
        a(f"v_lshlrev_b32 v{t}, 16, v{UD+2*j}"); a(f"v_and_b32 v{t+1}, 0xffff0000, v{UD+2*j}")
        a(f"v_lshlrev_b32 v{t+2}, 16, v{UD+2*j+1}"); a(f"v_and_b32 v{t+3}, 0xffff0000, v{UD+2*j+1}")
        for r in range(4): a(f"v_mul_f32 v{t+r}, s31, v{t+r}")
        a(f"v_cvt_pk_bf16_f32 v{t+4}, v{t}, v{t+1}"); a(f"v_cvt_pk_bf16_f32 v{t+5}, v{t+2}, v{t+3}")
        a(f"v_cvt_pk_bf16_f32 v{t+6}, v{y}, v{y+1}"); a(f"v_cvt_pk_bf16_f32 v{t+7}, v{y+2}, v{y+3}")
        a(f"v_lshlrev_b32 v{t}, 16, v{t+4}"); a(f"v_and_b32 v{t+1}, 0xffff0000, v{t+4}")
        a(f"v_lshlrev_b32 v{t+2}, 16, v{t+5}"); a(f"v_and_b32 v{t+3}, 0xffff0000, v{t+5}")
        a(f"v_lshlrev_b32 v{y}, 16, v{t+6}"); a(f"v_and_b32 v{y+1}, 0xffff0000, v{t+6}")
        a(f"v_lshlrev_b32 v{y+2}, 16, v{t+7}"); a(f"v_and_b32 v{y+3}, 0xffff0000, v{t+7}")
        for r in range(4): a(f"v_add_f32 v{y+r}, v{y+r}, v{t+r}")
        a(f"v_cvt_pk_bf16_f32 v{t+4}, v{y}, v{y+1}"); a(f"v_cvt_pk_bf16_f32 v{t+5}, v{y+2}, v{y+3}")
        a(f"buffer_store_dwordx2 v[{t+4}:{t+5}], v7, s[20:23], s29 offen offset:{64*j} sc1")
    a("s_waitcnt vmcnt(0)")
    a(f"v_mov_b32 v48, {L_CNT+32}")
    a("s_mov_b64 exec, 1")
    a("ds_add_rtn_u32 v49, v48, v46")
    a("s_waitcnt lgkmcnt(0)")
    a("v_readfirstlane_b32 s28, v49")
    a("s_mov_b64 exec, -1")
    labn = "K2_NOPUB"
    a("s_cmp_lg_u32 s28, 3"); a(f"s_cbranch_scc1 {labn}")
    a.skip_begin()
    a("s_lshr_b32 s28, s2, 5"); a("s_lshl_b32 s28, s28, 7"); a("s_and_b32 s29, s2, 31"); a("s_lshl_b32 s29, s29, 2")
    a("s_add_u32 s28, s28, s29"); a(f"s_add_u32 s28, s28, {G.WS_FLAG}")
    a("v_mov_b32 v48, 0")
    a("s_mov_b64 exec, 1")
    a("buffer_store_dword v46, v48, s[20:23], s28 offen sc1")
    a("s_mov_b64 exec, -1")
    a.skip_end()
    a.label(labn)
    stamp(a, 4)
    a("v_and_b32 v48, 31, v1"); a("v_lshlrev_b32 v48, 2, v48")
    a("s_lshl_b32 s28, s3, 7"); a(f"s_add_u32 s28, s28, {G.WS_FLAG}")
    a.label("K2_POLL")
    a("buffer_load_dword v49, v48, s[20:23], s28 offen sc1")
    a("s_waitcnt vmcnt(0)")
    a("v_cmp_ne_u32 vcc, 1, v49")
    a("s_nop 4")
    a("s_cbranch_vccz K2_POLLED")
    a("s_sleep 4")
    a("s_branch K2_POLL")
    a.label("K2_POLLED")
    a("v_lshrrev_b32 v48, 3, v1"); a("v_and_b32 v49, 7, v1")
    a("v_lshlrev_b32 v50, 12, v48"); a("v_lshl_add_u32 v50, v49, 4, v50")
    a("s_lshl_b32 s28, s3, 18"); a("s_lshl_b32 s29, s24, 16"); a("s_add_u32 s28, s28, s29")
    a("s_lshl_b32 s29, s39, 7"); a("s_add_u32 s28, s28, s29"); a(f"s_add_u32 s28, s28, {G.WS_ST}")
    a("s_add_u32 s29, s28, 32768")
    a("buffer_load_dwordx4 v[64:67], v50, s[20:23], s28 offen sc1")
    a("buffer_load_dwordx4 v[68:71], v50, s[20:23], s29 offen sc1")
    a(f"v_mul_u32_u24 v51, {STL_PITCH}, v48"); a("v_lshl_add_u32 v51, v49, 4, v51")
    a(f"s_mul_i32 s28, s24, {16*STL_PITCH}"); a(f"s_add_u32 s28, s28, {L_STL}"); a("v_add_u32 v51, s28, v51")
    a("s_waitcnt vmcnt(0)")
    a("ds_write_b128 v51, v[64:67]"); a(f"ds_write_b128 v51, v[68:71] offset:{8*STL_PITCH}")
    a("s_waitcnt lgkmcnt(0)")
    stamp(a, 5)
    a.label("K2_FINAL")
    a.barrier_hazard()
    a("s_barrier")
    a("v_lshrrev_b32 v2, 3, v1"); a("s_lshl_b32 s28, s36, 3"); a("v_add_u32 v2, s28, v2")
    a("v_and_b32 v3, 7, v1")
    a(f"v_mul_u32_u24 v4, {P_PITCH}, v2"); a("v_lshl_add_u32 v4, v3, 5, v4"); a(f"v_add_u32 v4, {L_P}, v4")
    for w in range(4):
        a(f"ds_read_b128 v[{16+8*w}:{19+8*w}], v4 offset:{w*64*P_PITCH}")
        a(f"ds_read_b128 v[{20+8*w}:{23+8*w}], v4 offset:{w*64*P_PITCH+16}")
    a(f"v_mul_u32_u24 v6, {8*STL_PITCH}, v3"); a("v_lshl_add_u32 v6, v2, 1, v6"); a(f"v_add_u32 v6, {L_STL}, v6")
    for e in range(8):
        a(f"ds_read_u16 v{48+e}, v6 offset:{e*STL_PITCH}")
    a("s_waitcnt lgkmcnt(0)")
    for e in range(8): a(f"v_add_f32 v{16+e}, v{16+e}, v{24+e}")
    for e in range(8): a(f"v_add_f32 v{32+e}, v{32+e}, v{40+e}")
    for e in range(8): a(f"v_add_f32 v{16+e}, v{16+e}, v{32+e}")
    for d in range(4): a(f"v_cvt_pk_bf16_f32 v{24+d}, v{16+2*d}, v{17+2*d}")
    for d in range(4):
        a(f"v_lshlrev_b32 v{16+2*d}, 16, v{24+d}"); a(f"v_and_b32 v{17+2*d}, 0xffff0000, v{24+d}")
    for e in range(8): a(f"v_mul_f32 v{24+e}, {f2u(-1.4426950408889634):#x}, v{16+e}")
    for e in range(8): a(f"v_exp_f32 v{24+e}, v{24+e}")
    for e in range(8): a(f"v_add_f32 v{24+e}, 1.0, v{24+e}")
    for e in range(8): a(f"v_rcp_f32 v{24+e}, v{24+e}")
    for e in range(8): a(f"v_mul_f32 v{16+e}, v{16+e}, v{24+e}")
    for d in range(4): a(f"v_cvt_pk_bf16_f32 v{24+d}, v{16+2*d}, v{17+2*d}")
    for d in range(4):
        a(f"v_lshlrev_b32 v{16+2*d}, 16, v{24+d}"); a(f"v_and_b32 v{17+2*d}, 0xffff0000, v{24+d}")
        a(f"v_lshlrev_b32 v{32+2*d}, 16, v{48+2*d}"); a(f"v_lshlrev_b32 v{33+2*d}, 16, v{49+2*d}")
    for e in range(8): a(f"v_mul_f32 v{16+e}, v{16+e}, v{32+e}")
    for d in range(4): a(f"v_cvt_pk_bf16_f32 v{24+d}, v{16+2*d}, v{17+2*d}")
    a("s_waitcnt vmcnt(0)")
    for d in range(4):
        a(f"v_lshlrev_b32 v{16+2*d}, 16, v{24+d}"); a(f"v_and_b32 v{17+2*d}, 0xffff0000, v{24+d}")
        a(f"v_lshlrev_b32 v{32+2*d}, 16, v{8+d}"); a(f"v_and_b32 v{33+2*d}, 0xffff0000, v{8+d}")
    for e in range(8): a(f"v_add_f32 v{16+e}, v{16+e}, v{32+e}")
    for d in range(4): a(f"v_cvt_pk_bf16_f32 v{24+d}, v{16+2*d}, v{17+2*d}")
    a("buffer_store_dwordx4 v[24:27], v5, s[12:15], s34 offen")
    stamp(a, 6)
    stamp_store(a, 7, 1)
    a.label("K2_END")
    a("s_endpgm")
    return a, LDS2
```

```python
import sys, os
sys.path.insert(0, os.path.dirname(os.path.abspath(__file__)))
import gen, gen2
out = sys.argv[1] if len(sys.argv) > 1 else "k.s"
for arg in sys.argv[2:]:
    k, v = arg.split("=")
    gen.OPT[k] = int(v)
k1, lds1 = gen.gen_k1()
k2, lds2 = gen2.gen_k2()
gen.build([("k1_kernel", k1, 256, 512, lds1), ("k2_kernel", k2, 256, 512, lds2)], out)
print("written", out, "nops:", k1.total_nops, k2.total_nops, "lds", lds1, lds2, "bytes", os.path.getsize(out))
```

```python
import sys, os
sys.path.insert(0, os.path.dirname(os.path.abspath(__file__)))
from asmlib import Asm

WS_HF   = 0x0000000
WS_WDF  = 0x0700000
WS_UT   = 0x08C0000
WS_ST   = 0x0AC0000
WS_FLAG = 0x0CC0000
WS_STATS = 0x0CC1000
WS_CS   = 0x0CC8000
WS_END  = 0x0E00000

LOG2E = 0x3fb8aa3b
def f2u(x):
    import struct
    return struct.unpack("<I", struct.pack("<f", x))[0]

OPT = dict(ldW=1, ldX=1, stats_in_loop=True, cs_in_loop=True, stamp=False)

def srd(a, s, lo, hi, nbytes):
    a(f"s_mov_b32 s{s}, s{lo}")
    a(f"s_mov_b32 s{s+1}, s{hi}")
    a(f"s_mov_b32 s{s+2}, {nbytes:#x}")
    a(f"s_mov_b32 s{s+3}, 0x00020000")

STAMP_BASE = 60
WS_STAMP = 0x0D00000
def stamp(a, i):
    if OPT["stamp"]:
        a("s_memtime s[76:77]")
        if i == 0: a("s_memrealtime s[98:99]")
        a("s_waitcnt lgkmcnt(0)")
        a(f"s_mov_b32 s{STAMP_BASE+i}, s76")
def stamp_store(a, n, kidx, srdws=20, wave="s36"):
    if not OPT["stamp"]: return
    a("s_memrealtime s[76:77]")
    a("s_waitcnt vmcnt(0) lgkmcnt(0)")
    a(f"s_lshl_b32 s78, s2, 3"); a(f"s_add_u32 s78, s78, {wave}"); a("s_lshl_b32 s78, s78, 6")
    a(f"s_add_u32 s78, s78, {WS_STAMP + kidx*0x20000}")
    a("v_mov_b32 v1, 0")
    for i in range(n):
        a(f"v_mov_b32 v2, s{STAMP_BASE+i}")
        a(f"buffer_store_dword v2, v1, s[{srdws}:{srdws+3}], s78 offen offset:{4*i}")
        a("s_nop 1")
    a("v_mov_b32 v2, s76")
    a(f"buffer_store_dword v2, v1, s[{srdws}:{srdws+3}], s78 offen offset:60")
    a("s_nop 1")
    a("v_mov_b32 v2, s98")
    a(f"buffer_store_dword v2, v1, s[{srdws}:{srdws+3}], s78 offen offset:56")
    a("s_waitcnt vmcnt(0)")

def bf16r(a, dst, src, tmp=None):
    a(f"v_cvt_pk_bf16_f32 v{dst}, v{src}, v{src}")
    a(f"v_lshlrev_b32 v{dst}, 16, v{dst}")

def gen_k1():
    a = Asm()
    K1_CSP = 131072
    K1_CSF = K1_CSP + 4096
    a("s_cmp_ge_u32 s2, 256")
    a("s_cbranch_scc1 K1_END")
    stamp(a, 0)
    a("s_load_dwordx2 s[4:5], s[0:1], 0")
    a("s_load_dwordx4 s[28:31], s[0:1], 80")
    a("s_load_dwordx2 s[6:7], s[0:1], 96")
    a("s_load_dwordx2 s[32:33], s[0:1], 120")
    a("v_lshrrev_b32 v1, 6, v0")
    a("v_readfirstlane_b32 s36, v1")
    a("v_and_b32 v1, 63, v0")
    a("s_and_b32 s37, s2, 7")
    a("s_lshr_b32 s38, s2, 3")
    a("s_waitcnt lgkmcnt(0)")
    srd(a, 8, 4, 5, 2048*512*2)
    srd(a, 12, 28, 29, 512*1792*2)
    srd(a, 16, 30, 31, 512*1792*2)
    srd(a, 20, 32, 33, WS_END)
    srd(a, 24, 6, 7, 1792*512*2)
    a("s_cmp_ge_u32 s38, 28")
    a("s_cbranch_scc1 K1_AUX")
    a("s_mul_i32 s41, s38, 37")
    a("s_lshr_b32 s41, s41, 8")
    a("s_mul_i32 s42, s41, 7")
    a("s_sub_u32 s42, s38, s42")
    a("s_lshr_b32 s39, s37, 2")
    a("s_lshl_b32 s39, s39, 2")
    a("s_add_u32 s39, s39, s41")
    a("s_and_b32 s40, s37, 3")
    a("s_mul_i32 s40, s40, 7")
    a("s_add_u32 s40, s40, s42")
    a("v_and_b32 v2, 15, v1")
    a("v_lshlrev_b32 v2, 10, v2")
    a("v_lshrrev_b32 v16, 4, v1")
    a("v_lshl_add_u32 v2, v16, 4, v2")
    a("v_lshrrev_b32 v3, 3, v1")
    a("v_mul_u32_u24 v3, 3584, v3")
    a("v_and_b32 v17, 1, v16")
    a("v_lshlrev_b32 v17, 2, v17")
    a("v_and_b32 v18, 7, v1")
    a("v_xor_b32 v17, v17, v18")
    a("v_lshl_add_u32 v3, v17, 4, v3")
    a("s_lshl_b32 s43, s39, 18")
    a("s_lshl_b32 s41, s36, 15")
    a("s_add_u32 s43, s43, s41")
    a("s_add_u32 s44, s43, 16384")
    a("s_mul_i32 s42, s36, 28672")
    a("s_lshl_b32 s41, s40, 7")
    a("s_add_u32 s42, s42, s41")
    a("s_lshl_b32 s45, s36, 10")
    XB = 128
    a("v_lshlrev_b32 v27, 4, v1")
    for j in range(8):
        a(f"s_add_u32 s41, s42, {j*229376}")
        a(f"s_add_u32 m0, s45, {j*8192}")
        a("s_nop 0")
        if OPT["ldW"]: a("buffer_load_dwordx4 v3, s[12:15], s41 offen lds")
        a(f"s_add_u32 m0, s45, {j*8192 + 65536}")
        a("s_nop 0")
        if OPT["ldW"]: a("buffer_load_dwordx4 v3, s[16:19], s41 offen lds")
        for c in (2*j, 2*j+1):
            if OPT["ldX"] == 1:
                a(f"buffer_load_dwordx4 v[{XB+8*c}:{XB+8*c+3}], v2, s[8:11], s43 offen offset:{64*c}")
                a(f"buffer_load_dwordx4 v[{XB+8*c+4}:{XB+8*c+7}], v2, s[8:11], s44 offen offset:{64*c}")
            elif OPT["ldX"] == 2:
                a(f"buffer_load_dwordx4 v[{XB+8*c}:{XB+8*c+3}], v27, s[8:11], s43 offen offset:{(2*c % 4)*1024}")
                a(f"buffer_load_dwordx4 v[{XB+8*c+4}:{XB+8*c+7}], v27, s[8:11], s43 offen offset:{((2*c+1) % 4)*1024}")
                if c % 2 == 1: a("v_add_u32 v27, 4096, v27")
    a("v_lshrrev_b32 v16, 5, v1")
    a("v_bfe_u32 v17, v1, 4, 1")
    a("v_bfe_u32 v18, v1, 2, 2")
    a("v_bfe_u32 v19, v1, 1, 1")
    a("v_and_b32 v20, 1, v1")
    a("v_lshl_add_u32 v21, v16, 4, v18")
    a("v_lshlrev_b32 v21, 7, v21")
    a("v_lshl_add_u32 v22, v17, 1, v19")
    a("v_lshl_add_u32 v21, v22, 4, v21")
    a("v_lshl_add_u32 v21, v20, 3, v21")
    a("v_lshrrev_b32 v23, 1, v18")
    a("v_lshl_add_u32 v4, v23, 6, v21")
    a("v_xor_b32 v23, 1, v23")
    a("v_lshl_add_u32 v5, v23, 6, v21")
    a("v_add_u32 v6, 65536, v4")
    a("v_add_u32 v7, 65536, v5")
    for r in range(8, 16): a(f"v_mov_b32 v{r}, 0")
    a("s_mov_b32 s46, 0x3f803f80")
    FB = 32
    ACC = 64
    def fragreg(buf, T): return FB + 16*buf + 4*T
    def reads(s):
        c, sB = s >> 1, s & 1
        L = []
        for T in range(4):
            base = fragreg(s & 1, T)
            for rd in range(2):
                off = (32*c + 8*sB + 4*rd) * 128
                L.append(f"ds_read_b64_tr_b16 v[{base+2*rd}:{base+2*rd+1}], v{4+T} offset:{off}")
        return L
    def stage_wait(j):
        per = (2 if OPT["ldW"] else 0) + (4 if OPT["ldX"] else 0)
        a(f"s_waitcnt vmcnt({per*(7-j)})")
        a("s_barrier")
        for c in (2*j, 2*j+1):
            for i in range(4):
                a(f"v_permlane16_swap_b32 v{XB+8*c+i}, v{XB+8*c+4+i}")
    stamp(a, 1)
    stage_wait(0)
    stamp(a, 2)
    for r in reads(0): a(r)
    for s in range(32):
        c, sB = s >> 1, s & 1
        xf = XB + 8*c + 4*sB
        nxt = reads(s+1) if s < 31 else []
        if s < 31 and (s+1) % 4 == 0:
            stage_wait((s+1)//4)
        def mf(T):
            cs = "0" if s == 0 else f"v[{ACC+16*T}:{ACC+16*T+15}]"
            b = fragreg(s & 1, T)
            a(f"v_mfma_f32_32x32x16_bf16 v[{ACC+16*T}:{ACC+16*T+15}], v[{b}:{b+3}], v[{xf}:{xf+3}], {cs}")
        if nxt:
            a("s_waitcnt lgkmcnt(6)"); mf(0)
            for r in nxt[0:4]: a(r)
            a("s_waitcnt lgkmcnt(8)"); mf(1)
            for r in nxt[4:8]: a(r)
            if OPT["stats_in_loop"]:
                for i in range(4):
                    a(f"v_dot2c_f32_bf16 v{8+(i&1)}, s46, v{xf+i}")
            a("s_waitcnt lgkmcnt(10)"); mf(2)
            if OPT["stats_in_loop"]:
                for i in range(4):
                    a(f"v_dot2c_f32_bf16 v{10+(i&1)}, v{xf+i}, v{xf+i}")
            a("s_waitcnt lgkmcnt(8)"); mf(3)
        else:
            a("s_waitcnt lgkmcnt(0)")
            mf(0); mf(1)
            if OPT["stats_in_loop"]:
                for i in range(4):
                    a(f"v_dot2c_f32_bf16 v{8+(i&1)}, s46, v{xf+i}")
            mf(2)
            if OPT["stats_in_loop"]:
                for i in range(4):
                    a(f"v_dot2c_f32_bf16 v{10+(i&1)}, v{xf+i}, v{xf+i}")
            mf(3)
        if OPT["cs_in_loop"]:
            lab = a.newlabel("K1_CS")
            a(f"s_cmp_eq_u32 s36, {s & 7}")
            a(f"s_cbranch_scc0 {lab}")
            a.skip_begin()
            for i in range(4):
                for T in range(4):
                    a(f"v_dot2c_f32_bf16 v{12+T}, s46, v{fragreg(s&1,T)+i}")
            a.skip_end()
            a.label(lab)
    stamp(a, 3)
    a("v_add_f32 v8, v8, v9")
    a("v_add_f32 v10, v10, v11")
    a("v_mov_b32 v16, v8")
    a("v_mov_b32 v17, v10")
    for T in range(4): a(f"v_mov_b32 v{20+T}, v{12+T}")
    a("v_permlane32_swap_b32 v8, v16")
    a("v_permlane32_swap_b32 v10, v17")
    for T in range(4): a(f"v_permlane32_swap_b32 v{12+T}, v{20+T}")
    a("v_add_f32 v8, v8, v16")
    a("v_add_f32 v10, v10, v17")
    for T in range(4): a(f"v_add_f32 v{12+T}, v{12+T}, v{20+T}")
    a("v_and_b32 v24, 31, v1")
    a("v_lshlrev_b32 v24, 2, v24")
    a("s_lshl_b32 s41, s36, 9")
    a(f"s_add_u32 s41, s41, {K1_CSP}")
    a("v_add_u32 v24, s41, v24")
    for T in range(4): a(f"ds_write_b32 v24, v{12+T} offset:{T*128}")
    a(f"v_mul_f32 v8, {f2u(1/512):#x}, v8")
    a(f"v_mul_f32 v10, {f2u(1/512):#x}, v10")
    a("v_fma_f32 v10, -v8, v8, v10")
    a("v_max_f32 v10, 0, v10")
    bf16r(a, 8, 8)
    bf16r(a, 10, 10)
    a(f"v_add_f32 v10, {f2u(1e-5):#x}, v10")
    bf16r(a, 10, 10)
    a("v_sqrt_f32 v10, v10")
    bf16r(a, 10, 10)
    a("v_rcp_f32 v10, v10")
    a("v_sub_f32 v18, 0, v8")
    a("v_sub_f32 v19, 0, v8")
    a(f"v_mul_f32 v20, {f2u(-1.4426950408889634):#x}, v10")
    a("v_mov_b32 v21, v20")
    a("v_mul_f32 v22, v10, v10")
    a("v_mov_b32 v23, v22")
    a("s_waitcnt lgkmcnt(0)")
    a("s_barrier")
    lab = a.newlabel("K1_RED")
    a("s_cmp_ge_u32 s36, 2")
    a(f"s_cbranch_scc1 {lab}")
    a.skip_begin()
    a("v_lshlrev_b32 v24, 2, v0")
    a(f"v_add_u32 v24, {K1_CSP}, v24")
    for w in range(8): a(f"ds_read_b32 v{26+w}, v24 offset:{w*512}")
    a("s_waitcnt lgkmcnt(0)")
    a("v_add_f32 v26, v26, v27"); a("v_add_f32 v28, v28, v29"); a("v_add_f32 v30, v30, v31"); a("v_add_f32 v32, v32, v33")
    a("v_add_f32 v26, v26, v28"); a("v_add_f32 v30, v30, v32"); a("v_add_f32 v26, v26, v30")
    a("ds_write_b32 v24, v26 offset:4096")
    a("s_waitcnt lgkmcnt(0)")
    a.skip_end()
    a.label(lab)
    a("s_barrier")
    a("v_lshrrev_b32 v25, 5, v1")
    a("v_lshlrev_b32 v25, 4, v25")
    a(f"v_add_u32 v25, {K1_CSF}, v25")
    CS = 128
    for T in range(4):
        for q in range(4):
            a(f"ds_read_b128 v[{CS+16*T+4*q}:{CS+16*T+4*q+3}], v25 offset:{T*128+q*32}")
    stamp(a, 4)
    a("s_mov_b32 s46, 1.0"); a("s_mov_b32 s47, 1.0")
    a("s_lshl_b32 s41, s39, 3"); a("s_add_u32 s41, s41, s36"); a("s_mul_i32 s41, s41, 112")
    a("s_lshl_b32 s48, s40, 2"); a("s_add_u32 s41, s41, s48"); a("s_lshl_b32 s48, s41, 10")
    if WS_HF: a(f"s_add_u32 s48, s48, {WS_HF}")
    a("v_lshlrev_b32 v26, 4, v1")
    a("s_waitcnt lgkmcnt(0)")
    HR = 192
    TM = 208
    for P in range(2):
        for half in range(2):
            prs = [8*half + 2*k for k in range(4)]
            G = lambda i: f"v[{ACC+16*P+i}:{ACC+16*P+i+1}]"
            U = lambda i: f"v[{ACC+32+16*P+i}:{ACC+32+16*P+i+1}]"
            CG = lambda i: f"v[{CS+16*P+i}:{CS+16*P+i+1}]"
            CU = lambda i: f"v[{CS+32+16*P+i}:{CS+32+16*P+i+1}]"
            Tm = lambda k: TM + 2*k
            for i in prs: a(f"v_pk_fma_f32 {G(i)}, {CG(i)}, v[18:19], {G(i)}")
            for i in prs: a(f"v_pk_fma_f32 {U(i)}, {CU(i)}, v[18:19], {U(i)}")
            for k, i in enumerate(prs): a(f"v_pk_mul_f32 v[{Tm(k)}:{Tm(k)+1}], {G(i)}, v[20:21]")
            for k, i in enumerate(prs):
                a(f"v_exp_f32 v{Tm(k)}, v{Tm(k)}"); a(f"v_exp_f32 v{Tm(k)+1}, v{Tm(k)+1}")
            for k, i in enumerate(prs): a(f"v_pk_mul_f32 {G(i)}, {G(i)}, {U(i)}")
            for k, i in enumerate(prs): a(f"v_pk_add_f32 v[{Tm(k)}:{Tm(k)+1}], v[{Tm(k)}:{Tm(k)+1}], s[46:47]")
            for k, i in enumerate(prs): a(f"v_pk_mul_f32 {G(i)}, {G(i)}, v[22:23]")
            for k, i in enumerate(prs):
                a(f"v_rcp_f32 v{Tm(k)}, v{Tm(k)}"); a(f"v_rcp_f32 v{Tm(k)+1}, v{Tm(k)+1}")
            for k, i in enumerate(prs): a(f"v_pk_mul_f32 {G(i)}, {G(i)}, v[{Tm(k)}:{Tm(k)+1}]")
            F = 2*P + half
            for k, i in enumerate(prs):
                a(f"v_cvt_pk_bf16_f32 v{HR+4*F+k}, v{ACC+16*P+i}, v{ACC+16*P+i+1}")
            a(f"buffer_store_dwordx4 v[{HR+4*F}:{HR+4*F+3}], v26, s[20:23], s48 offen offset:{F*1024}")
    stamp(a, 5)
    a("s_waitcnt vmcnt(0)")
    stamp(a, 6)
    stamp_store(a, 7, 0)
    a("s_branch K1_END")

    a.label("K1_AUX")
    a("s_sub_u32 s39, s38, 28"); a("s_lshl_b32 s39, s39, 3"); a("s_add_u32 s39, s39, s37")
    a("s_lshl_b32 s41, s39, 16"); a("s_lshl_b32 s42, s36, 13"); a("s_add_u32 s41, s41, s42")
    a("v_lshlrev_b32 v2, 4, v1")
    a("v_add_u32 v3, 4096, v2")
    for i in range(8):
        a(f"buffer_load_dwordx4 v[{32+4*i}:{32+4*i+3}], v{2 if i<4 else 3}, s[8:11], s41 offen offset:{(i&3)*1024}")
    labw = a.newlabel("K1_NOWD")
    a("s_cmp_ge_u32 s39, 28")
    a(f"s_cbranch_scc1 {labw}")
    a.skip_begin()
    for i in range(4):
        a(f"v_xor_b32 v{4+i}, {4*i}, v1")
        a(f"v_lshlrev_b32 v{4+i}, 4, v{4+i}")
    a("s_add_u32 s43, s42, 65536")
    for hf in range(2):
        a(f"s_add_u32 m0, s43, {hf*4096}")
        a(f"s_add_u32 s44, s41, {hf*4096}")
        for i in range(4):
            a(f"buffer_load_dwordx4 v{4+i}, s[24:27], s44 offen offset:{i*1024} lds")
    a.skip_end()
    a.label(labw)
    labf = a.newlabel("K1_NOFL")
    a("s_cmp_lg_u32 s39, 31"); a(f"s_cbranch_scc1 {labf}")
    a("s_cmp_lg_u32 s36, 0"); a(f"s_cbranch_scc1 {labf}")
    a.skip_begin()
    for r in range(8, 12): a(f"v_mov_b32 v{r}, 0")
    a(f"s_mov_b32 s45, {WS_FLAG}")
    a("buffer_store_dwordx4 v[8:11], v2, s[20:23], s45 offen")
    a.skip_end()
    a.label(labf)
    a("s_waitcnt vmcnt(0)")
    X = 64
    for i in range(8):
        for d in range(4):
            a(f"v_lshlrev_b32 v{X+8*i+2*d}, 16, v{32+4*i+d}")
            a(f"v_and_b32 v{X+8*i+2*d+1}, 0xffff0000, v{32+4*i+d}")
    def allreduce(regs, t):
        for mod in ("quad_perm:[1,0,3,2]", "quad_perm:[2,3,0,1]", "row_half_mirror", "row_mirror"):
            for r in regs: a(f"v_add_f32_dpp v{r}, v{r}, v{r} {mod} row_mask:0xf bank_mask:0xf")
        for sw in ("v_permlane16_swap_b32", "v_permlane32_swap_b32"):
            for k, r in enumerate(regs): a(f"v_mov_b32 v{t+k}, v{r}")
            for k, r in enumerate(regs): a(f"{sw} v{r}, v{t+k}")
            for k, r in enumerate(regs): a(f"v_add_f32 v{r}, v{r}, v{t+k}")
    S = 8
    for i in range(8):
        b = X + 8*i
        a(f"v_add_f32 v{S+i}, v{b}, v{b+1}")
    for k in range(2, 8):
        for i in range(8): a(f"v_add_f32 v{S+i}, v{S+i}, v{X+8*i+k}")
    allreduce([S+i for i in range(8)], 16)
    for i in range(8): a(f"v_mul_f32 v{S+i}, {f2u(1/512):#x}, v{S+i}")
    Q = 24
    D = 128
    for i in range(8):
        for k in range(8): a(f"v_sub_f32 v{D+8*i+k}, v{X+8*i+k}, v{S+i}")
    for i in range(8): a(f"v_mul_f32 v{Q+i}, v{D+8*i}, v{D+8*i}")
    for k in range(1, 8):
        for i in range(8): a(f"v_fmac_f32 v{Q+i}, v{D+8*i+k}, v{D+8*i+k}")
    allreduce([Q+i for i in range(8)], 16)
    for i in range(8): a(f"v_mul_f32 v{Q+i}, {f2u(1/512):#x}, v{Q+i}")
    for i in range(8): a(f"v_cvt_pk_bf16_f32 v{S+i}, v{S+i}, v{S+i}")
    for i in range(8): a(f"v_cvt_pk_bf16_f32 v{Q+i}, v{Q+i}, v{Q+i}")
    for i in range(8): a(f"v_lshlrev_b32 v{S+i}, 16, v{S+i}")
    for i in range(8): a(f"v_lshlrev_b32 v{Q+i}, 16, v{Q+i}")
    for i in range(8): a(f"v_add_f32 v{Q+i}, {f2u(1e-5):#x}, v{Q+i}")
    for i in range(8): a(f"v_cvt_pk_bf16_f32 v{Q+i}, v{Q+i}, v{Q+i}")
    for i in range(8): a(f"v_lshlrev_b32 v{Q+i}, 16, v{Q+i}")
    for i in range(8): a(f"v_sqrt_f32 v{Q+i}, v{Q+i}")
    for i in range(8): a(f"v_cvt_pk_bf16_f32 v{Q+i}, v{Q+i}, v{Q+i}")
    for i in range(8): a(f"v_lshlrev_b32 v{Q+i}, 16, v{Q+i}")
    for i in range(8): a(f"v_rcp_f32 v{Q+i}, v{Q+i}")
    for i in range(8):
        for k in range(8): a(f"v_sub_f32 v{D+8*i+k}, v{X+8*i+k}, v{S+i}")
        for d in range(4): a(f"v_cvt_pk_bf16_f32 v{32+4*i+d}, v{D+8*i+2*d}, v{D+8*i+2*d+1}")
        for d in range(4):
            a(f"v_lshlrev_b32 v{D+8*i+2*d}, 16, v{32+4*i+d}")
            a(f"v_and_b32 v{D+8*i+2*d+1}, 0xffff0000, v{32+4*i+d}")
        for k in range(8): a(f"v_mul_f32 v{D+8*i+k}, v{D+8*i+k}, v{Q+i}")
        for d in range(4): a(f"v_cvt_pk_bf16_f32 v{32+4*i+d}, v{D+8*i+2*d}, v{D+8*i+2*d+1}")
    a("s_and_b32 s43, s36, 1"); a("s_lshl_b32 s43, s43, 3")
    for i in range(4):
        a(f"v_xor_b32 v{4+i}, {2*i}, v1")
        a(f"v_xor_b32 v{4+i}, s43, v{4+i}")
        a(f"v_lshlrev_b32 v{4+i}, 4, v{4+i}")
        a(f"v_add_u32 v{4+i}, s42, v{4+i}")
    for i in range(8):
        a(f"ds_write_b128 v{4+(i&3)}, v[{32+4*i}:{32+4*i+3}] offset:{i*1024}")
    a("s_waitcnt lgkmcnt(0)")
    a("s_barrier")
    a("v_lshrrev_b32 v16, 4, v1")
    a("v_bfe_u32 v17, v1, 2, 2")
    a("v_bfe_u32 v18, v1, 1, 1")
    a("v_and_b32 v19, 1, v1")
    a("v_and_b32 v20, 1, v16")
    a("v_lshl_add_u32 v20, v20, 2, v17")
    a("v_xor_b32 v20, s36, v20")
    a("v_lshl_add_u32 v20, v20, 1, v18")
    a("v_lshlrev_b32 v20, 4, v20")
    a("v_lshl_add_u32 v20, v19, 3, v20")
    a("v_lshl_add_u32 v21, v16, 3, v17")
    a("v_lshl_add_u32 v20, v21, 10, v20")
    a("v_and_b32 v22, 15, v1"); a("v_lshlrev_b32 v22, 12, v22"); a("v_lshl_add_u32 v22, v16, 4, v22")
    a("s_lshl_b32 s44, s36, 16"); a("s_lshl_b32 s45, s39, 7"); a("s_add_u32 s44, s44, s45"); a(f"s_add_u32 s44, s44, {WS_UT}")
    for z in range(4):
        for ps in range(2):
            b = 32 + 4*(2*(z&1)+ps) + (16 if z >= 2 else 0)
            for rd in range(2):
                a(f"ds_read_b64_tr_b16 v[{b+2*rd}:{b+2*rd+1}], v20 offset:{256*z + 32768*ps + 4096*rd}")
    a("s_waitcnt lgkmcnt(0)")
    for z in range(4):
        a(f"s_add_u32 s45, s44, {z*524288}")
        for ps in range(2):
            b = 32 + 4*(2*(z&1)+ps) + (16 if z >= 2 else 0)
            a(f"buffer_store_dwordx4 v[{b}:{b+3}], v22, s[20:23], s45 offen offset:{64*ps}")
    a("s_cmp_ge_u32 s39, 28")
    a("s_cbranch_scc1 K1_AUXEND")
    a("v_lshrrev_b32 v16, 5, v1")
    a("v_bfe_u32 v17, v1, 4, 1")
    a("v_bfe_u32 v18, v1, 2, 2")
    a("v_bfe_u32 v19, v1, 1, 1")
    a("v_and_b32 v20, 1, v1")
    a("s_and_b32 s43, s36, 3")
    a("v_xor_b32 v21, s43, v18")
    a("v_lshlrev_b32 v21, 2, v21")
    a("v_lshl_add_u32 v21, v17, 1, v21")
    a("v_add_u32 v21, v21, v19")
    a("v_lshlrev_b32 v21, 4, v21")
    a("v_lshl_add_u32 v21, v20, 3, v21")
    a("v_lshl_add_u32 v22, v16, 2, v18")
    a("v_lshl_add_u32 v21, v22, 10, v21")
    a("s_and_b32 s43, s36, 4"); a("s_lshl_b32 s43, s43, 6"); a("s_add_u32 s43, s43, 65536")
    a("v_add_u32 v21, s43, v21")
    for y in range(2):
        for sp in range(4):
            b = 64 + 4*(4*y+sp)
            for rd in range(2):
                a(f"ds_read_b64_tr_b16 v[{b+2*rd}:{b+2*rd+1}], v21 offset:{sp*16384 + rd*8192 + y*512}")
    a("s_mul_i32 s44, s36, 112"); a("s_lshl_b32 s45, s39, 2"); a("s_add_u32 s44, s44, s45"); a("s_lshl_b32 s44, s44, 10")
    a(f"s_add_u32 s44, s44, {WS_WDF}")
    a("s_waitcnt lgkmcnt(0)")
    for y in range(2):
        if y: a(f"s_add_u32 s44, s44, {8*112*1024}")
        for sp in range(4):
            b = 64 + 4*(4*y+sp)
            a(f"buffer_store_dwordx4 v[{b}:{b+3}], v2, s[20:23], s44 offen offset:{sp*1024}")
    a.label("K1_AUXEND")
    stamp(a, 5)
    a("s_waitcnt vmcnt(0)")
    stamp(a, 6)
    stamp_store(a, 7, 0)
    a.label("K1_END")
    a("s_endpgm")
    return a, K1_CSF + 512

def kernel_text(name, a, vgpr=256, sgpr=96):
    body = a.finalize()
    return f""".globl {name}
.p2align 8
.type {name},@function
{name}:
{body}
"""
def kd_text(name, vgpr=256, sgpr=100, accum=256):
    return f""".amdhsa_kernel {name}
  .amdhsa_next_free_vgpr {vgpr}
  .amdhsa_next_free_sgpr {sgpr}
  .amdhsa_accum_offset {accum}
  .amdhsa_group_segment_fixed_size 0
  .amdhsa_kernarg_size 128
  .amdhsa_user_sgpr_count 2
  .amdhsa_user_sgpr_kernarg_segment_ptr 1
  .amdhsa_system_sgpr_workgroup_id_x 1
.end_amdhsa_kernel
"""

HEADER = open(os.path.join(os.path.dirname(os.path.abspath(__file__)), "..", "cdna_kernels", "recurrent_scan__ssm_conv_s4__swiglu_ffn__prompt.s.ref")).read().split("; Override launch geometry")[0]

def build(kernels, path):
    s = HEADER
    if len(kernels) == 1:
        name, a, grid, block, lds = kernels[0]
        s += f"; @launch grid=({grid},1,1) block=({block},1,1) lds={lds}\n"
    else:
        for name, a, grid, block, lds in kernels:
            s += f"; @launch kernel={name} grid=({grid},1,1) block=({block},1,1) lds={lds}\n"
    s += '.amdgcn_target "amdgcn-amd-amdhsa--gfx950"\n.text\n'
    for name, a, grid, block, lds in kernels:
        s += kernel_text(name, a)
    s += '.section .rodata,"a"\n'
    for name, a, grid, block, lds in kernels:
        s += ".p2align 6\n" + kd_text(name)
    open(path, "w").write(s)
```

```python
from asmlib import Asm
import gen as G
from gen import srd, bf16r, f2u, stamp, stamp_store, OPT

XYSZ = 57*288
L_P   = 4*XYSZ
P_PITCH = 272
L_STL = L_P + 4*64*P_PITCH
STL_PITCH = 144
L_CNT = L_STL + 64*STL_PITCH
L_U = L_CNT + 64
LDS2  = L_U + 8192
SROW_OFF = 4096
EXCH_OFF = 0
R0_OFF = 3072
R1_OFF = R0_OFF + 4160

def cmul(a_list, d, x, y, t):
    i1 = f"v_pk_mul_f32 v[{t}:{t+1}], v[{x}:{x+1}], v[{y}:{y+1}] op_sel:[0,0] op_sel_hi:[0,1]"
    i2 = f"v_pk_fma_f32 v[{d}:{d+1}], v[{x}:{x+1}], v[{y}:{y+1}], v[{t}:{t+1}] op_sel:[1,1,0] op_sel_hi:[1,0,1] neg_lo:[1,0,0]"
    return i1, i2

def gen_k2():
    a = Asm()
    a("s_cmp_ge_u32 s2, 256")
    a("s_cbranch_scc1 K2_END")
    stamp(a, 0)
    a("s_load_dwordx16 s[40:55], s[0:1], 0")
    a("s_load_dwordx2 s[56:57], s[0:1], 64")
    a("s_load_dwordx2 s[58:59], s[0:1], 104")
    a("s_load_dwordx2 s[32:33], s[0:1], 120")
    a("v_lshrrev_b32 v1, 6, v0")
    a("v_readfirstlane_b32 s36, v1")
    a("v_and_b32 v1, 63, v0")
    a("s_and_b32 s37, s2, 7")
    a("s_lshr_b32 s38, s2, 3")
    a("s_lshl_b32 s39, s37, 2"); a("s_lshr_b32 s3, s38, 3"); a("s_add_u32 s39, s39, s3")
    a("s_and_b32 s3, s38, 7")
    a(f"v_mov_b32 v2, {L_CNT}"); a("v_mov_b32 v3, 0")
    a("v_and_b32 v4, 15, v1"); a("v_lshl_add_u32 v2, v4, 2, v2")
    a("ds_write_b32 v2, v3")
    a("s_waitcnt lgkmcnt(0)")
    srd(a, 8, 40, 41, 2048*512*2)
    srd(a, 12, 58, 59, 2048*512*2)
    srd(a, 20, 32, 33, G.WS_END)
    a("v_lshrrev_b32 v5, 3, v1"); a("v_lshlrev_b32 v5, 10, v5")
    a("v_and_b32 v6, 7, v1"); a("v_lshl_add_u32 v5, v6, 4, v5")
    a("s_lshl_b32 s34, s39, 16"); a("s_lshl_b32 s35, s36, 13"); a("s_add_u32 s34, s34, s35")
    a("s_lshl_b32 s35, s3, 7"); a("s_add_u32 s34, s34, s35")
    a("buffer_load_dwordx4 v[8:11], v5, s[8:11], s34 offen")
    a("s_barrier")
    a("s_cmp_ge_u32 s36, 4")
    a("s_cbranch_scc1 K2_CONV")
    DEPTH = 8
    a("v_lshlrev_b32 v2, 4, v1")
    for q in range(7): a(f"v_add_u32 v{12+q}, {q*4096}, v2")
    a("s_mul_i32 s26, s39, 224"); a("s_mul_i32 s27, s36, 28"); a("s_add_u32 s26, s26, s27"); a("s_lshl_b32 s26, s26, 10")
    if G.WS_HF: a(f"s_add_u32 s26, s26, {G.WS_HF}")
    a("s_add_u32 s28, s26, 114688")
    a("s_mul_i32 s29, s3, 224"); a("s_add_u32 s29, s29, s27"); a("s_lshl_b32 s29, s29, 10"); a(f"s_add_u32 s29, s29, {G.WS_WDF}")
    a("s_add_u32 s30, s29, 114688")
    FR = 64; AC = 192
    def loads(s):
        b = FR + (s % DEPTH)*16
        for j, sr in enumerate(["s26","s28","s29","s30"]):
            a(f"buffer_load_dwordx4 v[{b+4*j}:{b+4*j+3}], v{12+s//4}, s[20:23], {sr} offen offset:{(s%4)*1024}")
    for s in range(DEPTH): loads(s)
    stamp(a, 1)
    for s in range(28):
        a(f"s_waitcnt vmcnt({4*min(DEPTH-1, 27-s)})")
        b = FR + (s % DEPTH)*16
        for nt2 in range(2):
            for rt in range(2):
                ac = AC + 16*(2*nt2+rt)
                c = "0" if s == 0 else f"v[{ac}:{ac+15}]"
                a(f"v_mfma_f32_32x32x16_bf16 v[{ac}:{ac+15}], v[{b+8+4*nt2}:{b+11+4*nt2}], v[{b+4*rt}:{b+3+4*rt}], {c}")
        if s + DEPTH < 28: loads(s + DEPTH)
    stamp(a, 2)
    a("v_and_b32 v2, 31, v1"); a(f"v_mul_u32_u24 v2, {P_PITCH}, v2")
    a("v_lshrrev_b32 v3, 5, v1"); a("v_lshl_add_u32 v2, v3, 4, v2")
    a(f"s_mul_i32 s26, s36, {64*P_PITCH}"); a(f"s_add_u32 s26, s26, {L_P}")
    a("v_add_u32 v2, s26, v2")
    for nt2 in range(2):
        for rt in range(2):
            ac = AC + 16*(2*nt2+rt)
            for q in range(4):
                a(f"ds_write_b128 v2, v[{ac+4*q}:{ac+4*q+3}] offset:{rt*32*P_PITCH + (32*nt2+8*q)*4}")
    a("s_waitcnt lgkmcnt(0)")
    stamp(a, 3)
    a("s_branch K2_FINAL")

    a.label("K2_CONV")
    a("s_setprio 2")
    a("s_sub_u32 s24, s36, 4")
    a("s_lshr_b32 s25, s24, 1")
    a("s_and_b32 s26, s24, 1")
    a("s_lshl_b32 s27, s2, 1"); a("s_add_u32 s27, s27, s25")
    a("s_lshl_b32 s28, s27, 8"); a("s_lshl_b32 s29, s26, 7"); a("s_add_u32 s28, s28, s29")
    a("v_lshl_add_u32 v2, v1, 1, s28")
    for i, base in enumerate((42, 44, 46, 48, 50, 52)):
        a(f"global_load_ushort v{12+i}, v2, s[{base}:{base+1}]")
    a("s_lshl_b32 s28, s2, 2")
    a("s_load_dword s30, s[54:55], s28")
    a("s_load_dword s31, s[56:57], s28")
    UB = 200
    a("v_and_b32 v3, 15, v1"); a("v_lshrrev_b32 v4, 4, v1")
    a("v_lshlrev_b32 v7, 4, v1")
    a("s_lshl_b32 s28, s27, 12"); a("s_lshl_b32 s35, s26, 11"); a("s_add_u32 s28, s28, s35"); a(f"s_add_u32 s29, s28, {G.WS_UT}")
    a("s_lshl_b32 s28, s25, 12"); a("s_add_u32 s28, s28, s35"); a(f"s_add_u32 m0, s28, {L_U}")
    a("buffer_load_dwordx4 v7, s[20:23], s29 offen lds")
    a("buffer_load_dwordx4 v7, s[20:23], s29 offen offset:1024 lds")
    a(f"s_mul_i32 s16, s24, {XYSZ}")
    a("s_andn2_b32 s17, s24, 1"); a(f"s_mul_i32 s17, s17, {XYSZ}")
    a(f"s_add_u32 s18, s17, {XYSZ}")
    EA = 224
    a("s_lshl_b32 s28, s26, 10")
    a("v_lshlrev_b32 v6, 4, v1"); a("v_add_u32 v6, s28, v6"); a("v_sub_u32 v6, 2047, v6")
    for e in range(17):
        a(f"v_subrev_u32 v{EA+e}, {e}, v6")
    for e in range(0, 17, 2):
        e2 = min(e+1, 16)
        a(f"v_cvt_f32_i32 v18, v{EA+e}"); a(f"v_cvt_f32_i32 v19, v{EA+e2}")
        a("v_cvt_pk_bf16_f32 v18, v18, v19")
        a("v_lshrrev_b32 v19, 16, v18"); a("v_and_b32 v18, 0xffff, v18")
        a("v_subrev_u32 v18, 17024, v18"); a("v_subrev_u32 v19, 17024, v19")
        a(f"v_cmp_gt_i32 vcc, 128, v{EA+e}")
        a(f"v_cndmask_b32 v{EA+e}, v18, v{EA+e}, vcc")
        if e2 != e:
            a(f"v_cmp_gt_i32 vcc, 128, v{EA+e2}")
            a(f"v_cndmask_b32 v{EA+e2}, v19, v{EA+e2}, vcc")
    a(f"v_cmp_gt_i32 vcc, 0, v{EA+16}")
    a("v_mov_b32 v18, 641")
    a(f"v_cndmask_b32 v{EA+16}, v{EA+16}, v18, vcc")
    for e in range(17):
        a(f"v_lshl_add_u32 v{EA+e}, v{EA+e}, 1, s17")
    stamp(a, 1)
    a("s_waitcnt vmcnt(2) lgkmcnt(0)")
    a("s_lshl_b32 s28, s25, 4")
    a("s_lshr_b32 s30, s30, s28"); a("s_lshl_b32 s30, s30, 16")
    a("s_lshr_b32 s31, s31, s28"); a("s_lshl_b32 s31, s31, 16")
    for i in range(6): a(f"v_lshlrev_b32 v{12+i}, 16, v{12+i}")
    a(f"v_mov_b32 v18, {G.LOG2E:#x}"); a("v_mul_f32 v18, s30, v18"); a("v_exp_f32 v18, v18")
    bf16r(a, 18, 18)
    a("v_mul_f32 v12, v18, v12")
    a("v_mul_f32 v13, v18, v13")
    a("v_mul_f32 v14, v18, v14"); a("v_mul_f32 v15, v18, v15")
    a(f"v_mul_f32 v12, {G.LOG2E:#x}, v12")
    a(f"v_mul_f32 v13, {f2u(0.15915494309189535):#x}, v13")
    F = lambda c: 20 + 2*(c-1)
    W1 = 34; V1 = 36; W2 = 38; V2 = 40; CB = 42
    def cexp(d, mult):
        if mult != 1:
            a(f"v_mul_f32 v48, {f2u(float(mult)):#x}, v12"); a(f"v_mul_f32 v49, {f2u(float(mult)):#x}, v13")
        else:
            a("v_mov_b32 v48, v12"); a("v_mov_b32 v49, v13")
        a("v_fract_f32 v49, v49")
        a("v_exp_f32 v48, v48")
        a(f"v_cos_f32 v{d}, v49"); a(f"v_sin_f32 v{d+1}, v49")
        a(f"v_mul_f32 v{d}, v{d}, v48"); a(f"v_mul_f32 v{d+1}, v{d+1}, v48")
    cexp(F(1), 1); cexp(W1, 8); cexp(V1, 128)
    def emit_cmuls(tasks):
        T0 = 50
        pairs = [cmul(None, d, x, y, T0 + 2*(k % 6)) for k, (d, x, y) in enumerate(tasks)]
        for i1, _ in pairs: a(i1)
        for _, i2 in pairs: a(i2)
    Y = lambda b: 64 + 2*b
    Gq = lambda q: 96 + 2*q
    a(f"v_mov_b32 v{Y(0)}, 1.0"); a(f"v_mov_b32 v{Y(0)+1}, 0")
    a(f"v_mov_b32 v{Y(1)}, v{W1}"); a(f"v_mov_b32 v{Y(1)+1}, v{W1+1}")
    emit_cmuls([(Gq(0), 16, 14), (F(2), F(1), F(1)), (W2, W1, W1), (V2, V1, V1)])
    emit_cmuls([(Gq(1), Gq(0), V1), (F(3), F(2), F(1)), (F(4), F(2), F(2)), (Y(2), Y(0), W2), (Y(3), Y(1), W2)])
    emit_cmuls([(Gq(2), Gq(0), V2), (Gq(3), Gq(1), V2), (F(5), F(4), F(1)), (F(6), F(4), F(2)), (F(7), F(4), F(3)), (Y(4), Y(2), W2)])
    rest = []
    for k in range(2, 8):
        t = [(Gq(2*k), Gq(2*k-2), V2)]
        if 2*k+1 <= 16: t.append((Gq(2*k+1), Gq(2*k-1), V2))
        yb = 2*k+1
        if yb <= 15: t.append((Y(yb), Y(yb-2), W2))
        if yb+1 <= 15: t.append((Y(yb+1), Y(yb-1), W2))
        emit_cmuls(t)
    emit_cmuls([(Gq(16), Gq(14), V2), (Y(15), Y(13), W2)])
    a("v_lshlrev_b32 v6, 2, v1"); a("v_add_u32 v6, s16, v6")
    pk = [0]
    def put(row, reg, neg):
        t = 56 + (pk[0] % 4); pk[0] += 1
        a(f"v_cvt_pk_bf16_f32 v{t}, v{reg}, {'-' if neg else ''}v{reg+1}")
        a(f"ds_write_b32 v6, v{t} offset:{row*288}")
    for b in range(16): put(41+b, Y(b), False)
    put(0, Gq(0), True); put(8, Gq(1), True); put(16, Gq(2), True); put(20, Gq(3), True)
    for q in range(4): put(24+2*q, Gq(4+q), True)
    for q in range(8): put(32+q, Gq(8+q), True)
    put(40, Gq(16), True)
    ex = []
    for c in range(1, 8): ex.append((c, 0, c)); ex.append((8+c, 1, c))
    for c in range(1, 4): ex.append((16+c, 2, 2*c)); ex.append((20+c, 3, 2*c))
    for q in range(4): ex.append((24+2*q+1, 4+q, 4))
    XT = 130
    for i in range(0, len(ex), 6):
        grp = ex[i:i+6]
        emit_cmuls([(XT+2*k, Gq(g), F(c)) for k, (row, g, c) in enumerate(grp)])
        for k, (row, g, c) in enumerate(grp): put(row, XT+2*k, True)
    a("v_mul_u32_u24 v44, 288, v3"); a("v_lshl_add_u32 v44, v4, 4, v44"); a("v_add_u32 v44, s16, v44")
    a("s_waitcnt lgkmcnt(0)")
    AF = 64; BF = 112; KA = 128
    for ks in range(4):
        a(f"ds_read_b128 v[{BF+4*ks}:{BF+4*ks+3}], v44 offset:{41*288 + ks*64}")
        for mt in range(3):
            b = AF + 4*(3*ks+mt)
            a(f"ds_read_b128 v[{b}:{b+3}], v44 offset:{mt*16*288 + ks*64}")
    a("s_waitcnt lgkmcnt(0)")
    for ks in range(4):
        for mt in range(3):
            b = AF + 4*(3*ks+mt)
            c = "0" if ks == 0 else f"v[{KA+4*mt}:{KA+4*mt+3}]"
            a(f"v_mfma_f32_16x16x32_bf16 v[{KA+4*mt}:{KA+4*mt+3}], v[{b}:{b+3}], v[{BF+4*ks}:{BF+4*ks+3}], {c}")
    def set_flag(off_sgpr_expr_fn):
        pass
    a(f"v_mov_b32 v45, {L_CNT}")
    a("s_lshl_b32 s28, s25, 2"); a("v_add_u32 v45, s28, v45")
    a("v_mov_b32 v46, 1")
    a("v_mul_u32_u24 v47, 48, v1"); a("v_add_u32 v47, s18, v47")
    labE = "K2_EVEN"; labX = "K2_EXPAND"
    a("s_cmp_eq_u32 s26, 0")
    a(f"s_cbranch_scc1 {labE}")
    for mt in range(3): a(f"ds_write_b128 v47, v[{KA+4*mt}:{KA+4*mt+3}] offset:{16*mt}")
    a("s_waitcnt lgkmcnt(0)")
    a("ds_write_b32 v45, v46")
    def spin(vaddr, off, lab):
        a.label(lab)
        a(f"ds_read_b32 v48, v{vaddr} offset:{off}")
        a("s_waitcnt lgkmcnt(0)")
        a("v_readfirstlane_b32 s28, v48")
        a("s_cmp_eq_u32 s28, 0")
        a(f"s_cbranch_scc1 {lab}")
    spin(45, 8, "K2_SP2")
    a(f"s_branch {labX}")
    a.label(labE)
    a.barrier_hazard()
    spin(45, 0, "K2_SP1")
    for mt in range(3): a(f"ds_read_b128 v[{64+4*mt}:{64+4*mt+3}], v47 offset:{16*mt}")
    a("v_lshrrev_b32 v48, 1, v4"); a("v_lshlrev_b32 v48, 7, v48")
    a("v_and_b32 v49, 1, v4"); a("v_lshl_add_u32 v48, v49, 2, v48"); a("v_lshl_add_u32 v48, v3, 3, v48")
    a("v_lshl_add_u32 v48, v48, 1, s17")
    a("v_lshlrev_b32 v49, 6, v4"); a("v_add_u32 v49, 256, v49")
    a("v_cmp_gt_u32 vcc, 2, v4")
    a("v_lshlrev_b32 v50, 2, v3"); a("v_lshlrev_b32 v51, 1, v3")
    a("v_cndmask_b32 v50, v51, v50, vcc")
    a("v_add_u32 v49, v49, v50"); a("v_lshl_add_u32 v49, v49, 1, s17")
    a("v_mov_b32 v50, 64"); a("v_mov_b32 v51, 4"); a("v_cndmask_b32 v50, v50, v51, vcc"); a("v_add_u32 v50, v49, v50")
    a("v_lshlrev_b32 v51, 6, v4"); a("v_add_u32 v51, v51, v3"); a("v_add_u32 v51, 512, v51")
    a("v_mov_b32 v52, 704"); a("v_cndmask_b32 v51, v52, v51, vcc")
    a("v_cmp_eq_u32 vcc, 32, v1"); a("v_mov_b32 v52, 640"); a("v_cndmask_b32 v51, v51, v52, vcc")
    a("v_lshl_add_u32 v51, v51, 1, s17")
    a("s_waitcnt lgkmcnt(0)")
    for i in range(12): a(f"v_add_f32 v{KA+i}, v{KA+i}, v{64+i}")
    a("v_cmp_eq_u32 vcc, 0, v1"); a("v_mov_b32 v52, 0"); a("v_mov_b32 v53, s31"); a("v_cndmask_b32 v52, v52, v53, vcc")
    a(f"v_add_f32 v{KA}, v{KA}, v52")
    for i in range(6): a(f"v_cvt_pk_bf16_f32 v{76+i}, v{KA+2*i}, v{KA+2*i+1}")
    a("ds_write_b64 v48, v[76:77]")
    a("ds_write_b32 v49, v78"); a("ds_write_b32 v50, v79")
    a("ds_write_b16 v51, v80"); a("ds_write_b16_d16_hi v51, v80 offset:32")
    a("ds_write_b16 v51, v81 offset:64"); a("ds_write_b16_d16_hi v51, v81 offset:96")
    a("v_mov_b32 v52, 0"); a("v_mov_b32 v53, s17"); a("ds_write_b16 v53, v52 offset:1282")
    a("s_waitcnt lgkmcnt(0)")
    a("ds_write_b32 v45, v46 offset:8")
    a.label(labX)
    a.barrier_hazard()
    DD = 88
    for e in range(17):
        a(f"ds_read_u16 v{DD+e}, v{EA+e}")
    a("s_lshl_b32 s28, s26, 11"); a("s_add_u32 s28, s28, s18")
    a("v_lshl_add_u32 v48, v1, 5, s28")
    a("v_mov_b32 v52, 0")
    a("v_and_b32 v49, 15, v1"); a("v_lshl_add_u32 v49, v49, 2, s18")
    a("s_waitcnt lgkmcnt(0)")
    for i in range(8): a(f"v_lshl_or_b32 v{64+i}, v{DD+2*i+1}, 16, v{DD+2*i}")
    for i in range(8): a(f"v_lshl_or_b32 v{76+i}, v{DD+2*i+2}, 16, v{DD+2*i+1}")
    a(f"ds_write_b128 v48, v[64:67] offset:{R0_OFF}"); a(f"ds_write_b128 v48, v[68:71] offset:{R0_OFF+16}")
    a(f"ds_write_b128 v48, v[76:79] offset:{R1_OFF}"); a(f"ds_write_b128 v48, v[80:83] offset:{R1_OFF+16}")
    a(f"ds_write_b32 v49, v52 offset:{R0_OFF+4096}"); a(f"ds_write_b32 v49, v52 offset:{R1_OFF+4096}")
    a("s_waitcnt vmcnt(0) lgkmcnt(0)")
    a(f"v_mov_b32 v48, {L_CNT+16}")
    a("s_lshl_b32 s28, s24, 2"); a("v_add_u32 v49, s28, v48")
    a("s_xor_b32 s28, s28, 4"); a("v_add_u32 v50, s28, v48")
    a("ds_write_b32 v49, v46")
    spin(50, 0, "K2_SP3")
    if OPT.get("dumpK"):
        a("s_lshl_b32 s28, s26, 11"); a("s_add_u32 s28, s28, s18")
        a("v_lshl_add_u32 v48, v1, 5, s28")
        a(f"ds_read_b128 v[64:67], v48 offset:{R0_OFF}"); a(f"ds_read_b128 v[68:71], v48 offset:{R0_OFF+16}")
        a(f"ds_read_b128 v[72:75], v48 offset:{R1_OFF}"); a(f"ds_read_b128 v[76:79], v48 offset:{R1_OFF+16}")
        a("s_waitcnt lgkmcnt(0)")
        a("v_lshlrev_b32 v48, 5, v1")
        a("s_lshl_b32 s28, s27, 13"); a("s_lshl_b32 s29, s26, 11"); a("s_add_u32 s28, s28, s29"); a(f"s_add_u32 s28, s28, {0x1000000}")
        a("s_mov_b32 s22, 0x2000000")
        a("buffer_store_dwordx4 v[64:67], v48, s[20:23], s28 offen"); a("buffer_store_dwordx4 v[68:71], v48, s[20:23], s28 offen offset:16")
        a("s_add_u32 s28, s28, 4096")
        a("buffer_store_dwordx4 v[72:75], v48, s[20:23], s28 offen"); a("buffer_store_dwordx4 v[76:79], v48, s[20:23], s28 offen offset:16")
        a("s_waitcnt vmcnt(0)")
    stamp(a, 2)
    a("v_lshlrev_b32 v48, 3, v4"); a("v_sub_u32 v48, v48, v3"); a("v_add_u32 v48, 2047, v48"); a("v_and_b32 v48, -2, v48"); a("v_lshlrev_b32 v48, 1, v48")
    a("v_and_b32 v49, 1, v3"); a("v_xor_b32 v49, 1, v49"); a("v_mul_u32_u24 v49, 4160, v49")
    a("v_add_u32 v48, v48, v49")
    a(f"s_add_u32 s28, s18, {R0_OFF}"); a("s_lshl_b32 s29, s26, 5"); a("s_sub_u32 s28, s28, s29")
    a("v_add_u32 v48, s28, v48")
    BZ = 52
    for z in range(4): a(f"v_subrev_u32 v{BZ+z}, {32*(32*z+30)}, v48")
    FRG = 64
    ACC = 112
    for i in range(16): a(f"v_mov_b32 v{ACC+i}, 0")
    def fr(q): return FRG + 4*(q % 12)
    def fread(q):
        z = q >> 4; o = 8*(32*z + 30 - 2*q); b = fr(q)
        a(f"ds_read2_b32 v[{b}:{b+1}], v{BZ+z} offset0:{o} offset1:{o+1}")
        a(f"ds_read2_b32 v[{b+2}:{b+3}], v{BZ+z} offset0:{o+2} offset1:{o+3}")
    a("v_lshlrev_b32 v49, 8, v3"); a("v_lshl_add_u32 v49, v4, 4, v49"); a("s_lshl_b32 s28, s25, 12"); a(f"s_add_u32 s28, s28, {L_U}"); a("v_add_u32 v49, s28, v49")
    for h in range(4): a(f"ds_read_b128 v[{UB+4*h}:{UB+4*h+3}], v49 offset:{64*h}")
    for q in range(4): fread(q)
    for dl in range(16):
        a("s_waitcnt lgkmcnt(0)")
        if dl < 15:
            for q in range(4*(dl+1), 4*(dl+1)+4): fread(q)
        for h in (3, 2, 1, 0):
            for j in range(4):
                m = j - h
                q = 4*dl + m
                if q < 0: continue
                b = fr(q)
                a(f"v_mfma_f32_16x16x32_bf16 v[{ACC+4*j}:{ACC+4*j+3}], v[{b}:{b+3}], v[{UB+4*h}:{UB+4*h+3}], v[{ACC+4*j}:{ACC+4*j+3}]")
            if dl < 15:
                for i in range(4):
                    a(f"v_mov_b32_dpp v{UB+4*h+i}, v{UB+4*h+i} row_shr:1 row_mask:0xf bank_mask:0xf bound_ctrl:0")
    stamp(a, 3)
    a("v_lshlrev_b32 v48, 8, v3"); a("v_lshl_add_u32 v48, v4, 3, v48")
    a("s_lshl_b32 s28, s26, 5"); a("s_add_u32 s28, s28, s17"); a(f"s_add_u32 s28, s28, {SROW_OFF}"); a("v_add_u32 v48, s28, v48")
    for j in range(4):
        y = ACC + 4*j
        a(f"v_cvt_pk_bf16_f32 v{64+2*j}, v{y}, v{y+1}"); a(f"v_cvt_pk_bf16_f32 v{65+2*j}, v{y+2}, v{y+3}")
    for j in range(4): a(f"ds_write_b64 v48, v[{64+2*j}:{65+2*j}] offset:{64*j}")
    a("s_waitcnt lgkmcnt(0)")
    a(f"v_mov_b32 v48, {L_CNT+40}")
    a("s_lshl_b32 s28, s24, 2"); a("v_add_u32 v49, s28, v48")
    a("s_xor_b32 s28, s28, 4"); a("v_add_u32 v50, s28, v48")
    a("ds_write_b32 v49, v46")
    spin(50, 0, "K2_SP5")
    stamp(a, 4)
    a("s_lshl_b32 s28, s26, 11"); a("s_add_u32 s29, s28, s17"); a(f"s_add_u32 s29, s29, {SROW_OFF}")
    a("v_add_u32 v48, s29, v7")
    a("ds_read_b128 v[64:67], v48"); a("ds_read_b128 v[68:71], v48 offset:1024")
    a("s_lshl_b32 s29, s27, 12"); a("s_add_u32 s29, s29, s28"); a(f"s_add_u32 s29, s29, {G.WS_ST}")
    a("s_waitcnt lgkmcnt(0)")
    a("buffer_store_dwordx4 v[64:67], v7, s[20:23], s29 offen sc1")
    a("buffer_store_dwordx4 v[68:71], v7, s[20:23], s29 offen offset:1024 sc1")
    a("s_waitcnt vmcnt(0)")
    stamp(a, 5)
    a(f"v_mov_b32 v48, {L_CNT+32}")
    a("s_mov_b64 exec, 1")
    a("ds_add_rtn_u32 v49, v48, v46")
    a("s_waitcnt lgkmcnt(0)")
    a("v_readfirstlane_b32 s28, v49")
    a("s_mov_b64 exec, -1")
    labn = "K2_NOPUB"
    a("s_cmp_lg_u32 s28, 3"); a(f"s_cbranch_scc1 {labn}")
    a.skip_begin()
    a("s_lshr_b32 s28, s2, 5"); a("s_lshl_b32 s28, s28, 7"); a("s_and_b32 s29, s2, 31"); a("s_lshl_b32 s29, s29, 2")
    a("s_add_u32 s28, s28, s29"); a(f"s_add_u32 s28, s28, {G.WS_FLAG}")
    a("v_mov_b32 v48, 0")
    a("s_mov_b64 exec, 1")
    a("buffer_store_dword v46, v48, s[20:23], s28 offen sc1")
    a("s_mov_b64 exec, -1")
    a.skip_end()
    a.label(labn)
    a("v_and_b32 v48, 31, v1"); a("v_lshlrev_b32 v48, 2, v48")
    a("s_lshl_b32 s28, s3, 7"); a(f"s_add_u32 s28, s28, {G.WS_FLAG}")
    a.label("K2_POLL")
    a("buffer_load_dword v49, v48, s[20:23], s28 offen sc1")
    a("s_waitcnt vmcnt(0)")
    a("v_cmp_ne_u32 vcc, 1, v49")
    a("s_nop 4")
    a("s_cbranch_vccz K2_POLLED")
    a("s_sleep 4")
    a("s_branch K2_POLL")
    a.label("K2_POLLED")
    stamp(a, 6)
    a("v_lshrrev_b32 v48, 3, v1"); a("v_and_b32 v49, 7, v1")
    a("v_lshlrev_b32 v50, 12, v48"); a("v_lshl_add_u32 v50, v49, 4, v50")
    a("s_lshl_b32 s28, s3, 18"); a("s_lshl_b32 s29, s24, 16"); a("s_add_u32 s28, s28, s29")
    a("s_lshl_b32 s29, s39, 7"); a("s_add_u32 s28, s28, s29"); a(f"s_add_u32 s28, s28, {G.WS_ST}")
    a("s_add_u32 s29, s28, 32768")
    a("buffer_load_dwordx4 v[64:67], v50, s[20:23], s28 offen sc1")
    a("buffer_load_dwordx4 v[68:71], v50, s[20:23], s29 offen sc1")
    a(f"v_mul_u32_u24 v51, {STL_PITCH}, v48"); a("v_lshl_add_u32 v51, v49, 4, v51")
    a(f"s_mul_i32 s28, s24, {16*STL_PITCH}"); a(f"s_add_u32 s28, s28, {L_STL}"); a("v_add_u32 v51, s28, v51")
    a("s_waitcnt vmcnt(0)")
    a("ds_write_b128 v51, v[64:67]"); a(f"ds_write_b128 v51, v[68:71] offset:{8*STL_PITCH}")
    a("s_waitcnt lgkmcnt(0)")
    stamp(a, 7)
    a.label("K2_FINAL")
    a.barrier_hazard()
    a("s_barrier")
    a("v_lshrrev_b32 v2, 3, v1"); a("s_lshl_b32 s28, s36, 3"); a("v_add_u32 v2, s28, v2")
    a("v_and_b32 v3, 7, v1")
    a(f"v_mul_u32_u24 v4, {P_PITCH}, v2"); a("v_lshl_add_u32 v4, v3, 5, v4"); a(f"v_add_u32 v4, {L_P}, v4")
    for w in range(4):
        a(f"ds_read_b128 v[{16+8*w}:{19+8*w}], v4 offset:{w*64*P_PITCH}")
        a(f"ds_read_b128 v[{20+8*w}:{23+8*w}], v4 offset:{w*64*P_PITCH+16}")
    a(f"v_mul_u32_u24 v6, {8*STL_PITCH}, v3"); a("v_lshl_add_u32 v6, v2, 1, v6"); a(f"v_add_u32 v6, {L_STL}, v6")
    for e in range(8):
        a(f"ds_read_u16 v{48+e}, v6 offset:{e*STL_PITCH}")
    a("s_waitcnt lgkmcnt(0)")
    for e in range(8): a(f"v_add_f32 v{16+e}, v{16+e}, v{24+e}")
    for e in range(8): a(f"v_add_f32 v{32+e}, v{32+e}, v{40+e}")
    for e in range(8): a(f"v_add_f32 v{16+e}, v{16+e}, v{32+e}")
    for d in range(4): a(f"v_cvt_pk_bf16_f32 v{24+d}, v{16+2*d}, v{17+2*d}")
    for d in range(4):
        a(f"v_lshlrev_b32 v{16+2*d}, 16, v{24+d}"); a(f"v_and_b32 v{17+2*d}, 0xffff0000, v{24+d}")
    for e in range(8): a(f"v_mul_f32 v{24+e}, {f2u(-1.4426950408889634):#x}, v{16+e}")
    for e in range(8): a(f"v_exp_f32 v{24+e}, v{24+e}")
    for e in range(8): a(f"v_add_f32 v{24+e}, 1.0, v{24+e}")
    for e in range(8): a(f"v_rcp_f32 v{24+e}, v{24+e}")
    for e in range(8): a(f"v_mul_f32 v{16+e}, v{16+e}, v{24+e}")
    for d in range(4): a(f"v_cvt_pk_bf16_f32 v{24+d}, v{16+2*d}, v{17+2*d}")
    for d in range(4):
        a(f"v_lshlrev_b32 v{16+2*d}, 16, v{24+d}"); a(f"v_and_b32 v{17+2*d}, 0xffff0000, v{24+d}")
        a(f"v_lshlrev_b32 v{32+2*d}, 16, v{48+2*d}"); a(f"v_lshlrev_b32 v{33+2*d}, 16, v{49+2*d}")
    for e in range(8): a(f"v_mul_f32 v{16+e}, v{16+e}, v{32+e}")
    for d in range(4): a(f"v_cvt_pk_bf16_f32 v{24+d}, v{16+2*d}, v{17+2*d}")
    a("s_waitcnt vmcnt(0)")
    for d in range(4):
        a(f"v_lshlrev_b32 v{16+2*d}, 16, v{24+d}"); a(f"v_and_b32 v{17+2*d}, 0xffff0000, v{24+d}")
        a(f"v_lshlrev_b32 v{32+2*d}, 16, v{8+d}"); a(f"v_and_b32 v{33+2*d}, 0xffff0000, v{8+d}")
    for e in range(8): a(f"v_add_f32 v{16+e}, v{16+e}, v{32+e}")
    for d in range(4): a(f"v_cvt_pk_bf16_f32 v{24+d}, v{16+2*d}, v{17+2*d}")
    a("buffer_store_dwordx4 v[24:27], v5, s[12:15], s34 offen")
    stamp_store(a, 8, 1)
    a.label("K2_END")
    a("s_endpgm")
    return a, LDS2
```

```python
from asmlib import Asm
import gen as G
from gen import srd, bf16r, f2u, stamp, stamp_store, OPT
import gen2
from gen2 import cmul, XYSZ, L_P, P_PITCH, L_STL, STL_PITCH, L_CNT, L_U, R0_OFF, R1_OFF, SROW_OFF

XSLOT = 32768
WBASE = 3*XSLOT
WSLOT = 16384
LDS_TOTAL = max(WBASE + 3*WSLOT, L_U + 8192)
F_S = G.WS_FLAG
F_H = G.WS_FLAG + 1024
F_A = G.WS_FLAG + 2048

def allreduce_ops(regs, t):
    L = []
    for mod in ("quad_perm:[1,0,3,2]", "quad_perm:[2,3,0,1]", "row_half_mirror", "row_mirror"):
        for r in regs: L.append(f"v_add_f32_dpp v{r}, v{r}, v{r} {mod} row_mask:0xf bank_mask:0xf")
    for sw in ("v_permlane16_swap_b32", "v_permlane32_swap_b32"):
        for k, r in enumerate(regs): L.append(f"v_mov_b32 v{t+k}, v{r}")
        for k, r in enumerate(regs): L.append(f"{sw} v{r}, v{t+k}")
        for k, r in enumerate(regs): L.append(f"v_add_f32 v{r}, v{r}, v{t+k}")
    return L

def row_stats_ops(raw, t):
    L = []
    for d in range(4):
        L += [f"v_lshlrev_b32 v{t+2*d}, 16, v{raw+d}", f"v_and_b32 v{t+2*d+1}, 0xffff0000, v{raw+d}"]
    L += [f"v_pk_add_f32 v[{t+8}:{t+9}], v[{t}:{t+1}], v[{t+2}:{t+3}]",
          f"v_pk_add_f32 v[{t+10}:{t+11}], v[{t+4}:{t+5}], v[{t+6}:{t+7}]",
          f"v_pk_add_f32 v[{t+8}:{t+9}], v[{t+8}:{t+9}], v[{t+10}:{t+11}]",
          f"v_add_f32 v{t+8}, v{t+8}, v{t+9}"]
    L += allreduce_ops([t+8], t+9)
    L.append(f"v_mul_f32 v{t+8}, {f2u(1/512):#x}, v{t+8}")
    for k in range(8): L.append(f"v_sub_f32 v{t+k}, v{t+k}, v{t+8}")
    L += [f"v_mul_f32 v{t+9}, v{t}, v{t}", f"v_mul_f32 v{t+10}, v{t+1}, v{t+1}"]
    for k in range(2, 8): L.append(f"v_fmac_f32 v{t+9+(k&1)}, v{t+k}, v{t+k}")
    L.append(f"v_add_f32 v{t+9}, v{t+9}, v{t+10}")
    L += allreduce_ops([t+9], t+10)
    L.append(f"v_mul_f32 v{t+9}, {f2u(1/512):#x}, v{t+9}")
    def r16(x): return [f"v_cvt_pk_bf16_f32 v{x}, v{x}, v{x}", f"v_lshlrev_b32 v{x}, 16, v{x}"]
    L += r16(t+8) + r16(t+9)
    L.append(f"v_add_f32 v{t+9}, {f2u(1e-5):#x}, v{t+9}")
    L += r16(t+9)
    L.append(f"v_sqrt_f32 v{t+9}, v{t+9}")
    L += r16(t+9)
    L += [f"v_rcp_f32 v{t+9}, v{t+9}", f"v_sub_f32 v{t+8}, 0, v{t+8}", f"v_mov_b32 v{t+10}, 0"]
    groups = [[x] for x in L]
    groups.append(["s_mov_b64 exec, 1", f"buffer_store_dwordx2 v[{t+8}:{t+9}], v{t+10}, s[20:23], s52 offen sc1", "s_mov_b64 exec, -1"])
    return groups

def set_flag_byte(a, val):
    a(f"v_mov_b32 v60, {val}"); a("v_mov_b32 v61, 0")
    a("s_mov_b64 exec, 1")
    a("buffer_store_byte v60, v61, s[24:27], s53 offen sc1")
    a("s_mov_b64 exec, -1")

def set_flag_dword(a, soff):
    a("v_mov_b32 v60, 1"); a("v_mov_b32 v61, 0")
    a("s_mov_b64 exec, 1")
    a(f"buffer_store_dword v60, v61, s[20:23], {soff} offen sc1")
    a("s_mov_b64 exec, -1")

def poll(a, lab, srdn, vaddr, vmask, vt, sleep=2):
    a.label(lab)
    a(f"buffer_load_dword v{vt}, v{vaddr}, s[{srdn}:{srdn+3}], 0 offen sc1")
    a("s_waitcnt vmcnt(0)")
    a(f"v_and_b32 v{vt}, v{vt}, v{vmask}")
    a(f"v_cmp_ne_u32 vcc, v{vt}, v{vmask}")
    a("s_nop 4")
    a(f"s_cbranch_vccz {lab}_OK")
    a(f"s_sleep {sleep}")
    a(f"s_branch {lab}")
    a.label(lab + "_OK")

def only_wave0(a, fn):
    lab = a.newlabel("W0")
    a("s_cmp_lg_u32 s36, 0"); a(f"s_cbranch_scc1 {lab}")
    a.skip_begin(); fn(); a._skip = a._skip; a.skip_end()
    a.label(lab)

def phaseA_gemm1(a):
    if OPT.get("local"):
        a("s_mov_b32 s39, s37"); a("s_mov_b32 s40, s38")
    else:
        a("s_mul_i32 s41, s38, 37"); a("s_lshr_b32 s41, s41, 8"); a("s_mul_i32 s42, s41, 7"); a("s_sub_u32 s42, s38, s42")
        a("s_lshr_b32 s39, s37, 2"); a("s_lshl_b32 s39, s39, 2"); a("s_add_u32 s39, s39, s41")
        a("s_and_b32 s40, s37, 3"); a("s_mul_i32 s40, s40, 7"); a("s_add_u32 s40, s40, s42")
    a("v_lshrrev_b32 v16, 3, v1"); a("v_lshrrev_b32 v17, 4, v1"); a("v_and_b32 v18, 7, v1")
    a("v_xor_b32 v19, v18, v17"); a("v_lshlrev_b32 v19, 4, v19"); a("v_lshl_add_u32 v2, v16, 10, v19")
    a("v_xor_b32 v3, 64, v2")
    a("v_mul_u32_u24 v4, 3584, v16"); a("v_and_b32 v19, 1, v17"); a("v_lshlrev_b32 v19, 2, v19"); a("v_xor_b32 v19, v19, v18")
    a("v_lshl_add_u32 v4, v19, 4, v4")
    a("s_lshl_b32 s43, s39, 18"); a("s_lshl_b32 s41, s36, 15"); a("s_add_u32 s43, s43, s41")
    a("s_mul_i32 s42, s36, 28672"); a("s_lshl_b32 s41, s40, 7"); a("s_add_u32 s42, s42, s41")
    a("s_lshl_b32 s44, s36, 12")
    a("s_lshl_b32 s45, s36, 10"); a(f"s_add_u32 s45, s45, {WBASE}")
    def dma(j):
        sl = j % 3
        L = []
        L.append([f"s_add_u32 s41, s42, {j*229376}", f"s_add_u32 m0, s45, {sl*WSLOT}", "s_nop 0", "buffer_load_dwordx4 v4, s[12:15], s41 offen lds"])
        L.append([f"s_add_u32 m0, s45, {sl*WSLOT + 8192}", "s_nop 0", "buffer_load_dwordx4 v4, s[16:19], s41 offen lds"])
        for z in range(4):
            L.append([f"s_add_u32 m0, s44, {sl*XSLOT + z*1024}", f"s_add_u32 s46, s43, {z*8192 + j*128}",
                      f"buffer_load_dwordx4 v{2 + (z&1)}, s[8:11], s46 offen lds"])
        return L
    for j in range(2):
        for grp in dma(j):
            for i in grp: a(i)
    srd(a, 24, 32, 33, 256)
    a("s_lshr_b32 s47, s36, 1"); a("s_and_b32 s48, s36, 1")
    a("v_and_b32 v16, 31, v1"); a("v_lshlrev_b32 v16, 7, v16")
    a("s_lshl_b32 s41, s47, 13"); a("v_add_u32 v16, s41, v16")
    a("v_lshrrev_b32 v17, 5, v1"); a("v_bfe_u32 v18, v1, 1, 3")
    XA = 6
    for s in range(4):
        a(f"v_add_u32 v19, {2*s}, v17"); a("v_xor_b32 v19, v19, v18")
        a(f"v_lshl_add_u32 v{XA+s}, v19, 4, v16")
        a(f"v_add_u32 v{XA+4+s}, 65536, v{XA+s}")
    a("v_bfe_u32 v18, v1, 2, 2")
    a("v_lshl_add_u32 v19, v17, 3, v18"); a("v_lshlrev_b32 v19, 7, v19")
    a("v_lshrrev_b32 v20, 1, v18"); a("v_xor_b32 v20, s48, v20"); a("v_lshlrev_b32 v20, 2, v20")
    a("v_bfe_u32 v21, v1, 4, 1"); a("v_lshl_add_u32 v20, v21, 1, v20")
    a("v_bfe_u32 v21, v1, 1, 1"); a("v_add_u32 v20, v20, v21")
    a("v_lshl_add_u32 v19, v20, 4, v19")
    a("v_and_b32 v21, 1, v1"); a("v_lshl_add_u32 v19, v21, 3, v19")
    a(f"v_add_u32 v5, {WBASE}, v19")
    FB = 192; ACC = 64
    def reads(g):
        j, s = g >> 2, g & 3
        sl = j % 3; b = FB + 16*(g & 1)
        xa = XA + s + (4 if sl == 2 else 0); xo = (sl*XSLOT) & 0xffff
        wo = sl*WSLOT + 16*s*128
        return [f"ds_read_b64_tr_b16 v[{b}:{b+1}], v5 offset:{wo}",
                f"ds_read_b64_tr_b16 v[{b+2}:{b+3}], v5 offset:{wo+512}",
                f"ds_read_b128 v[{b+4}:{b+7}], v{xa} offset:{xo}",
                f"ds_read_b128 v[{b+8}:{b+11}], v{xa} offset:{xo+4096}",
                f"ds_read_b64_tr_b16 v[{b+12}:{b+13}], v5 offset:{wo+8192}",
                f"ds_read_b64_tr_b16 v[{b+14}:{b+15}], v5 offset:{wo+8192+512}"]
    stamp(a, 1)
    a("s_waitcnt vmcnt(6)")
    a("s_barrier")
    stamp(a, 2)
    for r in reads(0): a(r)
    rs = []
    extraq = dma(2)
    for g in range(32):
        j, s = g >> 2, g & 3
        b = FB + 16*(g & 1)
        nxt = reads(g+1) if g < 31 else []
        if s == 3 and j < 7:
            n = 6 if j < 6 else 0
            a(f"s_waitcnt vmcnt({n}) lgkmcnt(0)")
            a("s_barrier")
            if j + 3 <= 7: extraq = extraq + dma(j+3)
            if j == 6:
                a("buffer_load_dword v15, v14, s[24:27], 0 offen sc1")
        if g == 8:
            a("s_lshl_b32 s41, s39, 2"); a("s_lshl_b32 s49, 15, s41"); a("s_lshl_b32 s41, 1, s40"); a("s_or_b32 s49, s49, s41"); a("s_bitset1_b32 s49, 31")
            a("v_and_b32 v14, 31, v1"); a("v_lshlrev_b32 v14, 2, v14")
        if g == 29:
            a.label("A_POLL")
            a("s_waitcnt vmcnt(0)")
            a("v_cmp_ne_u32 vcc, 0, v15")
            a("s_nop 4")
            a("s_and_b32 s41, vcc_lo, s49")
            a("s_cmp_eq_u32 s41, s49")
            a("s_cbranch_scc1 A_POLLED")
            a("s_sleep 2")
            a("buffer_load_dword v15, v14, s[24:27], 0 offen sc1")
            a("s_branch A_POLL")
            a.label("A_POLLED")
            a("v_and_b32 v14, 31, v1"); a("v_lshlrev_b32 v14, 3, v14")
            a("s_lshl_b32 s41, s39, 11"); a("s_lshl_b32 s46, s47, 9"); a("s_add_u32 s41, s41, s46"); a(f"s_add_u32 s41, s41, {G.WS_STATS}")
            a("buffer_load_dwordx2 v[16:17], v14, s[20:23], s41 offen sc1")
            a("buffer_load_dwordx2 v[18:19], v14, s[20:23], s41 offen offset:256 sc1")
            a("v_lshrrev_b32 v15, 5, v1"); a("v_lshlrev_b32 v15, 4, v15")
            a("s_lshl_b32 s41, s40, 9"); a("s_lshl_b32 s46, s48, 7"); a("s_add_u32 s41, s41, s46"); a(f"s_add_u32 s41, s41, {G.WS_CS}")
            for gu in range(2):
                for q in range(4):
                    a(f"buffer_load_dwordx4 v[{128+16*gu+4*q}:{128+16*gu+4*q+3}], v15, s[20:23], s41 offen offset:{gu*256+q*32} sc1")
        def mf(gu, rt):
            ac = ACC + 16*(2*gu + rt)
            c = "0" if g == 0 else f"v[{ac}:{ac+15}]"
            wa = b if gu == 0 else b + 12
            xb = b + 4 + 4*rt
            a(f"v_mfma_f32_32x32x16_bf16 v[{ac}:{ac+15}], v[{wa}:{wa+3}], v[{xb}:{xb+3}], {c}")
        waited = (s == 3 and j < 7)
        def ex(n, m):
            nonlocal extraq, rs
            for _ in range(n):
                if extraq:
                    for i in extraq.pop(0): a(i)
            if 1 <= g <= 6:
                for _ in range(m):
                    if rs:
                        for i in rs.pop(0): a(i)
        if nxt:
            if not waited: a("s_waitcnt lgkmcnt(3)")
            mf(0, 0)
            for r in nxt[0:3]: a(r)
            ex(2, 3)
            if not waited: a("s_waitcnt lgkmcnt(5)")
            mf(0, 1)
            for r in nxt[3:6]: a(r)
            ex(2, 3)
            if not waited: a("s_waitcnt lgkmcnt(6)")
            mf(1, 0)
            ex(2, 4)
            mf(1, 1)
            ex(0, 4)
        else:
            a("s_waitcnt lgkmcnt(0)")
            mf(0, 0); mf(0, 1); mf(1, 0); mf(1, 1)
        if g == 6: assert not rs, len(rs)
        assert not (s == 2 and extraq), (g, len(extraq))
    stamp(a, 3)
    a("s_waitcnt vmcnt(0)")
    for rt in range(2):
        nm, rsd = 16+2*rt, 17+2*rt
        o = 20 + 8*rt
        a(f"v_mov_b32 v{o}, v{nm}"); a(f"v_mov_b32 v{o+1}, v{nm}")
        a(f"v_mul_f32 v{o+2}, {f2u(-1.4426950408889634):#x}, v{rsd}"); a(f"v_mov_b32 v{o+3}, v{o+2}")
        a(f"v_mul_f32 v{o+4}, v{rsd}, v{rsd}"); a(f"v_mov_b32 v{o+5}, v{o+4}")
    a("s_mov_b32 s46, 1.0"); a("s_mov_b32 s47, 1.0")
    a("s_lshr_b32 s41, s36, 1"); a("s_lshl_b32 s41, s41, 1"); a("s_lshl_b32 s50, s39, 3"); a("s_add_u32 s41, s41, s50")
    a("s_mul_i32 s41, s41, 112"); a("s_lshl_b32 s50, s40, 2"); a("s_add_u32 s41, s41, s50"); a("s_lshl_b32 s50, s48, 1"); a("s_add_u32 s41, s41, s50")
    a("s_lshl_b32 s50, s41, 10")
    if G.WS_HF: a(f"s_add_u32 s50, s50, {G.WS_HF}")
    a("s_add_u32 s51, s50, 114688")
    a("v_lshlrev_b32 v36, 4, v1")
    HR = 160; TM = 176
    for rt in range(2):
        o = 20 + 8*rt
        for half in range(2):
            prs = [8*half + 2*k for k in range(4)]
            Gp = lambda i: f"v[{ACC+16*rt+i}:{ACC+16*rt+i+1}]"
            Up = lambda i: f"v[{ACC+32+16*rt+i}:{ACC+32+16*rt+i+1}]"
            CG = lambda i: f"v[{128+i}:{128+i+1}]"
            CU = lambda i: f"v[{144+i}:{144+i+1}]"
            Tm = lambda k: TM + 2*k
            for i in prs: a(f"v_pk_fma_f32 {Gp(i)}, {CG(i)}, v[{o}:{o+1}], {Gp(i)}")
            for i in prs: a(f"v_pk_fma_f32 {Up(i)}, {CU(i)}, v[{o}:{o+1}], {Up(i)}")
            for k, i in enumerate(prs): a(f"v_pk_mul_f32 v[{Tm(k)}:{Tm(k)+1}], {Gp(i)}, v[{o+2}:{o+3}]")
            for k, i in enumerate(prs):
                a(f"v_exp_f32 v{Tm(k)}, v{Tm(k)}"); a(f"v_exp_f32 v{Tm(k)+1}, v{Tm(k)+1}")
            for k, i in enumerate(prs): a(f"v_pk_mul_f32 {Gp(i)}, {Gp(i)}, {Up(i)}")
            for k, i in enumerate(prs): a(f"v_pk_add_f32 v[{Tm(k)}:{Tm(k)+1}], v[{Tm(k)}:{Tm(k)+1}], s[46:47]")
            for k, i in enumerate(prs): a(f"v_pk_mul_f32 {Gp(i)}, {Gp(i)}, v[{o+4}:{o+5}]")
            for k, i in enumerate(prs):
                a(f"v_rcp_f32 v{Tm(k)}, v{Tm(k)}"); a(f"v_rcp_f32 v{Tm(k)+1}, v{Tm(k)+1}")
            for k, i in enumerate(prs): a(f"v_pk_mul_f32 {Gp(i)}, {Gp(i)}, v[{Tm(k)}:{Tm(k)+1}]")
            F = 2*rt + half
            for k, i in enumerate(prs):
                a(f"v_cvt_pk_bf16_f32 v{HR+4*F+k}, v{ACC+16*rt+i}, v{ACC+16*rt+i+1}")
            a(f"buffer_store_dwordx4 v[{HR+4*F}:{HR+4*F+3}], v36, s[20:23], s{50+rt} offen offset:{half*1024}{'' if OPT.get('hplain') else ' sc1'}")
    stamp(a, 4)
    a("s_waitcnt vmcnt(0)")
    a("s_barrier")
    a("s_lshl_b32 s41, s39, 7"); a("s_lshl_b32 s46, s40, 2"); a("s_add_u32 s41, s41, s46"); a(f"s_add_u32 s41, s41, {F_H}")
    only_wave0(a, lambda: set_flag_dword(a, "s41"))
    stamp(a, 5)

def phaseA_aux(a):
    a("s_sub_u32 s39, s38, 28"); a("s_lshl_b32 s39, s39, 3"); a("s_add_u32 s39, s39, s37")
    a("s_cmp_ge_u32 s39, 28"); a("s_cselect_b32 s40, 28, 0"); a("s_sub_u32 s40, s39, s40")
    a("v_lshlrev_b32 v2, 4, v1"); a("v_add_u32 v3, 4096, v2")
    a("s_lshl_b32 s42, s36, 13")
    a("s_lshl_b32 s41, s39, 16"); a("s_add_u32 s41, s41, s42")
    for i in range(8):
        a(f"buffer_load_dwordx4 v[{96+4*i}:{96+4*i+3}], v{2 if i<4 else 3}, s[8:11], s41 offen offset:{(i&3)*1024}")
    a("v_lshrrev_b32 v16, 3, v1"); a("v_lshrrev_b32 v17, 4, v1"); a("v_and_b32 v18, 7, v1")
    a("v_mul_u32_u24 v4, 3584, v16"); a("v_and_b32 v19, 1, v17"); a("v_lshlrev_b32 v19, 2, v19"); a("v_xor_b32 v19, v19, v18")
    a("v_lshl_add_u32 v4, v19, 4, v4")
    a("s_mul_i32 s43, s36, 229376"); a("s_lshl_b32 s44, s40, 7"); a("s_add_u32 s43, s43, s44")
    for z in range(8):
        a(f"s_add_u32 s45, s43, {z*28672}")
        a(f"s_add_u32 m0, s42, {z*1024}")
        a("buffer_load_dwordx4 v4, s[12:15], s45 offen lds")
        a(f"s_add_u32 m0, s42, {z*1024+65536}")
        a("buffer_load_dwordx4 v4, s[16:19], s45 offen lds")
    srd(a, 24, 32, 33, 256)
    labf = a.newlabel("A_NOFL")
    a("s_cmp_lg_u32 s39, 31"); a(f"s_cbranch_scc1 {labf}")
    a("s_cmp_ge_u32 s36, 4"); a(f"s_cbranch_scc1 {labf}")
    a.skip_begin()
    for r in range(8, 12): a(f"v_mov_b32 v{r}, 0")
    a("s_lshl_b32 s45, s36, 10"); a(f"s_add_u32 s45, s45, {G.WS_FLAG}")
    a("buffer_store_dwordx4 v[8:11], v2, s[20:23], s45 offen sc1")
    a.skip_end()
    a.label(labf)
    a("v_lshrrev_b32 v17, 5, v1"); a("v_bfe_u32 v18, v1, 2, 2")
    a("v_lshl_add_u32 v19, v17, 3, v18"); a("v_lshlrev_b32 v19, 7, v19")
    a("s_and_b32 s45, s36, 1")
    a("v_lshrrev_b32 v20, 1, v18"); a("v_xor_b32 v20, s45, v20"); a("v_lshlrev_b32 v20, 2, v20")
    a("v_bfe_u32 v21, v1, 4, 1"); a("v_lshl_add_u32 v20, v21, 1, v20")
    a("v_bfe_u32 v21, v1, 1, 1"); a("v_add_u32 v20, v20, v21")
    a("v_lshl_add_u32 v19, v20, 4, v19")
    a("v_and_b32 v21, 1, v1"); a("v_lshl_add_u32 v19, v21, 3, v19")
    a("s_bfe_u32 s45, s36, 0x10001"); a("s_lshl_b32 s45, s45, 16"); a("s_lshr_b32 s46, s36, 2"); a("s_lshl_b32 s46, s46, 15"); a("s_add_u32 s45, s45, s46")
    a("v_add_u32 v5, s45, v19")
    for i in range(4): a(f"v_mov_b32 v{28+i}, 0x3f803f80")
    a("s_mov_b32 s84, 0xaaaaaaaa"); a("s_mov_b32 s85, 0xaaaaaaaa"); a("s_mov_b32 s86, 0xcccccccc"); a("s_mov_b32 s87, 0xcccccccc"); a("s_mov_b32 s88, 0xf0f0f0f0"); a("s_mov_b32 s89, 0xf0f0f0f0")
    stamp(a, 1)
    a("s_waitcnt vmcnt(16)")
    X = 32
    for i in range(8):
        for d in range(4):
            a(f"v_lshlrev_b32 v{X+8*i+2*d}, 16, v{96+4*i+d}")
            a(f"v_and_b32 v{X+8*i+2*d+1}, 0xffff0000, v{96+4*i+d}")
    for i in range(8):
        b = X + 8*i; t = 144 + 2*(i & 3)
        a(f"v_pk_add_f32 v[{t}:{t+1}], v[{b}:{b+1}], v[{b+2}:{b+3}]")
        a(f"v_pk_mul_f32 v[{t+8}:{t+9}], v[{b}:{b+1}], v[{b}:{b+1}]")
        a(f"v_pk_add_f32 v[{t}:{t+1}], v[{t}:{t+1}], v[{b+4}:{b+5}]")
        a(f"v_pk_fma_f32 v[{t+8}:{t+9}], v[{b+2}:{b+3}], v[{b+2}:{b+3}], v[{t+8}:{t+9}]")
        a(f"v_pk_add_f32 v[{t}:{t+1}], v[{t}:{t+1}], v[{b+6}:{b+7}]")
        a(f"v_pk_fma_f32 v[{t+8}:{t+9}], v[{b+4}:{b+5}], v[{b+4}:{b+5}], v[{t+8}:{t+9}]")
        a(f"v_add_f32 v{128+i}, v{t}, v{t+1}")
        a(f"v_pk_fma_f32 v[{t+8}:{t+9}], v[{b+6}:{b+7}], v[{b+6}:{b+7}], v[{t+8}:{t+9}]")
        a(f"v_add_f32 v{136+i}, v{t+8}, v{t+9}")
    def rs_level(src, n, mask, perm, dst, tmp):
        for k in range(n):
            A_, B_ = src[2*k], src[2*k+1]
            a(f"v_cndmask_b32 v{dst[k]}, v{A_}, v{B_}, {mask}")
            a(f"v_cndmask_b32 v{tmp+k}, v{B_}, v{A_}, {mask}")
        for k in range(n):
            a(f"v_add_f32_dpp v{dst[k]}, v{tmp+k}, v{dst[k]} {perm} row_mask:0xf bank_mask:0xf")
    src = [128+i for i in range(16)]
    d1 = [144+k for k in range(8)]
    rs_level(src, 8, "s[84:85]", "quad_perm:[1,0,3,2]", d1, 160)
    d2 = [128+k for k in range(4)]
    rs_level(d1, 4, "s[86:87]", "quad_perm:[2,3,0,1]", d2, 160)
    for m in ("row_ror:4", "row_ror:8"):
        for r in d2: a(f"v_add_f32_dpp v{r}, v{r}, v{r} {m} row_mask:0xf bank_mask:0xf")
    for sw in ("v_permlane16_swap_b32", "v_permlane32_swap_b32"):
        for k, r in enumerate(d2): a(f"v_mov_b32 v{160+k}, v{r}")
        for k, r in enumerate(d2): a(f"{sw} v{r}, v{160+k}")
        for k, r in enumerate(d2): a(f"v_add_f32 v{r}, v{r}, v{160+k}")
    a("v_cndmask_b32 v8, v128, v129, s[88:89]")
    a("v_cndmask_b32 v9, v130, v131, s[88:89]")
    a(f"v_mul_f32 v8, {f2u(1/512):#x}, v8"); a(f"v_mul_f32 v9, {f2u(1/512):#x}, v9")
    a("v_fma_f32 v9, -v8, v8, v9"); a("v_max_f32 v9, 0, v9")
    bf16r(a, 8, 8); bf16r(a, 9, 9)
    a(f"v_add_f32 v9, {f2u(1e-5):#x}, v9"); bf16r(a, 9, 9)
    a("v_sqrt_f32 v9, v9"); bf16r(a, 9, 9)
    a("v_rcp_f32 v9, v9"); a("v_sub_f32 v8, 0, v8")
    a("v_lshlrev_b32 v10, 3, v1")
    a("s_lshl_b32 s45, s39, 9"); a("s_lshl_b32 s46, s36, 6"); a("s_add_u32 s45, s45, s46"); a(f"s_add_u32 s45, s45, {G.WS_STATS}")
    a("s_mov_b64 exec, 0xff")
    a("buffer_store_dwordx2 v[8:9], v10, s[20:23], s45 offen sc1")
    a("s_mov_b64 exec, -1")
    a("v_mul_f32 v11, v8, v9")
    stamp(a, 2)
    a("s_waitcnt vmcnt(1)")
    a("s_barrier")
    for ks in range(16):
        b = 128 + 4*ks
        a(f"ds_read_b64_tr_b16 v[{b}:{b+1}], v5 offset:{ks*2048}")
        a(f"ds_read_b64_tr_b16 v[{b+2}:{b+3}], v5 offset:{ks*2048+512}")
    RS = [90, 92, 94, 96, 56, 58, 80, 82]
    for i in range(8):
        a(f"v_readlane_b32 s{RS[i]}, v9, {i}"); a(f"v_readlane_b32 s{RS[i]+1}, v9, {i}")
    for i in range(8):
        a(f"v_readlane_b32 s{46+(i&1)}, v11, {i}"); a(f"v_mov_b32 v{224+2*i}, s{46+(i&1)}"); a(f"v_mov_b32 v{225+2*i}, s{46+(i&1)}")
    a("s_waitcnt lgkmcnt(0)")
    for hlf in range(2):
        for k2 in range(8*hlf, 8*hlf+8):
            bb = 128 + 4*k2
            c = "0" if k2 == 0 else "v[208:223]"
            a(f"v_mfma_f32_32x32x16_bf16 v[208:223], v[{bb}:{bb+3}], v[28:31], {c}")
    for i in range(8):
        for d in range(4):
            a(f"v_pk_fma_f32 v[{X+8*i+2*d}:{X+8*i+2*d+1}], v[{X+8*i+2*d}:{X+8*i+2*d+1}], s[{RS[i]}:{RS[i]+1}], v[{224+2*i}:{225+2*i}]")
    CSL = 131072
    a("v_lshrrev_b32 v17, 5, v1"); a("v_lshlrev_b32 v17, 4, v17")
    a("s_lshr_b32 s45, s36, 2"); a("s_lshl_b32 s45, s45, 9"); a("s_and_b32 s46, s36, 3"); a("s_lshl_b32 s46, s46, 7"); a("s_add_u32 s45, s45, s46"); a(f"s_add_u32 s45, s45, {CSL}")
    a("v_add_u32 v17, s45, v17")
    a("s_mov_b32 exec_lo, 1"); a("s_mov_b32 exec_hi, 1")
    for q in range(4): a(f"ds_write_b128 v17, v[{208+4*q}:{208+4*q+3}] offset:{q*32}")
    a("s_mov_b64 exec, -1")
    a("s_waitcnt lgkmcnt(0)")
    a("s_barrier")
    lab = a.newlabel("A_CS")
    a("s_cmp_ge_u32 s36, 2"); a(f"s_cbranch_scc1 {lab}")
    a.skip_begin()
    a("v_lshlrev_b32 v24, 2, v0"); a(f"v_add_u32 v25, {CSL}, v24")
    a("ds_read_b32 v12, v25"); a("ds_read_b32 v13, v25 offset:512")
    a("s_waitcnt lgkmcnt(0)")
    a("v_add_f32 v12, v12, v13")
    a("s_lshl_b32 s45, s40, 9"); a(f"s_add_u32 s45, s45, {G.WS_CS}")
    a("buffer_store_dword v12, v24, s[20:23], s45 offen sc1")
    a.skip_end()
    a.label(lab)
    for i in range(4):
        a(f"v_xor_b32 v{4+i}, {4*i}, v1"); a(f"v_lshlrev_b32 v{4+i}, 4, v{4+i}")
    a("s_lshl_b32 s44, s40, 16"); a("s_add_u32 s44, s44, s42")
    srd(a, 12, 6, 7, 1792*512*2)
    a("s_add_u32 s45, s42, 65536")
    for hf in range(2):
        a(f"s_add_u32 m0, s45, {hf*4096}")
        a(f"s_add_u32 s46, s44, {hf*4096}")
        for i in range(4):
            a(f"buffer_load_dwordx4 v{4+i}, s[12:15], s46 offen offset:{i*1024} lds")
    P = 128
    for i in range(8):
        for d in range(4): a(f"v_cvt_pk_bf16_f32 v{P+4*i+d}, v{X+8*i+2*d}, v{X+8*i+2*d+1}")
    a("s_mov_b32 s46, 0x05040100"); a("s_mov_b32 s47, 0x07060302")
    for e in range(8):
        for k in range(4):
            a(f"v_perm_b32 v{64+4*e+k}, v{P+4*(2*k+1)+(e>>1)}, v{P+4*(2*k)+(e>>1)}, s{46+(e&1)}")
    a("v_and_b32 v16, 7, v1"); a("v_xor_b32 v16, s36, v16"); a("v_lshlrev_b32 v16, 4, v16"); a("v_lshl_add_u32 v16, v1, 10, v16")
    for e in range(8): a(f"ds_write_b128 v16, v[{64+4*e}:{64+4*e+3}] offset:{e*128}")
    a("s_waitcnt vmcnt(0) lgkmcnt(0)")
    a("s_barrier")
    def fl():
        a("v_mov_b32 v60, 1"); a("v_mov_b32 v61, 0"); a("s_lshl_b32 s45, s39, 2")
        a("s_mov_b64 exec, 1")
        a("buffer_store_dword v60, v61, s[24:27], s45 offen sc1")
        a("s_mov_b64 exec, -1")
    only_wave0(a, fl)
    stamp(a, 3)
    a("v_lshrrev_b32 v16, 3, v1"); a("v_and_b32 v17, 7, v1")
    a("v_lshlrev_b32 v18, 12, v16"); a("v_lshl_add_u32 v18, v17, 4, v18")
    a("v_lshlrev_b32 v19, 7, v16"); a("s_lshl_b32 s45, s36, 13"); a("v_add_u32 v19, s45, v19")
    for z in range(8):
        a(f"v_xor_b32 v20, {z}, v17"); a(f"v_lshl_add_u32 v20, v20, 4, v19")
        a(f"ds_read_b128 v[{32+4*z}:{32+4*z+3}], v20 offset:{z*1024}")
    a("s_lshl_b32 s45, s36, 18"); a("s_lshl_b32 s46, s39, 7"); a("s_add_u32 s45, s45, s46"); a(f"s_add_u32 s45, s45, {G.WS_UT}")
    a("v_lshrrev_b32 v24, 5, v1"); a("v_bfe_u32 v25, v1, 4, 1"); a("v_bfe_u32 v26, v1, 2, 2"); a("v_bfe_u32 v27, v1, 1, 1"); a("v_and_b32 v28, 1, v1")
    a("s_and_b32 s43, s36, 3")
    a("v_xor_b32 v21, s43, v26"); a("v_lshlrev_b32 v21, 2, v21"); a("v_lshl_add_u32 v21, v25, 1, v21"); a("v_add_u32 v21, v21, v27")
    a("v_lshlrev_b32 v21, 4, v21"); a("v_lshl_add_u32 v21, v28, 3, v21")
    a("v_lshl_add_u32 v22, v24, 2, v26"); a("v_lshl_add_u32 v21, v22, 10, v21")
    a("s_and_b32 s43, s36, 4"); a("s_lshl_b32 s43, s43, 6"); a("s_add_u32 s43, s43, 65536"); a("v_add_u32 v21, s43, v21")
    for y in range(2):
        for sp in range(4):
            b = 64 + 4*(4*y+sp)
            for rd in range(2):
                a(f"ds_read_b64_tr_b16 v[{b+2*rd}:{b+2*rd+1}], v21 offset:{sp*16384 + rd*8192 + y*512}")
    a("s_waitcnt lgkmcnt(0)")
    for z in range(8):
        a(f"s_add_u32 s46, s45, {z*32768}")
        a(f"buffer_store_dwordx4 v[{32+4*z}:{32+4*z+3}], v18, s[20:23], s46 offen sc1")
    labn = a.newlabel("A_NOWD")
    a("s_cmp_ge_u32 s39, 28"); a(f"s_cbranch_scc1 {labn}")
    a.skip_begin()
    a("s_mul_i32 s44, s36, 112"); a("s_lshl_b32 s45, s39, 2"); a("s_add_u32 s44, s44, s45"); a("s_lshl_b32 s44, s44, 10")
    a(f"s_add_u32 s44, s44, {G.WS_WDF}")
    for y in range(2):
        if y: a(f"s_add_u32 s44, s44, {8*112*1024}")
        for sp in range(4):
            b = 64 + 4*(4*y+sp)
            a(f"buffer_store_dwordx4 v[{b}:{b+3}], v2, s[20:23], s44 offen offset:{sp*1024} sc1")
    a.skip_end()
    a.label(labn)
    stamp(a, 4)
    a("s_waitcnt vmcnt(0)")
    a("v_mov_b32 v16, 124"); a("v_mov_b32 v17, 1")
    poll(a, "A_IPOLL", 24, 16, 17, 18)
    a("s_barrier")
    a("s_lshl_b32 s41, s39, 2"); a(f"s_add_u32 s41, s41, {F_A}")
    only_wave0(a, lambda: set_flag_dword(a, "s41"))
    stamp(a, 5)

def phaseB(a):
    a("s_load_dwordx16 s[40:55], s[0:1], 0")
    a("s_load_dwordx2 s[56:57], s[0:1], 64")
    a("s_load_dwordx2 s[58:59], s[0:1], 104")
    a("s_lshl_b32 s39, s37, 2"); a("s_lshr_b32 s3, s38, 3"); a("s_add_u32 s39, s39, s3")
    a("s_and_b32 s3, s38, 7")
    a(f"v_mov_b32 v2, {L_CNT}"); a("v_mov_b32 v3, 0")
    a("v_and_b32 v4, 15, v1"); a("v_lshl_add_u32 v2, v4, 2, v2")
    a("ds_write_b32 v2, v3")
    a("s_waitcnt lgkmcnt(0)")
    srd(a, 8, 40, 41, 2048*512*2)
    srd(a, 12, 58, 59, 2048*512*2)
    a("v_lshrrev_b32 v5, 3, v1"); a("v_lshlrev_b32 v5, 10, v5")
    a("v_and_b32 v6, 7, v1"); a("v_lshl_add_u32 v5, v6, 4, v5")
    a("s_lshl_b32 s34, s39, 16"); a("s_lshl_b32 s35, s36, 13"); a("s_add_u32 s34, s34, s35")
    a("s_lshl_b32 s35, s3, 7"); a("s_add_u32 s34, s34, s35")
    a("buffer_load_dwordx4 v[8:11], v5, s[8:11], s34 offen")
    a("s_barrier")
    a("s_cmp_ge_u32 s36, 4")
    a("s_cbranch_scc1 K2_CONV")
    DEPTH = 8
    a("v_and_b32 v14, 31, v1"); a("v_lshlrev_b32 v12, 2, v14")
    a("s_lshl_b32 s26, s37, 7"); a(f"s_add_u32 s26, s26, {F_H}"); a(f"v_mov_b32 v13, {F_A}"); a("v_mov_b32 v15, s26")
    a("v_cmp_gt_u32 vcc, 32, v1"); a("v_cndmask_b32 v13, v13, v15, vcc"); a("v_add_u32 v12, v12, v13")
    a("v_cmp_gt_u32 vcc, 28, v14"); a("v_mov_b32 v13, 0"); a("v_mov_b32 v15, 1"); a("v_cndmask_b32 v13, v13, v15, vcc")
    poll(a, "B_GPOLL", 20, 12, 13, 14, sleep=1)
    stamp(a, 6)
    a("v_lshlrev_b32 v2, 4, v1")
    for q in range(7): a(f"v_add_u32 v{12+q}, {q*4096}, v2")
    a("s_mul_i32 s26, s39, 224"); a("s_mul_i32 s27, s36, 28"); a("s_add_u32 s26, s26, s27"); a("s_lshl_b32 s26, s26, 10")
    if G.WS_HF: a(f"s_add_u32 s26, s26, {G.WS_HF}")
    a("s_add_u32 s28, s26, 114688")
    a("s_mul_i32 s29, s3, 224"); a("s_add_u32 s29, s29, s27"); a("s_lshl_b32 s29, s29, 10"); a(f"s_add_u32 s29, s29, {G.WS_WDF}")
    a("s_add_u32 s30, s29, 114688")
    FR = 64; AC = 192
    def loads(s):
        b = FR + (s % DEPTH)*16
        for j, sr in enumerate(["s26","s28","s29","s30"]):
            a(f"buffer_load_dwordx4 v[{b+4*j}:{b+4*j+3}], v{12+s//4}, s[20:23], {sr} offen offset:{(s%4)*1024} sc1")
    for s in range(DEPTH): loads(s)
    for s in range(28):
        a(f"s_waitcnt vmcnt({4*min(DEPTH-1, 27-s)})")
        b = FR + (s % DEPTH)*16
        for nt2 in range(2):
            for rt in range(2):
                ac = AC + 16*(2*nt2+rt)
                c = "0" if s == 0 else f"v[{ac}:{ac+15}]"
                a(f"v_mfma_f32_32x32x16_bf16 v[{ac}:{ac+15}], v[{b+8+4*nt2}:{b+11+4*nt2}], v[{b+4*rt}:{b+3+4*rt}], {c}")
        if s + DEPTH < 28: loads(s + DEPTH)
    stamp(a, 7)
    a("v_and_b32 v2, 31, v1"); a(f"v_mul_u32_u24 v2, {P_PITCH}, v2")
    a("v_lshrrev_b32 v3, 5, v1"); a("v_lshl_add_u32 v2, v3, 4, v2")
    a(f"s_mul_i32 s26, s36, {64*P_PITCH}"); a(f"s_add_u32 s26, s26, {L_P}")
    a("v_add_u32 v2, s26, v2")
    for nt2 in range(2):
        for rt in range(2):
            ac = AC + 16*(2*nt2+rt)
            for q in range(4):
                a(f"ds_write_b128 v2, v[{ac+4*q}:{ac+4*q+3}] offset:{rt*32*P_PITCH + (32*nt2+8*q)*4}")
    a("s_waitcnt lgkmcnt(0)")
    stamp(a, 8)
    a("s_branch K2_FINAL")

    a.label("K2_CONV")
    a("s_setprio 2")
    a("s_sub_u32 s24, s36, 4")
    a("s_lshr_b32 s25, s24, 1")
    a("s_and_b32 s26, s24, 1")
    a("s_lshl_b32 s27, s2, 1"); a("s_add_u32 s27, s27, s25")
    a("s_lshl_b32 s28, s27, 8"); a("s_lshl_b32 s29, s26, 7"); a("s_add_u32 s28, s28, s29")
    a("v_lshl_add_u32 v2, v1, 1, s28")
    for i, base in enumerate((42, 44, 46, 48, 50, 52)):
        a(f"global_load_ushort v{12+i}, v2, s[{base}:{base+1}]")
    a("s_lshl_b32 s28, s2, 2")
    a("s_load_dword s30, s[54:55], s28")
    a("s_load_dword s31, s[56:57], s28")
    UB = 200
    a("v_and_b32 v3, 15, v1"); a("v_lshrrev_b32 v4, 4, v1")
    a("v_lshlrev_b32 v7, 4, v1")
    a(f"s_mul_i32 s16, s24, {XYSZ}")
    a("s_andn2_b32 s17, s24, 1"); a(f"s_mul_i32 s17, s17, {XYSZ}")
    a(f"s_add_u32 s18, s17, {XYSZ}")
    EA = 224
    a("s_lshl_b32 s28, s26, 10")
    a("v_lshlrev_b32 v6, 4, v1"); a("v_add_u32 v6, s28, v6"); a("v_sub_u32 v6, 2047, v6")
    for e in range(17):
        a(f"v_subrev_u32 v{EA+e}, {e}, v6")
    for e in range(0, 17, 2):
        e2 = min(e+1, 16)
        a(f"v_cvt_f32_i32 v18, v{EA+e}"); a(f"v_cvt_f32_i32 v19, v{EA+e2}")
        a("v_cvt_pk_bf16_f32 v18, v18, v19")
        a("v_lshrrev_b32 v19, 16, v18"); a("v_and_b32 v18, 0xffff, v18")
        a("v_subrev_u32 v18, 17024, v18"); a("v_subrev_u32 v19, 17024, v19")
        a(f"v_cmp_gt_i32 vcc, 128, v{EA+e}")
        a(f"v_cndmask_b32 v{EA+e}, v18, v{EA+e}, vcc")
        if e2 != e:
            a(f"v_cmp_gt_i32 vcc, 128, v{EA+e2}")
            a(f"v_cndmask_b32 v{EA+e2}, v19, v{EA+e2}, vcc")
    a(f"v_cmp_gt_i32 vcc, 0, v{EA+16}")
    a("v_mov_b32 v18, 641")
    a(f"v_cndmask_b32 v{EA+16}, v{EA+16}, v18, vcc")
    for e in range(17):
        a(f"v_lshl_add_u32 v{EA+e}, v{EA+e}, 1, s17")
    stamp(a, 6)
    a("s_waitcnt vmcnt(0) lgkmcnt(0)")
    a("s_lshl_b32 s28, s25, 4")
    a("s_lshr_b32 s30, s30, s28"); a("s_lshl_b32 s30, s30, 16")
    a("s_lshr_b32 s31, s31, s28"); a("s_lshl_b32 s31, s31, 16")
    for i in range(6): a(f"v_lshlrev_b32 v{12+i}, 16, v{12+i}")
    a(f"v_mov_b32 v18, {G.LOG2E:#x}"); a("v_mul_f32 v18, s30, v18"); a("v_exp_f32 v18, v18")
    bf16r(a, 18, 18)
    a("v_mul_f32 v12, v18, v12")
    a("v_mul_f32 v13, v18, v13")
    a("v_mul_f32 v14, v18, v14"); a("v_mul_f32 v15, v18, v15")
    a(f"v_mul_f32 v12, {G.LOG2E:#x}, v12")
    a(f"v_mul_f32 v13, {f2u(0.15915494309189535):#x}, v13")
    F = lambda c: 20 + 2*(c-1)
    W1 = 34; V1 = 36; W2 = 38; V2 = 40; CB = 42
    def cexp(d, mult):
        if mult != 1:
            a(f"v_mul_f32 v48, {f2u(float(mult)):#x}, v12"); a(f"v_mul_f32 v49, {f2u(float(mult)):#x}, v13")
        else:
            a("v_mov_b32 v48, v12"); a("v_mov_b32 v49, v13")
        a("v_fract_f32 v49, v49")
        a("v_exp_f32 v48, v48")
        a(f"v_cos_f32 v{d}, v49"); a(f"v_sin_f32 v{d+1}, v49")
        a(f"v_mul_f32 v{d}, v{d}, v48"); a(f"v_mul_f32 v{d+1}, v{d+1}, v48")
    cexp(F(1), 1); cexp(W1, 8); cexp(V1, 128)
    def emit_cmuls(tasks):
        T0 = 50
        pairs = [cmul(None, d, x, y, T0 + 2*(k % 6)) for k, (d, x, y) in enumerate(tasks)]
        for i1, _ in pairs: a(i1)
        for _, i2 in pairs: a(i2)
    Y = lambda b: 64 + 2*b
    Gq = lambda q: 96 + 2*q
    a(f"v_mov_b32 v{Y(0)}, 1.0"); a(f"v_mov_b32 v{Y(0)+1}, 0")
    a(f"v_mov_b32 v{Y(1)}, v{W1}"); a(f"v_mov_b32 v{Y(1)+1}, v{W1+1}")
    emit_cmuls([(Gq(0), 16, 14), (F(2), F(1), F(1)), (W2, W1, W1), (V2, V1, V1)])
    emit_cmuls([(Gq(1), Gq(0), V1), (F(3), F(2), F(1)), (F(4), F(2), F(2)), (Y(2), Y(0), W2), (Y(3), Y(1), W2)])
    emit_cmuls([(Gq(2), Gq(0), V2), (Gq(3), Gq(1), V2), (F(5), F(4), F(1)), (F(6), F(4), F(2)), (F(7), F(4), F(3)), (Y(4), Y(2), W2)])
    rest = []
    for k in range(2, 8):
        t = [(Gq(2*k), Gq(2*k-2), V2)]
        if 2*k+1 <= 16: t.append((Gq(2*k+1), Gq(2*k-1), V2))
        yb = 2*k+1
        if yb <= 15: t.append((Y(yb), Y(yb-2), W2))
        if yb+1 <= 15: t.append((Y(yb+1), Y(yb-1), W2))
        emit_cmuls(t)
    emit_cmuls([(Gq(16), Gq(14), V2), (Y(15), Y(13), W2)])
    a("v_lshlrev_b32 v6, 2, v1"); a("v_add_u32 v6, s16, v6")
    pk = [0]
    def put(row, reg, neg):
        t = 56 + (pk[0] % 4); pk[0] += 1
        a(f"v_cvt_pk_bf16_f32 v{t}, v{reg}, {'-' if neg else ''}v{reg+1}")
        a(f"ds_write_b32 v6, v{t} offset:{row*288}")
    for b in range(16): put(41+b, Y(b), False)
    put(0, Gq(0), True); put(8, Gq(1), True); put(16, Gq(2), True); put(20, Gq(3), True)
    for q in range(4): put(24+2*q, Gq(4+q), True)
    for q in range(8): put(32+q, Gq(8+q), True)
    put(40, Gq(16), True)
    ex = []
    for c in range(1, 8): ex.append((c, 0, c)); ex.append((8+c, 1, c))
    for c in range(1, 4): ex.append((16+c, 2, 2*c)); ex.append((20+c, 3, 2*c))
    for q in range(4): ex.append((24+2*q+1, 4+q, 4))
    XT = 130
    for i in range(0, len(ex), 6):
        grp = ex[i:i+6]
        emit_cmuls([(XT+2*k, Gq(g), F(c)) for k, (row, g, c) in enumerate(grp)])
        for k, (row, g, c) in enumerate(grp): put(row, XT+2*k, True)
    a("v_and_b32 v48, 31, v1"); a("v_lshlrev_b32 v48, 2, v48"); a(f"v_add_u32 v48, {F_A}, v48"); a("v_mov_b32 v49, 1")
    poll(a, "B_UPOLL", 20, 48, 49, 47, sleep=1)
    a("s_lshl_b32 s28, s27, 12"); a("s_lshl_b32 s35, s26, 11"); a("s_add_u32 s28, s28, s35"); a(f"s_add_u32 s29, s28, {G.WS_UT}")
    a("buffer_load_dwordx4 v[184:187], v7, s[20:23], s29 offen sc1")
    a("buffer_load_dwordx4 v[188:191], v7, s[20:23], s29 offen offset:1024 sc1")
    a("v_mul_u32_u24 v44, 288, v3"); a("v_lshl_add_u32 v44, v4, 4, v44"); a("v_add_u32 v44, s16, v44")
    a("s_waitcnt lgkmcnt(0)")
    AF = 64; BF = 112; KA = 128
    for ks in range(4):
        a(f"ds_read_b128 v[{BF+4*ks}:{BF+4*ks+3}], v44 offset:{41*288 + ks*64}")
        for mt in range(3):
            b = AF + 4*(3*ks+mt)
            a(f"ds_read_b128 v[{b}:{b+3}], v44 offset:{mt*16*288 + ks*64}")
    a("s_waitcnt lgkmcnt(0)")
    for ks in range(4):
        for mt in range(3):
            b = AF + 4*(3*ks+mt)
            c = "0" if ks == 0 else f"v[{KA+4*mt}:{KA+4*mt+3}]"
            a(f"v_mfma_f32_16x16x32_bf16 v[{KA+4*mt}:{KA+4*mt+3}], v[{b}:{b+3}], v[{BF+4*ks}:{BF+4*ks+3}], {c}")
    def set_flag(off_sgpr_expr_fn):
        pass
    a(f"v_mov_b32 v45, {L_CNT}")
    a("s_lshl_b32 s28, s25, 2"); a("v_add_u32 v45, s28, v45")
    a("v_mov_b32 v46, 1")
    a("v_mul_u32_u24 v47, 48, v1"); a("v_add_u32 v47, s18, v47")
    labE = "K2_EVEN"; labX = "K2_EXPAND"
    a("s_cmp_eq_u32 s26, 0")
    a(f"s_cbranch_scc1 {labE}")
    for mt in range(3): a(f"ds_write_b128 v47, v[{KA+4*mt}:{KA+4*mt+3}] offset:{16*mt}")
    a("s_waitcnt lgkmcnt(0)")
    a("ds_write_b32 v45, v46")
    def spin(vaddr, off, lab):
        a.label(lab)
        a(f"ds_read_b32 v48, v{vaddr} offset:{off}")
        a("s_waitcnt lgkmcnt(0)")
        a("v_readfirstlane_b32 s28, v48")
        a("s_cmp_eq_u32 s28, 0")
        a(f"s_cbranch_scc1 {lab}")
    spin(45, 8, "K2_SP2")
    a(f"s_branch {labX}")
    a.label(labE)
    a.barrier_hazard()
    spin(45, 0, "K2_SP1")
    for mt in range(3): a(f"ds_read_b128 v[{64+4*mt}:{64+4*mt+3}], v47 offset:{16*mt}")
    a("v_lshrrev_b32 v48, 1, v4"); a("v_lshlrev_b32 v48, 7, v48")
    a("v_and_b32 v49, 1, v4"); a("v_lshl_add_u32 v48, v49, 2, v48"); a("v_lshl_add_u32 v48, v3, 3, v48")
    a("v_lshl_add_u32 v48, v48, 1, s17")
    a("v_lshlrev_b32 v49, 6, v4"); a("v_add_u32 v49, 256, v49")
    a("v_cmp_gt_u32 vcc, 2, v4")
    a("v_lshlrev_b32 v50, 2, v3"); a("v_lshlrev_b32 v51, 1, v3")
    a("v_cndmask_b32 v50, v51, v50, vcc")
    a("v_add_u32 v49, v49, v50"); a("v_lshl_add_u32 v49, v49, 1, s17")
    a("v_mov_b32 v50, 64"); a("v_mov_b32 v51, 4"); a("v_cndmask_b32 v50, v50, v51, vcc"); a("v_add_u32 v50, v49, v50")
    a("v_lshlrev_b32 v51, 6, v4"); a("v_add_u32 v51, v51, v3"); a("v_add_u32 v51, 512, v51")
    a("v_mov_b32 v52, 704"); a("v_cndmask_b32 v51, v52, v51, vcc")
    a("v_cmp_eq_u32 vcc, 32, v1"); a("v_mov_b32 v52, 640"); a("v_cndmask_b32 v51, v51, v52, vcc")
    a("v_lshl_add_u32 v51, v51, 1, s17")
    a("s_waitcnt lgkmcnt(0)")
    for i in range(12): a(f"v_add_f32 v{KA+i}, v{KA+i}, v{64+i}")
    a("v_cmp_eq_u32 vcc, 0, v1"); a("v_mov_b32 v52, 0"); a("v_mov_b32 v53, s31"); a("v_cndmask_b32 v52, v52, v53, vcc")
    a(f"v_add_f32 v{KA}, v{KA}, v52")
    for i in range(6): a(f"v_cvt_pk_bf16_f32 v{76+i}, v{KA+2*i}, v{KA+2*i+1}")
    a("ds_write_b64 v48, v[76:77]")
    a("ds_write_b32 v49, v78"); a("ds_write_b32 v50, v79")
    a("ds_write_b16 v51, v80"); a("ds_write_b16_d16_hi v51, v80 offset:32")
    a("ds_write_b16 v51, v81 offset:64"); a("ds_write_b16_d16_hi v51, v81 offset:96")
    a("v_mov_b32 v52, 0"); a("v_mov_b32 v53, s17"); a("ds_write_b16 v53, v52 offset:1282")
    a("s_waitcnt lgkmcnt(0)")
    a("ds_write_b32 v45, v46 offset:8")
    a.label(labX)
    a.barrier_hazard()
    DD = 88
    for e in range(17):
        a(f"ds_read_u16 v{DD+e}, v{EA+e}")
    a("s_lshl_b32 s28, s26, 11"); a("s_add_u32 s28, s28, s18")
    a("v_lshl_add_u32 v48, v1, 5, s28")
    a("v_mov_b32 v52, 0")
    a("v_and_b32 v49, 15, v1"); a("v_lshl_add_u32 v49, v49, 2, s18")
    a("s_waitcnt lgkmcnt(0)")
    for i in range(8): a(f"v_lshl_or_b32 v{64+i}, v{DD+2*i+1}, 16, v{DD+2*i}")
    for i in range(8): a(f"v_lshl_or_b32 v{76+i}, v{DD+2*i+2}, 16, v{DD+2*i+1}")
    a(f"ds_write_b128 v48, v[64:67] offset:{R0_OFF}"); a(f"ds_write_b128 v48, v[68:71] offset:{R0_OFF+16}")
    a(f"ds_write_b128 v48, v[76:79] offset:{R1_OFF}"); a(f"ds_write_b128 v48, v[80:83] offset:{R1_OFF+16}")
    a(f"ds_write_b32 v49, v52 offset:{R0_OFF+4096}"); a(f"ds_write_b32 v49, v52 offset:{R1_OFF+4096}")
    a("s_lshl_b32 s28, s25, 12"); a("s_lshl_b32 s35, s26, 11"); a("s_add_u32 s28, s28, s35"); a(f"s_add_u32 s28, s28, {L_U}"); a("v_add_u32 v49, s28, v7")
    a("s_waitcnt vmcnt(0)")
    a("ds_write_b128 v49, v[184:187]"); a("ds_write_b128 v49, v[188:191] offset:1024")
    a("s_waitcnt lgkmcnt(0)")
    a(f"v_mov_b32 v48, {L_CNT+16}")
    a("s_lshl_b32 s28, s24, 2"); a("v_add_u32 v49, s28, v48")
    a("s_xor_b32 s28, s28, 4"); a("v_add_u32 v50, s28, v48")
    a("ds_write_b32 v49, v46")
    spin(50, 0, "K2_SP3")
    stamp(a, 7)
    if OPT.get("dumpK"):
        a("s_lshl_b32 s28, s26, 11"); a("s_add_u32 s28, s28, s18")
        a("v_lshl_add_u32 v48, v1, 5, s28")
        a(f"ds_read_b128 v[64:67], v48 offset:{R0_OFF}"); a(f"ds_read_b128 v[68:71], v48 offset:{R0_OFF+16}")
        a(f"ds_read_b128 v[72:75], v48 offset:{R1_OFF}"); a(f"ds_read_b128 v[76:79], v48 offset:{R1_OFF+16}")
        a("s_waitcnt lgkmcnt(0)")
        a("v_lshlrev_b32 v48, 5, v1")
        a("s_lshl_b32 s28, s27, 13"); a("s_lshl_b32 s29, s26, 11"); a("s_add_u32 s28, s28, s29"); a(f"s_add_u32 s28, s28, {0x1000000}")
        a("s_mov_b32 s22, 0x2000000")
        a("buffer_store_dwordx4 v[64:67], v48, s[20:23], s28 offen"); a("buffer_store_dwordx4 v[68:71], v48, s[20:23], s28 offen offset:16")
        a("s_add_u32 s28, s28, 4096")
        a("buffer_store_dwordx4 v[72:75], v48, s[20:23], s28 offen"); a("buffer_store_dwordx4 v[76:79], v48, s[20:23], s28 offen offset:16")
        a("s_waitcnt vmcnt(0)")
    a("v_lshlrev_b32 v48, 3, v4"); a("v_sub_u32 v48, v48, v3"); a("v_add_u32 v48, 2047, v48"); a("v_and_b32 v48, -2, v48"); a("v_lshlrev_b32 v48, 1, v48")
    a("v_and_b32 v49, 1, v3"); a("v_xor_b32 v49, 1, v49"); a("v_mul_u32_u24 v49, 4160, v49")
    a("v_add_u32 v48, v48, v49")
    a(f"s_add_u32 s28, s18, {R0_OFF}"); a("s_lshl_b32 s29, s26, 5"); a("s_sub_u32 s28, s28, s29")
    a("v_add_u32 v48, s28, v48")
    BZ = 52
    for z in range(4): a(f"v_subrev_u32 v{BZ+z}, {32*(32*z+30)}, v48")
    FRG = 64
    ACC = 112
    for i in range(16): a(f"v_mov_b32 v{ACC+i}, 0")
    def fr(q): return FRG + 4*(q % 12)
    def fread(q):
        z = q >> 4; o = 8*(32*z + 30 - 2*q); b = fr(q)
        a(f"ds_read2_b32 v[{b}:{b+1}], v{BZ+z} offset0:{o} offset1:{o+1}")
        a(f"ds_read2_b32 v[{b+2}:{b+3}], v{BZ+z} offset0:{o+2} offset1:{o+3}")
    a("v_lshlrev_b32 v49, 8, v3"); a("v_lshl_add_u32 v49, v4, 4, v49"); a("s_lshl_b32 s28, s25, 12"); a(f"s_add_u32 s28, s28, {L_U}"); a("v_add_u32 v49, s28, v49")
    for h in range(4): a(f"ds_read_b128 v[{UB+4*h}:{UB+4*h+3}], v49 offset:{64*h}")
    for q in range(4): fread(q)
    for dl in range(16):
        a("s_waitcnt lgkmcnt(0)")
        if dl < 15:
            for q in range(4*(dl+1), 4*(dl+1)+4): fread(q)
        for h in (3, 2, 1, 0):
            for j in range(4):
                m = j - h
                q = 4*dl + m
                if q < 0: continue
                b = fr(q)
                a(f"v_mfma_f32_16x16x32_bf16 v[{ACC+4*j}:{ACC+4*j+3}], v[{b}:{b+3}], v[{UB+4*h}:{UB+4*h+3}], v[{ACC+4*j}:{ACC+4*j+3}]")
            if dl < 15:
                for i in range(4):
                    a(f"v_mov_b32_dpp v{UB+4*h+i}, v{UB+4*h+i} row_shr:1 row_mask:0xf bank_mask:0xf bound_ctrl:0")
    stamp(a, 8)
    a("v_lshlrev_b32 v48, 8, v3"); a("v_lshl_add_u32 v48, v4, 3, v48")
    a("s_lshl_b32 s28, s26, 5"); a("s_add_u32 s28, s28, s17"); a(f"s_add_u32 s28, s28, {SROW_OFF}"); a("v_add_u32 v48, s28, v48")
    for j in range(4):
        y = ACC + 4*j
        a(f"v_cvt_pk_bf16_f32 v{64+2*j}, v{y}, v{y+1}"); a(f"v_cvt_pk_bf16_f32 v{65+2*j}, v{y+2}, v{y+3}")
    for j in range(4): a(f"ds_write_b64 v48, v[{64+2*j}:{65+2*j}] offset:{64*j}")
    a("s_waitcnt lgkmcnt(0)")
    a(f"v_mov_b32 v48, {L_CNT+40}")
    a("s_lshl_b32 s28, s24, 2"); a("v_add_u32 v49, s28, v48")
    a("s_xor_b32 s28, s28, 4"); a("v_add_u32 v50, s28, v48")
    a("ds_write_b32 v49, v46")
    spin(50, 0, "K2_SP5")
    a("s_lshl_b32 s28, s26, 11"); a("s_add_u32 s29, s28, s17"); a(f"s_add_u32 s29, s29, {SROW_OFF}")
    a("v_add_u32 v48, s29, v7")
    a("ds_read_b128 v[64:67], v48"); a("ds_read_b128 v[68:71], v48 offset:1024")
    a("s_lshl_b32 s29, s27, 12"); a("s_add_u32 s29, s29, s28"); a(f"s_add_u32 s29, s29, {G.WS_ST}")
    a("s_waitcnt lgkmcnt(0)")
    a("buffer_store_dwordx4 v[64:67], v7, s[20:23], s29 offen sc1")
    a("buffer_store_dwordx4 v[68:71], v7, s[20:23], s29 offen offset:1024 sc1")
    a("s_waitcnt vmcnt(0)")
    stamp(a, 9)
    a(f"v_mov_b32 v48, {L_CNT+32}")
    a("s_mov_b64 exec, 1")
    a("ds_add_rtn_u32 v49, v48, v46")
    a("s_waitcnt lgkmcnt(0)")
    a("v_readfirstlane_b32 s28, v49")
    a("s_mov_b64 exec, -1")
    labn = "K2_NOPUB"
    a("s_cmp_lg_u32 s28, 3"); a(f"s_cbranch_scc1 {labn}")
    a.skip_begin()
    a("s_lshr_b32 s28, s2, 5"); a("s_lshl_b32 s28, s28, 7"); a("s_and_b32 s29, s2, 31"); a("s_lshl_b32 s29, s29, 2")
    a("s_add_u32 s28, s28, s29"); a(f"s_add_u32 s28, s28, {F_S}")
    a("v_mov_b32 v48, 0")
    a("s_mov_b64 exec, 1")
    a("buffer_store_dword v46, v48, s[20:23], s28 offen sc1")
    a("s_mov_b64 exec, -1")
    a.skip_end()
    a.label(labn)
    a("v_and_b32 v48, 31, v1"); a("v_lshlrev_b32 v48, 2, v48")
    a("s_lshl_b32 s28, s3, 7"); a(f"s_add_u32 s28, s28, {F_S}")
    a.label("K2_POLL")
    a("buffer_load_dword v49, v48, s[20:23], s28 offen sc1")
    a("s_waitcnt vmcnt(0)")
    a("v_cmp_ne_u32 vcc, 1, v49")
    a("s_nop 4")
    a("s_cbranch_vccz K2_POLLED")
    a("s_sleep 4")
    a("s_branch K2_POLL")
    a.label("K2_POLLED")
    stamp(a, 10)
    a("v_lshrrev_b32 v48, 3, v1"); a("v_and_b32 v49, 7, v1")
    a("v_lshlrev_b32 v50, 12, v48"); a("v_lshl_add_u32 v50, v49, 4, v50")
    a("s_lshl_b32 s28, s3, 18"); a("s_lshl_b32 s29, s24, 16"); a("s_add_u32 s28, s28, s29")
    a("s_lshl_b32 s29, s39, 7"); a("s_add_u32 s28, s28, s29"); a(f"s_add_u32 s28, s28, {G.WS_ST}")
    a("s_add_u32 s29, s28, 32768")
    a("buffer_load_dwordx4 v[64:67], v50, s[20:23], s28 offen sc1")
    a("buffer_load_dwordx4 v[68:71], v50, s[20:23], s29 offen sc1")
    a(f"v_mul_u32_u24 v51, {STL_PITCH}, v48"); a("v_lshl_add_u32 v51, v49, 4, v51")
    a(f"s_mul_i32 s28, s24, {16*STL_PITCH}"); a(f"s_add_u32 s28, s28, {L_STL}"); a("v_add_u32 v51, s28, v51")
    a("s_waitcnt vmcnt(0)")
    a("ds_write_b128 v51, v[64:67]"); a(f"ds_write_b128 v51, v[68:71] offset:{8*STL_PITCH}")
    a("s_waitcnt lgkmcnt(0)")
    stamp(a, 11)
    a.label("K2_FINAL")
    a.barrier_hazard()
    a("s_barrier")
    a("v_lshrrev_b32 v2, 3, v1"); a("s_lshl_b32 s28, s36, 3"); a("v_add_u32 v2, s28, v2")
    a("v_and_b32 v3, 7, v1")
    a(f"v_mul_u32_u24 v4, {P_PITCH}, v2"); a("v_lshl_add_u32 v4, v3, 5, v4"); a(f"v_add_u32 v4, {L_P}, v4")
    for w in range(4):
        a(f"ds_read_b128 v[{16+8*w}:{19+8*w}], v4 offset:{w*64*P_PITCH}")
        a(f"ds_read_b128 v[{20+8*w}:{23+8*w}], v4 offset:{w*64*P_PITCH+16}")
    a(f"v_mul_u32_u24 v6, {8*STL_PITCH}, v3"); a("v_lshl_add_u32 v6, v2, 1, v6"); a(f"v_add_u32 v6, {L_STL}, v6")
    for e in range(8):
        a(f"ds_read_u16 v{48+e}, v6 offset:{e*STL_PITCH}")
    a("s_waitcnt lgkmcnt(0)")
    for e in range(8): a(f"v_add_f32 v{16+e}, v{16+e}, v{24+e}")
    for e in range(8): a(f"v_add_f32 v{32+e}, v{32+e}, v{40+e}")
    for e in range(8): a(f"v_add_f32 v{16+e}, v{16+e}, v{32+e}")
    for d in range(4): a(f"v_cvt_pk_bf16_f32 v{24+d}, v{16+2*d}, v{17+2*d}")
    for d in range(4):
        a(f"v_lshlrev_b32 v{16+2*d}, 16, v{24+d}"); a(f"v_and_b32 v{17+2*d}, 0xffff0000, v{24+d}")
    for e in range(8): a(f"v_mul_f32 v{24+e}, {f2u(-1.4426950408889634):#x}, v{16+e}")
    for e in range(8): a(f"v_exp_f32 v{24+e}, v{24+e}")
    for e in range(8): a(f"v_add_f32 v{24+e}, 1.0, v{24+e}")
    for e in range(8): a(f"v_rcp_f32 v{24+e}, v{24+e}")
    for e in range(8): a(f"v_mul_f32 v{16+e}, v{16+e}, v{24+e}")
    for d in range(4): a(f"v_cvt_pk_bf16_f32 v{24+d}, v{16+2*d}, v{17+2*d}")
    for d in range(4):
        a(f"v_lshlrev_b32 v{16+2*d}, 16, v{24+d}"); a(f"v_and_b32 v{17+2*d}, 0xffff0000, v{24+d}")
        a(f"v_lshlrev_b32 v{32+2*d}, 16, v{48+2*d}"); a(f"v_lshlrev_b32 v{33+2*d}, 16, v{49+2*d}")
    for e in range(8): a(f"v_mul_f32 v{16+e}, v{16+e}, v{32+e}")
    for d in range(4): a(f"v_cvt_pk_bf16_f32 v{24+d}, v{16+2*d}, v{17+2*d}")
    a("s_waitcnt vmcnt(0)")
    for d in range(4):
        a(f"v_lshlrev_b32 v{16+2*d}, 16, v{24+d}"); a(f"v_and_b32 v{17+2*d}, 0xffff0000, v{24+d}")
        a(f"v_lshlrev_b32 v{32+2*d}, 16, v{8+d}"); a(f"v_and_b32 v{33+2*d}, 0xffff0000, v{8+d}")
    for e in range(8): a(f"v_add_f32 v{16+e}, v{16+e}, v{32+e}")
    for d in range(4): a(f"v_cvt_pk_bf16_f32 v{24+d}, v{16+2*d}, v{17+2*d}")
    a("buffer_store_dwordx4 v[24:27], v5, s[12:15], s34 offen")
    stamp(a, 12)
    stamp_store(a, 13, 0)


def gen_mk():
    a = Asm()
    a("s_cmp_ge_u32 s2, 256")
    a("s_cbranch_scc1 MK_END")
    stamp(a, 0)
    a("s_load_dwordx2 s[4:5], s[0:1], 0")
    a("s_load_dwordx4 s[28:31], s[0:1], 80")
    a("s_load_dwordx2 s[6:7], s[0:1], 96")
    a("s_load_dwordx4 s[32:35], s[0:1], 112")
    a("v_lshrrev_b32 v1, 6, v0")
    a("v_readfirstlane_b32 s36, v1")
    a("v_and_b32 v1, 63, v0")
    a("s_and_b32 s37, s2, 7")
    a("s_lshr_b32 s38, s2, 3")
    a("s_waitcnt lgkmcnt(0)")
    srd(a, 8, 4, 5, 2048*512*2)
    srd(a, 12, 28, 29, 512*1792*2)
    srd(a, 16, 30, 31, 512*1792*2)
    srd(a, 20, 34, 35, G.WS_END)
    a("s_cmp_ge_u32 s38, 28")
    a("s_cbranch_scc1 MK_AUX")
    phaseA_gemm1(a)
    a("s_branch MK_B")
    a.label("MK_AUX")
    a.barrier_hazard()
    phaseA_aux(a)
    a.label("MK_B")
    a.barrier_hazard()
    phaseB(a)
    a.label("MK_END")
    a("s_endpgm")
    return a, LDS_TOTAL
```

```python
import sys, os
sys.path.insert(0, os.path.dirname(os.path.abspath(__file__)))
import gen, gen3
out = sys.argv[1] if len(sys.argv) > 1 else "m.s"
for arg in sys.argv[2:]:
    k, v = arg.split("=")
    gen.OPT[k] = int(v)
k, lds = gen3.gen_mk()
gen.build([("recurrent_scan__ssm_conv_s4__swiglu_ffn__prompt_kernel", k, 256, 512, lds)], out)
print("written", out, "nops:", k.total_nops, "lds", lds, "bytes", os.path.getsize(out))
```

```python
import sys, os
sys.path.insert(0, os.path.dirname(os.path.abspath(__file__)))
from asmlib import Asm

WS_HF   = 0x0000000
WS_WDF  = 0x0700000
WS_UT   = 0x08C0000
WS_ST   = 0x0AC0000
WS_FLAG = 0x0CC0000
WS_STATS = 0x0CC4000
WS_CS   = 0x0CC8000
WS_END  = 0x0E00000

LOG2E = 0x3fb8aa3b
def f2u(x):
    import struct
    return struct.unpack("<I", struct.pack("<f", x))[0]

OPT = dict(ldW=1, ldX=1, stats_in_loop=True, cs_in_loop=True, stamp=False)

def srd(a, s, lo, hi, nbytes):
    a(f"s_mov_b32 s{s}, s{lo}")
    a(f"s_mov_b32 s{s+1}, s{hi}")
    a(f"s_mov_b32 s{s+2}, {nbytes:#x}")
    a(f"s_mov_b32 s{s+3}, 0x00020000")

STAMP_BASE = 60
WS_STAMP = 0x0D00000
def stamp(a, i, force=False):
    if OPT.get("stB_off") and 6 <= i <= 12 and not force: return
    if OPT["stamp"]:
        a("s_memtime s[76:77]")
        if i == 0: a("s_memrealtime s[98:99]")
        a("s_waitcnt lgkmcnt(0)")
        a(f"s_mov_b32 s{STAMP_BASE+i}, s76")
def stamp_store(a, n, kidx, srdws=20, wave="s36"):
    if not OPT["stamp"]: return
    a("s_memrealtime s[76:77]")
    a("s_waitcnt vmcnt(0) lgkmcnt(0)")
    a(f"s_lshl_b32 s78, s2, 3"); a(f"s_add_u32 s78, s78, {wave}"); a("s_lshl_b32 s78, s78, 6")
    a(f"s_add_u32 s78, s78, {WS_STAMP + kidx*0x20000}")
    a("v_mov_b32 v1, 0")
    for i in range(n):
        a(f"v_mov_b32 v2, s{STAMP_BASE+i}")
        a(f"buffer_store_dword v2, v1, s[{srdws}:{srdws+3}], s78 offen offset:{4*i}")
        a("s_nop 1")
    a("v_mov_b32 v2, s76")
    a(f"buffer_store_dword v2, v1, s[{srdws}:{srdws+3}], s78 offen offset:60")
    a("s_nop 1")
    a("v_mov_b32 v2, s98")
    a(f"buffer_store_dword v2, v1, s[{srdws}:{srdws+3}], s78 offen offset:56")
    a("s_waitcnt vmcnt(0)")

def bf16r(a, dst, src, tmp=None):
    a(f"v_cvt_pk_bf16_f32 v{dst}, v{src}, v{src}")
    a(f"v_lshlrev_b32 v{dst}, 16, v{dst}")

def gen_k1():
    a = Asm()
    K1_CSP = 131072
    K1_CSF = K1_CSP + 4096
    a("s_cmp_ge_u32 s2, 256")
    a("s_cbranch_scc1 K1_END")
    stamp(a, 0)
    a("s_load_dwordx2 s[4:5], s[0:1], 0")
    a("s_load_dwordx4 s[28:31], s[0:1], 80")
    a("s_load_dwordx2 s[6:7], s[0:1], 96")
    a("s_load_dwordx2 s[32:33], s[0:1], 120")
    a("v_lshrrev_b32 v1, 6, v0")
    a("v_readfirstlane_b32 s36, v1")
    a("v_and_b32 v1, 63, v0")
    a("s_and_b32 s37, s2, 7")
    a("s_lshr_b32 s38, s2, 3")
    a("s_waitcnt lgkmcnt(0)")
    srd(a, 8, 4, 5, 2048*512*2)
    srd(a, 12, 28, 29, 512*1792*2)
    srd(a, 16, 30, 31, 512*1792*2)
    srd(a, 20, 32, 33, WS_END)
    srd(a, 24, 6, 7, 1792*512*2)
    a("s_cmp_ge_u32 s38, 28")
    a("s_cbranch_scc1 K1_AUX")
    a("s_mul_i32 s41, s38, 37")
    a("s_lshr_b32 s41, s41, 8")
    a("s_mul_i32 s42, s41, 7")
    a("s_sub_u32 s42, s38, s42")
    a("s_lshr_b32 s39, s37, 2")
    a("s_lshl_b32 s39, s39, 2")
    a("s_add_u32 s39, s39, s41")
    a("s_and_b32 s40, s37, 3")
    a("s_mul_i32 s40, s40, 7")
    a("s_add_u32 s40, s40, s42")
    a("v_and_b32 v2, 15, v1")
    a("v_lshlrev_b32 v2, 10, v2")
    a("v_lshrrev_b32 v16, 4, v1")
    a("v_lshl_add_u32 v2, v16, 4, v2")
    a("v_lshrrev_b32 v3, 3, v1")
    a("v_mul_u32_u24 v3, 3584, v3")
    a("v_and_b32 v17, 1, v16")
    a("v_lshlrev_b32 v17, 2, v17")
    a("v_and_b32 v18, 7, v1")
    a("v_xor_b32 v17, v17, v18")
    a("v_lshl_add_u32 v3, v17, 4, v3")
    a("s_lshl_b32 s43, s39, 18")
    a("s_lshl_b32 s41, s36, 15")
    a("s_add_u32 s43, s43, s41")
    a("s_add_u32 s44, s43, 16384")
    a("s_mul_i32 s42, s36, 28672")
    a("s_lshl_b32 s41, s40, 7")
    a("s_add_u32 s42, s42, s41")
    a("s_lshl_b32 s45, s36, 10")
    XB = 128
    a("v_lshlrev_b32 v27, 4, v1")
    for j in range(8):
        a(f"s_add_u32 s41, s42, {j*229376}")
        a(f"s_add_u32 m0, s45, {j*8192}")
        a("s_nop 0")
        if OPT["ldW"]: a("buffer_load_dwordx4 v3, s[12:15], s41 offen lds")
        a(f"s_add_u32 m0, s45, {j*8192 + 65536}")
        a("s_nop 0")
        if OPT["ldW"]: a("buffer_load_dwordx4 v3, s[16:19], s41 offen lds")
        for c in (2*j, 2*j+1):
            if OPT["ldX"] == 1:
                a(f"buffer_load_dwordx4 v[{XB+8*c}:{XB+8*c+3}], v2, s[8:11], s43 offen offset:{64*c}")
                a(f"buffer_load_dwordx4 v[{XB+8*c+4}:{XB+8*c+7}], v2, s[8:11], s44 offen offset:{64*c}")
            elif OPT["ldX"] == 2:
                a(f"buffer_load_dwordx4 v[{XB+8*c}:{XB+8*c+3}], v27, s[8:11], s43 offen offset:{(2*c % 4)*1024}")
                a(f"buffer_load_dwordx4 v[{XB+8*c+4}:{XB+8*c+7}], v27, s[8:11], s43 offen offset:{((2*c+1) % 4)*1024}")
                if c % 2 == 1: a("v_add_u32 v27, 4096, v27")
    a("v_lshrrev_b32 v16, 5, v1")
    a("v_bfe_u32 v17, v1, 4, 1")
    a("v_bfe_u32 v18, v1, 2, 2")
    a("v_bfe_u32 v19, v1, 1, 1")
    a("v_and_b32 v20, 1, v1")
    a("v_lshl_add_u32 v21, v16, 4, v18")
    a("v_lshlrev_b32 v21, 7, v21")
    a("v_lshl_add_u32 v22, v17, 1, v19")
    a("v_lshl_add_u32 v21, v22, 4, v21")
    a("v_lshl_add_u32 v21, v20, 3, v21")
    a("v_lshrrev_b32 v23, 1, v18")
    a("v_lshl_add_u32 v4, v23, 6, v21")
    a("v_xor_b32 v23, 1, v23")
    a("v_lshl_add_u32 v5, v23, 6, v21")
    a("v_add_u32 v6, 65536, v4")
    a("v_add_u32 v7, 65536, v5")
    for r in range(8, 16): a(f"v_mov_b32 v{r}, 0")
    a("s_mov_b32 s46, 0x3f803f80")
    FB = 32
    ACC = 64
    def fragreg(buf, T): return FB + 16*buf + 4*T
    def reads(s):
        c, sB = s >> 1, s & 1
        L = []
        for T in range(4):
            base = fragreg(s & 1, T)
            for rd in range(2):
                off = (32*c + 8*sB + 4*rd) * 128
                L.append(f"ds_read_b64_tr_b16 v[{base+2*rd}:{base+2*rd+1}], v{4+T} offset:{off}")
        return L
    def stage_wait(j):
        per = (2 if OPT["ldW"] else 0) + (4 if OPT["ldX"] else 0)
        a(f"s_waitcnt vmcnt({per*(7-j)})")
        a("s_barrier")
        for c in (2*j, 2*j+1):
            for i in range(4):
                a(f"v_permlane16_swap_b32 v{XB+8*c+i}, v{XB+8*c+4+i}")
    stamp(a, 1)
    stage_wait(0)
    stamp(a, 2)
    for r in reads(0): a(r)
    for s in range(32):
        c, sB = s >> 1, s & 1
        xf = XB + 8*c + 4*sB
        nxt = reads(s+1) if s < 31 else []
        if s < 31 and (s+1) % 4 == 0:
            stage_wait((s+1)//4)
        def mf(T):
            cs = "0" if s == 0 else f"v[{ACC+16*T}:{ACC+16*T+15}]"
            b = fragreg(s & 1, T)
            a(f"v_mfma_f32_32x32x16_bf16 v[{ACC+16*T}:{ACC+16*T+15}], v[{b}:{b+3}], v[{xf}:{xf+3}], {cs}")
        if nxt:
            a("s_waitcnt lgkmcnt(6)"); mf(0)
            for r in nxt[0:4]: a(r)
            a("s_waitcnt lgkmcnt(8)"); mf(1)
            for r in nxt[4:8]: a(r)
            if OPT["stats_in_loop"]:
                for i in range(4):
                    a(f"v_dot2c_f32_bf16 v{8+(i&1)}, s46, v{xf+i}")
            a("s_waitcnt lgkmcnt(10)"); mf(2)
            if OPT["stats_in_loop"]:
                for i in range(4):
                    a(f"v_dot2c_f32_bf16 v{10+(i&1)}, v{xf+i}, v{xf+i}")
            a("s_waitcnt lgkmcnt(8)"); mf(3)
        else:
            a("s_waitcnt lgkmcnt(0)")
            mf(0); mf(1)
            if OPT["stats_in_loop"]:
                for i in range(4):
                    a(f"v_dot2c_f32_bf16 v{8+(i&1)}, s46, v{xf+i}")
            mf(2)
            if OPT["stats_in_loop"]:
                for i in range(4):
                    a(f"v_dot2c_f32_bf16 v{10+(i&1)}, v{xf+i}, v{xf+i}")
            mf(3)
        if OPT["cs_in_loop"]:
            lab = a.newlabel("K1_CS")
            a(f"s_cmp_eq_u32 s36, {s & 7}")
            a(f"s_cbranch_scc0 {lab}")
            a.skip_begin()
            for i in range(4):
                for T in range(4):
                    a(f"v_dot2c_f32_bf16 v{12+T}, s46, v{fragreg(s&1,T)+i}")
            a.skip_end()
            a.label(lab)
    stamp(a, 3)
    a("v_add_f32 v8, v8, v9")
    a("v_add_f32 v10, v10, v11")
    a("v_mov_b32 v16, v8")
    a("v_mov_b32 v17, v10")
    for T in range(4): a(f"v_mov_b32 v{20+T}, v{12+T}")
    a("v_permlane32_swap_b32 v8, v16")
    a("v_permlane32_swap_b32 v10, v17")
    for T in range(4): a(f"v_permlane32_swap_b32 v{12+T}, v{20+T}")
    a("v_add_f32 v8, v8, v16")
    a("v_add_f32 v10, v10, v17")
    for T in range(4): a(f"v_add_f32 v{12+T}, v{12+T}, v{20+T}")
    a("v_and_b32 v24, 31, v1")
    a("v_lshlrev_b32 v24, 2, v24")
    a("s_lshl_b32 s41, s36, 9")
    a(f"s_add_u32 s41, s41, {K1_CSP}")
    a("v_add_u32 v24, s41, v24")
    for T in range(4): a(f"ds_write_b32 v24, v{12+T} offset:{T*128}")
    a(f"v_mul_f32 v8, {f2u(1/512):#x}, v8")
    a(f"v_mul_f32 v10, {f2u(1/512):#x}, v10")
    a("v_fma_f32 v10, -v8, v8, v10")
    a("v_max_f32 v10, 0, v10")
    bf16r(a, 8, 8)
    bf16r(a, 10, 10)
    a(f"v_add_f32 v10, {f2u(1e-5):#x}, v10")
    bf16r(a, 10, 10)
    a("v_sqrt_f32 v10, v10")
    bf16r(a, 10, 10)
    a("v_rcp_f32 v10, v10")
    a("v_sub_f32 v18, 0, v8")
    a("v_sub_f32 v19, 0, v8")
    a(f"v_mul_f32 v20, {f2u(-1.4426950408889634):#x}, v10")
    a("v_mov_b32 v21, v20")
    a("v_mul_f32 v22, v10, v10")
    a("v_mov_b32 v23, v22")
    a("s_waitcnt lgkmcnt(0)")
    a("s_barrier")
    lab = a.newlabel("K1_RED")
    a("s_cmp_ge_u32 s36, 2")
    a(f"s_cbranch_scc1 {lab}")
    a.skip_begin()
    a("v_lshlrev_b32 v24, 2, v0")
    a(f"v_add_u32 v24, {K1_CSP}, v24")
    for w in range(8): a(f"ds_read_b32 v{26+w}, v24 offset:{w*512}")
    a("s_waitcnt lgkmcnt(0)")
    a("v_add_f32 v26, v26, v27"); a("v_add_f32 v28, v28, v29"); a("v_add_f32 v30, v30, v31"); a("v_add_f32 v32, v32, v33")
    a("v_add_f32 v26, v26, v28"); a("v_add_f32 v30, v30, v32"); a("v_add_f32 v26, v26, v30")
    a("ds_write_b32 v24, v26 offset:4096")
    a("s_waitcnt lgkmcnt(0)")
    a.skip_end()
    a.label(lab)
    a("s_barrier")
    a("v_lshrrev_b32 v25, 5, v1")
    a("v_lshlrev_b32 v25, 4, v25")
    a(f"v_add_u32 v25, {K1_CSF}, v25")
    CS = 128
    for T in range(4):
        for q in range(4):
            a(f"ds_read_b128 v[{CS+16*T+4*q}:{CS+16*T+4*q+3}], v25 offset:{T*128+q*32}")
    stamp(a, 4)
    a("s_mov_b32 s46, 1.0"); a("s_mov_b32 s47, 1.0")
    a("s_lshl_b32 s41, s39, 3"); a("s_add_u32 s41, s41, s36"); a("s_mul_i32 s41, s41, 112")
    a("s_lshl_b32 s48, s40, 2"); a("s_add_u32 s41, s41, s48"); a("s_lshl_b32 s48, s41, 10")
    if WS_HF: a(f"s_add_u32 s48, s48, {WS_HF}")
    a("v_lshlrev_b32 v26, 4, v1")
    a("s_waitcnt lgkmcnt(0)")
    HR = 192
    TM = 208
    for P in range(2):
        for half in range(2):
            prs = [8*half + 2*k for k in range(4)]
            G = lambda i: f"v[{ACC+16*P+i}:{ACC+16*P+i+1}]"
            U = lambda i: f"v[{ACC+32+16*P+i}:{ACC+32+16*P+i+1}]"
            CG = lambda i: f"v[{CS+16*P+i}:{CS+16*P+i+1}]"
            CU = lambda i: f"v[{CS+32+16*P+i}:{CS+32+16*P+i+1}]"
            Tm = lambda k: TM + 2*k
            for i in prs: a(f"v_pk_fma_f32 {G(i)}, {CG(i)}, v[18:19], {G(i)}")
            for i in prs: a(f"v_pk_fma_f32 {U(i)}, {CU(i)}, v[18:19], {U(i)}")
            for k, i in enumerate(prs): a(f"v_pk_mul_f32 v[{Tm(k)}:{Tm(k)+1}], {G(i)}, v[20:21]")
            for k, i in enumerate(prs):
                a(f"v_exp_f32 v{Tm(k)}, v{Tm(k)}"); a(f"v_exp_f32 v{Tm(k)+1}, v{Tm(k)+1}")
            for k, i in enumerate(prs): a(f"v_pk_mul_f32 {G(i)}, {G(i)}, {U(i)}")
            for k, i in enumerate(prs): a(f"v_pk_add_f32 v[{Tm(k)}:{Tm(k)+1}], v[{Tm(k)}:{Tm(k)+1}], s[46:47]")
            for k, i in enumerate(prs): a(f"v_pk_mul_f32 {G(i)}, {G(i)}, v[22:23]")
            for k, i in enumerate(prs):
                a(f"v_rcp_f32 v{Tm(k)}, v{Tm(k)}"); a(f"v_rcp_f32 v{Tm(k)+1}, v{Tm(k)+1}")
            for k, i in enumerate(prs): a(f"v_pk_mul_f32 {G(i)}, {G(i)}, v[{Tm(k)}:{Tm(k)+1}]")
            F = 2*P + half
            for k, i in enumerate(prs):
                a(f"v_cvt_pk_bf16_f32 v{HR+4*F+k}, v{ACC+16*P+i}, v{ACC+16*P+i+1}")
            a(f"buffer_store_dwordx4 v[{HR+4*F}:{HR+4*F+3}], v26, s[20:23], s48 offen offset:{F*1024}")
    stamp(a, 5)
    a("s_waitcnt vmcnt(0)")
    stamp(a, 6)
    stamp_store(a, 7, 0)
    a("s_branch K1_END")

    a.label("K1_AUX")
    a("s_sub_u32 s39, s38, 28"); a("s_lshl_b32 s39, s39, 3"); a("s_add_u32 s39, s39, s37")
    a("s_lshl_b32 s41, s39, 16"); a("s_lshl_b32 s42, s36, 13"); a("s_add_u32 s41, s41, s42")
    a("v_lshlrev_b32 v2, 4, v1")
    a("v_add_u32 v3, 4096, v2")
    for i in range(8):
        a(f"buffer_load_dwordx4 v[{32+4*i}:{32+4*i+3}], v{2 if i<4 else 3}, s[8:11], s41 offen offset:{(i&3)*1024}")
    labw = a.newlabel("K1_NOWD")
    a("s_cmp_ge_u32 s39, 28")
    a(f"s_cbranch_scc1 {labw}")
    a.skip_begin()
    for i in range(4):
        a(f"v_xor_b32 v{4+i}, {4*i}, v1")
        a(f"v_lshlrev_b32 v{4+i}, 4, v{4+i}")
    a("s_add_u32 s43, s42, 65536")
    for hf in range(2):
        a(f"s_add_u32 m0, s43, {hf*4096}")
        a(f"s_add_u32 s44, s41, {hf*4096}")
        for i in range(4):
            a(f"buffer_load_dwordx4 v{4+i}, s[24:27], s44 offen offset:{i*1024} lds")
    a.skip_end()
    a.label(labw)
    labf = a.newlabel("K1_NOFL")
    a("s_cmp_lg_u32 s39, 31"); a(f"s_cbranch_scc1 {labf}")
    a("s_cmp_lg_u32 s36, 0"); a(f"s_cbranch_scc1 {labf}")
    a.skip_begin()
    for r in range(8, 12): a(f"v_mov_b32 v{r}, 0")
    a(f"s_mov_b32 s45, {WS_FLAG}")
    a("buffer_store_dwordx4 v[8:11], v2, s[20:23], s45 offen")
    a.skip_end()
    a.label(labf)
    a("s_waitcnt vmcnt(0)")
    X = 64
    for i in range(8):
        for d in range(4):
            a(f"v_lshlrev_b32 v{X+8*i+2*d}, 16, v{32+4*i+d}")
            a(f"v_and_b32 v{X+8*i+2*d+1}, 0xffff0000, v{32+4*i+d}")
    def allreduce(regs, t):
        for mod in ("quad_perm:[1,0,3,2]", "quad_perm:[2,3,0,1]", "row_half_mirror", "row_mirror"):
            for r in regs: a(f"v_add_f32_dpp v{r}, v{r}, v{r} {mod} row_mask:0xf bank_mask:0xf")
        for sw in ("v_permlane16_swap_b32", "v_permlane32_swap_b32"):
            for k, r in enumerate(regs): a(f"v_mov_b32 v{t+k}, v{r}")
            for k, r in enumerate(regs): a(f"{sw} v{r}, v{t+k}")
            for k, r in enumerate(regs): a(f"v_add_f32 v{r}, v{r}, v{t+k}")
    S = 8
    for i in range(8):
        b = X + 8*i
        a(f"v_add_f32 v{S+i}, v{b}, v{b+1}")
    for k in range(2, 8):
        for i in range(8): a(f"v_add_f32 v{S+i}, v{S+i}, v{X+8*i+k}")
    allreduce([S+i for i in range(8)], 16)
    for i in range(8): a(f"v_mul_f32 v{S+i}, {f2u(1/512):#x}, v{S+i}")
    Q = 24
    D = 128
    for i in range(8):
        for k in range(8): a(f"v_sub_f32 v{D+8*i+k}, v{X+8*i+k}, v{S+i}")
    for i in range(8): a(f"v_mul_f32 v{Q+i}, v{D+8*i}, v{D+8*i}")
    for k in range(1, 8):
        for i in range(8): a(f"v_fmac_f32 v{Q+i}, v{D+8*i+k}, v{D+8*i+k}")
    allreduce([Q+i for i in range(8)], 16)
    for i in range(8): a(f"v_mul_f32 v{Q+i}, {f2u(1/512):#x}, v{Q+i}")
    for i in range(8): a(f"v_cvt_pk_bf16_f32 v{S+i}, v{S+i}, v{S+i}")
    for i in range(8): a(f"v_cvt_pk_bf16_f32 v{Q+i}, v{Q+i}, v{Q+i}")
    for i in range(8): a(f"v_lshlrev_b32 v{S+i}, 16, v{S+i}")
    for i in range(8): a(f"v_lshlrev_b32 v{Q+i}, 16, v{Q+i}")
    for i in range(8): a(f"v_add_f32 v{Q+i}, {f2u(1e-5):#x}, v{Q+i}")
    for i in range(8): a(f"v_cvt_pk_bf16_f32 v{Q+i}, v{Q+i}, v{Q+i}")
    for i in range(8): a(f"v_lshlrev_b32 v{Q+i}, 16, v{Q+i}")
    for i in range(8): a(f"v_sqrt_f32 v{Q+i}, v{Q+i}")
    for i in range(8): a(f"v_cvt_pk_bf16_f32 v{Q+i}, v{Q+i}, v{Q+i}")
    for i in range(8): a(f"v_lshlrev_b32 v{Q+i}, 16, v{Q+i}")
    for i in range(8): a(f"v_rcp_f32 v{Q+i}, v{Q+i}")
    for i in range(8):
        for k in range(8): a(f"v_sub_f32 v{D+8*i+k}, v{X+8*i+k}, v{S+i}")
        for d in range(4): a(f"v_cvt_pk_bf16_f32 v{32+4*i+d}, v{D+8*i+2*d}, v{D+8*i+2*d+1}")
        for d in range(4):
            a(f"v_lshlrev_b32 v{D+8*i+2*d}, 16, v{32+4*i+d}")
            a(f"v_and_b32 v{D+8*i+2*d+1}, 0xffff0000, v{32+4*i+d}")
        for k in range(8): a(f"v_mul_f32 v{D+8*i+k}, v{D+8*i+k}, v{Q+i}")
        for d in range(4): a(f"v_cvt_pk_bf16_f32 v{32+4*i+d}, v{D+8*i+2*d}, v{D+8*i+2*d+1}")
    a("s_and_b32 s43, s36, 1"); a("s_lshl_b32 s43, s43, 3")
    for i in range(4):
        a(f"v_xor_b32 v{4+i}, {2*i}, v1")
        a(f"v_xor_b32 v{4+i}, s43, v{4+i}")
        a(f"v_lshlrev_b32 v{4+i}, 4, v{4+i}")
        a(f"v_add_u32 v{4+i}, s42, v{4+i}")
    for i in range(8):
        a(f"ds_write_b128 v{4+(i&3)}, v[{32+4*i}:{32+4*i+3}] offset:{i*1024}")
    a("s_waitcnt lgkmcnt(0)")
    a("s_barrier")
    a("v_lshrrev_b32 v16, 4, v1")
    a("v_bfe_u32 v17, v1, 2, 2")
    a("v_bfe_u32 v18, v1, 1, 1")
    a("v_and_b32 v19, 1, v1")
    a("v_and_b32 v20, 1, v16")
    a("v_lshl_add_u32 v20, v20, 2, v17")
    a("v_xor_b32 v20, s36, v20")
    a("v_lshl_add_u32 v20, v20, 1, v18")
    a("v_lshlrev_b32 v20, 4, v20")
    a("v_lshl_add_u32 v20, v19, 3, v20")
    a("v_lshl_add_u32 v21, v16, 3, v17")
    a("v_lshl_add_u32 v20, v21, 10, v20")
    a("v_and_b32 v22, 15, v1"); a("v_lshlrev_b32 v22, 12, v22"); a("v_lshl_add_u32 v22, v16, 4, v22")
    a("s_lshl_b32 s44, s36, 16"); a("s_lshl_b32 s45, s39, 7"); a("s_add_u32 s44, s44, s45"); a(f"s_add_u32 s44, s44, {WS_UT}")
    for z in range(4):
        for ps in range(2):
            b = 32 + 4*(2*(z&1)+ps) + (16 if z >= 2 else 0)
            for rd in range(2):
                a(f"ds_read_b64_tr_b16 v[{b+2*rd}:{b+2*rd+1}], v20 offset:{256*z + 32768*ps + 4096*rd}")
    a("s_waitcnt lgkmcnt(0)")
    for z in range(4):
        a(f"s_add_u32 s45, s44, {z*524288}")
        for ps in range(2):
            b = 32 + 4*(2*(z&1)+ps) + (16 if z >= 2 else 0)
            a(f"buffer_store_dwordx4 v[{b}:{b+3}], v22, s[20:23], s45 offen offset:{64*ps}")
    a("s_cmp_ge_u32 s39, 28")
    a("s_cbranch_scc1 K1_AUXEND")
    a("v_lshrrev_b32 v16, 5, v1")
    a("v_bfe_u32 v17, v1, 4, 1")
    a("v_bfe_u32 v18, v1, 2, 2")
    a("v_bfe_u32 v19, v1, 1, 1")
    a("v_and_b32 v20, 1, v1")
    a("s_and_b32 s43, s36, 3")
    a("v_xor_b32 v21, s43, v18")
    a("v_lshlrev_b32 v21, 2, v21")
    a("v_lshl_add_u32 v21, v17, 1, v21")
    a("v_add_u32 v21, v21, v19")
    a("v_lshlrev_b32 v21, 4, v21")
    a("v_lshl_add_u32 v21, v20, 3, v21")
    a("v_lshl_add_u32 v22, v16, 2, v18")
    a("v_lshl_add_u32 v21, v22, 10, v21")
    a("s_and_b32 s43, s36, 4"); a("s_lshl_b32 s43, s43, 6"); a("s_add_u32 s43, s43, 65536")
    a("v_add_u32 v21, s43, v21")
    for y in range(2):
        for sp in range(4):
            b = 64 + 4*(4*y+sp)
            for rd in range(2):
                a(f"ds_read_b64_tr_b16 v[{b+2*rd}:{b+2*rd+1}], v21 offset:{sp*16384 + rd*8192 + y*512}")
    a("s_mul_i32 s44, s36, 112"); a("s_lshl_b32 s45, s39, 2"); a("s_add_u32 s44, s44, s45"); a("s_lshl_b32 s44, s44, 10")
    a(f"s_add_u32 s44, s44, {WS_WDF}")
    a("s_waitcnt lgkmcnt(0)")
    for y in range(2):
        if y: a(f"s_add_u32 s44, s44, {8*112*1024}")
        for sp in range(4):
            b = 64 + 4*(4*y+sp)
            a(f"buffer_store_dwordx4 v[{b}:{b+3}], v2, s[20:23], s44 offen offset:{sp*1024}")
    a.label("K1_AUXEND")
    stamp(a, 5)
    a("s_waitcnt vmcnt(0)")
    stamp(a, 6)
    stamp_store(a, 7, 0)
    a.label("K1_END")
    a("s_endpgm")
    return a, K1_CSF + 512

def kernel_text(name, a, vgpr=256, sgpr=96):
    body = a.finalize()
    return f""".globl {name}
.p2align 8
.type {name},@function
{name}:
{body}
"""
def kd_text(name, vgpr=256, sgpr=102, accum=256):
    return f""".amdhsa_kernel {name}
  .amdhsa_next_free_vgpr {vgpr}
  .amdhsa_next_free_sgpr {sgpr}
  .amdhsa_accum_offset {accum}
  .amdhsa_group_segment_fixed_size 0
  .amdhsa_kernarg_size 128
  .amdhsa_user_sgpr_count 2
  .amdhsa_user_sgpr_kernarg_segment_ptr 1
  .amdhsa_system_sgpr_workgroup_id_x 1
.end_amdhsa_kernel
"""

HEADER = open(os.path.join(os.path.dirname(os.path.abspath(__file__)), "..", "cdna_kernels", "recurrent_scan__ssm_conv_s4__swiglu_ffn__prompt.s.ref")).read().split("; Override launch geometry")[0]

def build(kernels, path):
    s = HEADER
    if len(kernels) == 1:
        name, a, grid, block, lds = kernels[0]
        s += f"; @launch grid=({grid},1,1) block=({block},1,1) lds={lds}\n"
    else:
        for name, a, grid, block, lds in kernels:
            s += f"; @launch kernel={name} grid=({grid},1,1) block=({block},1,1) lds={lds}\n"
    s += '.amdgcn_target "amdgcn-amd-amdhsa--gfx950"\n.text\n'
    for name, a, grid, block, lds in kernels:
        s += kernel_text(name, a)
    s += '.section .rodata,"a"\n'
    for name, a, grid, block, lds in kernels:
        s += ".p2align 6\n" + kd_text(name)
    open(path, "w").write(s)
```

```python
from asmlib import Asm
import gen as G
from gen import srd, bf16r, f2u, stamp, stamp_store, OPT
import gen2
from gen2 import cmul, STL_PITCH, R0_OFF, R1_OFF, SROW_OFF
L_U = 131072
L_STL = 139264
L_CNT = 150080

XSLOT = 32768
WBASE = 3*XSLOT
WSLOT = 16384
L_PCS = WBASE + 3*WSLOT
L_CSF = L_PCS + 2048
L_MODE = L_CSF + 512
LDS_TOTAL = L_CNT + 128
assert L_MODE + 64 <= L_CNT
WS_PCS = G.WS_CS
F_H = G.WS_FLAG
F_A = G.WS_FLAG + 1024
F_R = G.WS_FLAG + 2048
F_P = G.WS_FLAG + 3072
F_C = G.WS_FLAG + 4096
FLAG_BYTES = 8192

def allreduce_ops(regs, t):
    L = []
    for mod in ("quad_perm:[1,0,3,2]", "quad_perm:[2,3,0,1]", "row_half_mirror", "row_mirror"):
        for r in regs: L.append(f"v_add_f32_dpp v{r}, v{r}, v{r} {mod} row_mask:0xf bank_mask:0xf")
    for sw in ("v_permlane16_swap_b32", "v_permlane32_swap_b32"):
        for k, r in enumerate(regs): L.append(f"v_mov_b32 v{t+k}, v{r}")
        for k, r in enumerate(regs): L.append(f"{sw} v{r}, v{t+k}")
        for k, r in enumerate(regs): L.append(f"v_add_f32 v{r}, v{r}, v{t+k}")
    return L

def row_stats_ops(raw, t):
    L = []
    for d in range(4):
        L += [f"v_lshlrev_b32 v{t+2*d}, 16, v{raw+d}", f"v_and_b32 v{t+2*d+1}, 0xffff0000, v{raw+d}"]
    L += [f"v_pk_add_f32 v[{t+8}:{t+9}], v[{t}:{t+1}], v[{t+2}:{t+3}]",
          f"v_pk_add_f32 v[{t+10}:{t+11}], v[{t+4}:{t+5}], v[{t+6}:{t+7}]",
          f"v_pk_add_f32 v[{t+8}:{t+9}], v[{t+8}:{t+9}], v[{t+10}:{t+11}]",
          f"v_add_f32 v{t+8}, v{t+8}, v{t+9}"]
    L += allreduce_ops([t+8], t+9)
    L.append(f"v_mul_f32 v{t+8}, {f2u(1/512):#x}, v{t+8}")
    for k in range(8): L.append(f"v_sub_f32 v{t+k}, v{t+k}, v{t+8}")
    L += [f"v_mul_f32 v{t+9}, v{t}, v{t}", f"v_mul_f32 v{t+10}, v{t+1}, v{t+1}"]
    for k in range(2, 8): L.append(f"v_fmac_f32 v{t+9+(k&1)}, v{t+k}, v{t+k}")
    L.append(f"v_add_f32 v{t+9}, v{t+9}, v{t+10}")
    L += allreduce_ops([t+9], t+10)
    L.append(f"v_mul_f32 v{t+9}, {f2u(1/512):#x}, v{t+9}")
    def r16(x): return [f"v_cvt_pk_bf16_f32 v{x}, v{x}, v{x}", f"v_lshlrev_b32 v{x}, 16, v{x}"]
    L += r16(t+8) + r16(t+9)
    L.append(f"v_add_f32 v{t+9}, {f2u(1e-5):#x}, v{t+9}")
    L += r16(t+9)
    L.append(f"v_sqrt_f32 v{t+9}, v{t+9}")
    L += r16(t+9)
    L += [f"v_rcp_f32 v{t+9}, v{t+9}", f"v_sub_f32 v{t+8}, 0, v{t+8}", f"v_mov_b32 v{t+10}, 0"]
    groups = [[x] for x in L]
    groups.append(["s_mov_b64 exec, 1", f"buffer_store_dwordx2 v[{t+8}:{t+9}], v{t+10}, s[20:23], s52 offen sc1", "s_mov_b64 exec, -1"])
    return groups

def set_flag_byte(a, val):
    a(f"v_mov_b32 v154, {val}"); a("v_mov_b32 v219, 0")
    a("s_mov_b64 exec, 1")
    a("buffer_store_byte v154, v219, s[24:27], s53 offen sc1")
    a("s_mov_b64 exec, -1")

def set_flag_dword(a, soff):
    a("v_mov_b32 v154, 1"); a("v_mov_b32 v219, 0")
    a("s_mov_b64 exec, 1")
    a(f"buffer_store_dword v154, v219, s[20:23], {soff} offen sc1")
    a("s_mov_b64 exec, -1")

def poll(a, lab, srdn, vaddr, vmask, vt, sleep=2):
    a.label(lab)
    a(f"buffer_load_dword v{vt}, v{vaddr}, s[{srdn}:{srdn+3}], 0 offen sc1")
    a("s_waitcnt vmcnt(0)")
    a(f"v_and_b32 v{vt}, v{vt}, v{vmask}")
    a(f"v_cmp_ne_u32 vcc, v{vt}, v{vmask}")
    a("s_nop 4")
    a(f"s_cbranch_vccz {lab}_OK")
    a(f"s_sleep {sleep}")
    a(f"s_branch {lab}")
    a.label(lab + "_OK")

def lds_spin(a, lab, vaddr, vt, sleep=1):
    a.label(lab)
    a(f"ds_read_b32 v{vt}, v{vaddr}")
    a("s_waitcnt lgkmcnt(0)")
    a(f"v_readfirstlane_b32 s92, v{vt}")
    a("s_cmp_eq_u32 s92, 0")
    a("s_cbranch_scc0 " + lab + "_OK")
    a(f"s_sleep {sleep}")
    a(f"s_branch {lab}")
    a.label(lab + "_OK")

def only_wave0(a, fn):
    lab = a.newlabel("W0")
    a("s_cmp_lg_u32 s36, 0"); a(f"s_cbranch_scc1 {lab}")
    a.skip_begin(); fn(); a._skip = a._skip; a.skip_end()
    a.label(lab)


def publish_ready(a, gemm):
    a("s_lshl_b32 s41, s37, 7"); a("s_lshl_b32 s46, s38, 2"); a("s_add_u32 s41, s41, s46"); a(f"s_add_u32 s41, s41, {F_R}")
    a("v_mov_b32 v219, s41")
    if gemm:
        a("s_lshl_b32 s41, s40, 7"); a("s_lshl_b32 s46, s39, 2"); a("s_add_u32 s41, s41, s46"); a(f"s_add_u32 s41, s41, {F_C}")
        a("v_mov_b32 v154, s41"); a("v_cmp_eq_u32 vcc, 1, v1"); a("v_cndmask_b32 v219, v219, v154, vcc")
    a("s_lshr_b32 s41, s2, 5"); a("s_lshl_b32 s41, s41, 7"); a("s_and_b32 s46, s2, 31"); a("s_lshl_b32 s46, s46, 2"); a("s_add_u32 s41, s41, s46"); a(f"s_add_u32 s41, s41, {F_P}")
    a("v_mov_b32 v154, s41"); a("v_cmp_eq_u32 vcc, 2, v1"); a("v_cndmask_b32 v219, v219, v154, vcc")
    a("v_mov_b32 v154, s90")
    a("s_mov_b64 exec, 7")
    a("buffer_store_dword v154, v219, s[20:23], 0 offen sc1")
    a("s_mov_b64 exec, -1")

def init_check(a, lab, vval):
    a.label(lab)
    a(f"v_readfirstlane_b32 s41, v{vval}")
    a("s_cmp_lg_u32 s41, 0"); a(f"s_cbranch_scc1 {lab}_OK")
    a("s_sleep 8")
    a("v_mov_b32 v158, 0")
    a(f"buffer_load_dword v{vval}, v158, s[24:27], 0 offen sc1")
    a("s_waitcnt vmcnt(0)")
    a(f"s_branch {lab}")
    a.label(lab + "_OK")

def flags_poll_setup(a, vaddr):
    a(f"v_and_b32 v{vaddr}, 31, v1"); a(f"v_lshlrev_b32 v{vaddr}, 2, v{vaddr}")
    a("s_lshl_b32 s41, s39, 7"); a(f"s_add_u32 s41, s41, {F_R}"); a("s_lshl_b32 s46, s40, 7"); a(f"s_add_u32 s46, s46, {F_C}")
    a("v_mov_b32 v158, s41"); a("v_mov_b32 v159, s46")
    a("v_cmp_gt_u32 vcc, 32, v1"); a("v_cndmask_b32 v158, v159, v158, vcc")
    a(f"v_add_u32 v{vaddr}, v{vaddr}, v158")
    a("v_cmp_lt_u32 vcc, 39, v1"); a("v_mov_b32 v158, s41"); a(f"v_cndmask_b32 v{vaddr}, v{vaddr}, v158, vcc")

def flags_check(a, lab, vaddr, vval):
    a.label(lab)
    a(f"v_cmp_eq_u32 vcc, 0, v{vval}")
    a("s_nop 4")
    a(f"s_cbranch_vccz {lab}_OK")
    a("s_sleep 8")
    a(f"buffer_load_dword v{vval}, v{vaddr}, s[20:23], 0 offen sc1")
    a("s_waitcnt vmcnt(0)")
    a(f"s_branch {lab}")
    a.label(lab + "_OK")
    a(f"v_cmp_eq_u32 vcc, s90, v{vval}")
    a("s_nop 4")
    a("s_cmp_eq_u32 vcc_lo, -1"); a("s_cselect_b32 s41, 1, 2")
    if OPT.get("force_global") or not OPT.get("local"): a("s_mov_b32 s41, 2")
    a("v_mov_b32 v157, s41"); a(f"v_mov_b32 v158, {L_MODE}")
    a("ds_write_b32 v158, v157")


PK = 160
EA = 228
PRM = 246
def kgen_ops():
    L = []
    A = L.append
    A("s_bfe_u32 s92, s36, 0x10001"); A("s_lshl_b32 s92, s92, 4")
    A("s_lshr_b32 s94, s100, s92"); A("s_lshl_b32 s94, s94, 16")
    A("s_lshr_b32 s93, s101, s92"); A("s_lshl_b32 s93, s93, 16")
    for i in range(6): A(f"v_lshlrev_b32 v{12+i}, 16, v{PRM+i}")
    A(f"v_mov_b32 v18, {G.LOG2E:#x}"); A("v_mul_f32 v18, s94, v18"); A("v_exp_f32 v18, v18")
    A("v_cvt_pk_bf16_f32 v18, v18, v18"); A("v_lshlrev_b32 v18, 16, v18")
    A("v_mul_f32 v12, v18, v12"); A("v_mul_f32 v13, v18, v13"); A("v_mul_f32 v14, v18, v14"); A("v_mul_f32 v15, v18, v15")
    A(f"v_mul_f32 v12, {G.LOG2E:#x}, v12"); A(f"v_mul_f32 v13, {f2u(0.15915494309189535):#x}, v13")
    F = lambda c: 20 + 2*(c-1)
    W1 = 34; V1 = 36; W2 = 38; V2 = 40
    cx = [(F(1), 1, 44), (W1, 8, 46), (V1, 128, 48)]
    for d, m, t in cx:
        if m != 1: A(f"v_mul_f32 v{t}, {f2u(float(m)):#x}, v12"); A(f"v_mul_f32 v{t+1}, {f2u(float(m)):#x}, v13")
        else: A(f"v_mov_b32 v{t}, v12"); A(f"v_mov_b32 v{t+1}, v13")
    for d, m, t in cx: A(f"v_fract_f32 v{t+1}, v{t+1}")
    for d, m, t in cx: A(f"v_exp_f32 v{t}, v{t}")
    for d, m, t in cx: A(f"v_cos_f32 v{d}, v{t+1}")
    for d, m, t in cx: A(f"v_sin_f32 v{d+1}, v{t+1}")
    for d, m, t in cx: A(f"v_mul_f32 v{d}, v{d}, v{t}"); A(f"v_mul_f32 v{d+1}, v{d+1}, v{t}")
    def cm(tasks):
        if OPT.get("pkc"):
            pairs = [cmul(None, d, x, y, 50 + 2*(k % 6)) for k, (d, x, y) in enumerate(tasks)]
            for i1, _ in pairs: A(i1)
            for _, i2 in pairs: A(i2)
        else:
            T = [(50 + 2*(k % 6)) for k in range(len(tasks))]
            for t, (d, x, y) in zip(T, tasks): A(f"v_mul_f32 v{t}, v{x}, v{y}")
            for t, (d, x, y) in zip(T, tasks): A(f"v_mul_f32 v{t+1}, v{x}, v{y+1}")
            for t, (d, x, y) in zip(T, tasks): A(f"v_fma_f32 v{d}, -v{x+1}, v{y+1}, v{t}")
            for t, (d, x, y) in zip(T, tasks): A(f"v_fma_f32 v{d+1}, v{x+1}, v{y}, v{t+1}")
    Y = lambda b: 64 + 2*b
    Gq = lambda q: 96 + 2*q
    def put(row, reg, neg): A(f"v_cvt_pk_bf16_f32 v{PK+row}, v{reg}, {'-' if neg else ''}v{reg+1}")
    A(f"v_mov_b32 v{Y(0)}, 1.0"); A(f"v_mov_b32 v{Y(0)+1}, 0"); A(f"v_mov_b32 v{Y(1)}, v{W1}"); A(f"v_mov_b32 v{Y(1)+1}, v{W1+1}")
    cm([(Gq(0), 16, 14), (F(2), F(1), F(1)), (W2, W1, W1), (V2, V1, V1)])
    cm([(Gq(1), Gq(0), V1), (F(3), F(2), F(1)), (F(4), F(2), F(2)), (Y(2), Y(0), W2), (Y(3), Y(1), W2)])
    cm([(Gq(2), Gq(0), V2), (Gq(3), Gq(1), V2), (F(5), F(4), F(1)), (F(6), F(4), F(2)), (F(7), F(4), F(3)), (Y(4), Y(2), W2)])
    for b in range(4): put(41+b, Y(b), False)
    put(0, Gq(0), True); put(8, Gq(1), True); put(16, Gq(2), True); put(20, Gq(3), True)
    for k in range(2, 8):
        t = [(Gq(2*k), Gq(2*k-2), V2), (Gq(2*k+1), Gq(2*k-1), V2), (Y(2*k+1), Y(2*k-1), W2)]
        if 2*k+2 <= 15: t.append((Y(2*k+2), Y(2*k), W2))
        cm(t)
    cm([(Gq(16), Gq(14), V2)])
    for b in range(4, 16): put(41+b, Y(b), False)
    for q in range(4): put(24+2*q, Gq(4+q), True)
    for q in range(8): put(32+q, Gq(8+q), True)
    put(40, Gq(16), True)
    ex = []
    for c in range(1, 8): ex.append((c, 0, c)); ex.append((8+c, 1, c))
    for c in range(1, 4): ex.append((16+c, 2, 2*c)); ex.append((20+c, 3, 2*c))
    for q in range(4): ex.append((24+2*q+1, 4+q, 4))
    XT = 130
    for i in range(0, len(ex), 6):
        grp = ex[i:i+6]
        cm([(XT+2*k, Gq(g), F(c)) for k, (row, g, c) in enumerate(grp)])
        for k, (row, g, c) in enumerate(grp): put(row, XT+2*k, True)
    A("s_and_b32 s92, s36, 1"); A("s_lshl_b32 s92, s92, 10")
    A("v_lshlrev_b32 v44, 4, v1"); A("v_add_u32 v44, s92, v44"); A("v_sub_u32 v44, 2047, v44")
    for e in range(17): A(f"v_subrev_u32 v{EA+e}, {e}, v44")
    for e in range(0, 17, 2):
        e2 = min(e+1, 16); t = 46 + 2*((e//2) & 3)
        A(f"v_cvt_f32_i32 v{t}, v{EA+e}"); A(f"v_cvt_f32_i32 v{t+1}, v{EA+e2}")
        A(f"v_cvt_pk_bf16_f32 v{t}, v{t}, v{t+1}")
        A(f"v_lshrrev_b32 v{t+1}, 16, v{t}"); A(f"v_and_b32 v{t}, 0xffff, v{t}")
        A(f"v_subrev_u32 v{t}, 17024, v{t}"); A(f"v_subrev_u32 v{t+1}, 17024, v{t+1}")
        A([f"v_cmp_gt_i32 vcc, 128, v{EA+e}", "s_nop 1", f"v_cndmask_b32 v{EA+e}, v{t}, v{EA+e}, vcc"])
        if e2 != e: A([f"v_cmp_gt_i32 vcc, 128, v{EA+e2}", "s_nop 1", f"v_cndmask_b32 v{EA+e2}, v{t+1}, v{EA+e2}, vcc"])
    A([f"v_cmp_gt_i32 vcc, 0, v{EA+16}", "v_mov_b32 v46, 641", "s_nop 0", f"v_cndmask_b32 v{EA+16}, v{EA+16}, v46, vcc"])
    for e in range(17): A(f"v_lshlrev_b32 v{EA+e}, 1, v{EA+e}")
    return L

def emit_ops(a, ops):
    for o in ops:
        if isinstance(o, list):
            for i in o: a(i)
        else: a(o)

def row_stats2_ops(raws, t):
    L = []
    for r, raw in enumerate(raws):
        b = t + 12*r
        for d in range(4): L += [f"v_lshlrev_b32 v{b+2*d}, 16, v{raw+d}", f"v_and_b32 v{b+2*d+1}, 0xffff0000, v{raw+d}"]
    for r in range(2):
        b = t + 12*r
        L += [f"v_pk_add_f32 v[{b+8}:{b+9}], v[{b}:{b+1}], v[{b+2}:{b+3}]", f"v_pk_add_f32 v[{b+10}:{b+11}], v[{b+4}:{b+5}], v[{b+6}:{b+7}]"]
    for r in range(2):
        b = t + 12*r
        L += [f"v_pk_add_f32 v[{b+8}:{b+9}], v[{b+8}:{b+9}], v[{b+10}:{b+11}]", f"v_add_f32 v{b+8}, v{b+8}, v{b+9}"]
    def allred(off, toff):
        regs = [t + off, t + 12 + off]
        for mod in ("quad_perm:[1,0,3,2]", "quad_perm:[2,3,0,1]", "row_half_mirror", "row_mirror"):
            for x in regs: L.append(f"v_add_f32_dpp v{x}, v{x}, v{x} {mod} row_mask:0xf bank_mask:0xf")
        for sw in ("v_permlane16_swap_b32", "v_permlane32_swap_b32"):
            for x in regs: L.append(f"v_mov_b32 v{x - off + toff}, v{x}")
            for x in regs: L.append(f"{sw} v{x}, v{x - off + toff}")
            for x in regs: L.append(f"v_add_f32 v{x}, v{x}, v{x - off + toff}")
    allred(8, 9)
    for r in range(2): L.append(f"v_mul_f32 v{t+12*r+8}, {f2u(1/512):#x}, v{t+12*r+8}")
    for r in range(2):
        b = t + 12*r
        for k in range(8): L.append(f"v_sub_f32 v{b+k}, v{b+k}, v{b+8}")
    for r in range(2):
        b = t + 12*r
        L += [f"v_mul_f32 v{b+9}, v{b}, v{b}", f"v_mul_f32 v{b+10}, v{b+1}, v{b+1}"]
    for k in range(2, 8):
        for r in range(2):
            b = t + 12*r
            L.append(f"v_fmac_f32 v{b+9+(k&1)}, v{b+k}, v{b+k}")
    for r in range(2): L.append(f"v_add_f32 v{t+12*r+9}, v{t+12*r+9}, v{t+12*r+10}")
    allred(9, 10)
    def both(fmt):
        for r in range(2): L.append(fmt.format(m=t+12*r+8, v=t+12*r+9))
    both(f"v_mul_f32 v{{v}}, {f2u(1/512):#x}, v{{v}}")
    both("v_cvt_pk_bf16_f32 v{m}, v{m}, v{m}"); both("v_cvt_pk_bf16_f32 v{v}, v{v}, v{v}")
    both("v_lshlrev_b32 v{m}, 16, v{m}"); both("v_lshlrev_b32 v{v}, 16, v{v}")
    both(f"v_add_f32 v{{v}}, {f2u(1e-5):#x}, v{{v}}")
    both("v_cvt_pk_bf16_f32 v{v}, v{v}, v{v}"); both("v_lshlrev_b32 v{v}, 16, v{v}")
    both("v_sqrt_f32 v{v}, v{v}")
    both("v_cvt_pk_bf16_f32 v{v}, v{v}, v{v}"); both("v_lshlrev_b32 v{v}, 16, v{v}")
    both("v_rcp_f32 v{v}, v{v}"); both("v_sub_f32 v{m}, 0, v{m}")
    L += [f"v_mov_b32 v{t+10}, v{t+12+8}", f"v_mov_b32 v{t+11}, v{t+12+9}", f"v_mov_b32 v{t+7}, 0"]
    L.append(["s_mov_b64 exec, 1", f"buffer_store_dwordx4 v[{t+8}:{t+11}], v{t+7}, s[20:23], s52 offen sc1", "s_mov_b64 exec, -1"])
    return L

def only_wave(a, w, fn):
    lab = a.newlabel("W")
    a(f"s_cmp_lg_u32 s36, {w}"); a(f"s_cbranch_scc1 {lab}")
    a.skip_begin(); fn(); a.skip_end()
    a.label(lab)


def either(a, w, fn1, fn2):
    l1 = a.newlabel("E"); l2 = a.newlabel("E")
    a(f"s_cmp_lg_u32 s36, {w}"); a(f"s_cbranch_scc1 {l1}")
    fn1()
    a(f"s_branch {l2}")
    a.label(l1)
    fn2()
    a.label(l2)

def dma_setup(a, wq):
    a("s_lshl_b32 s43, s39, 18"); a(f"s_lshl_b32 s41, {wq}, 16"); a("s_add_u32 s43, s43, s41")
    a(f"s_mul_i32 s42, {wq}, 57344"); a("s_lshl_b32 s41, s40, 7"); a("s_add_u32 s42, s42, s41")
    a(f"s_lshl_b32 s44, {wq}, 13")
    a(f"s_lshl_b32 s45, {wq}, 11"); a(f"s_add_u32 s45, s45, {WBASE}")

def dma(a, j, fill=None):
    fill = list(fill or [])
    per = (len(fill) + 11)//12
    def f():
        nonlocal fill
        emit_ops(a, fill[:per]); fill = fill[per:]
    sl = j % 3
    a(f"s_add_u32 s41, s39, {j}"); a("s_and_b32 s41, s41, 7"); a("s_lshl_b32 s55, s41, 7"); a("s_add_u32 s55, s55, s43")
    a("s_mul_i32 s41, s41, 229376"); a("s_add_u32 s41, s41, s42"); a("s_add_u32 s49, s41, 28672")
    for gu in range(2):
        for z in range(2):
            a(f"s_add_u32 m0, s45, {sl*WSLOT + gu*8192 + z*1024}")
            a("s_nop 0")
            a(f"buffer_load_dwordx4 v4, s[{12+4*gu}:{15+4*gu}], s{41 if z == 0 else 49} offen lds")
            f()
    for z in range(8):
        a(f"s_add_u32 m0, s44, {sl*XSLOT + z*1024}"); a(f"s_add_u32 s46, s55, {z*8192}")
        a(f"buffer_load_dwordx4 v{2 + (z&1)}, s[8:11], s46 offen lds")
        f()
    emit_ops(a, fill)

def dma_voff(a):
    a("v_lshrrev_b32 v16, 3, v1"); a("v_lshrrev_b32 v17, 4, v1"); a("v_and_b32 v18, 7, v1")
    a("v_xor_b32 v19, v18, v17"); a("v_lshlrev_b32 v19, 4, v19"); a("v_lshl_add_u32 v2, v16, 10, v19")
    a("v_xor_b32 v3, 64, v2")
    a("v_mul_u32_u24 v4, 3584, v16"); a("v_and_b32 v19, 1, v17"); a("v_lshlrev_b32 v19, 2, v19"); a("v_xor_b32 v19, v19, v18")
    a("v_lshl_add_u32 v4, v19, 4, v4")

def dma0(a):
    a("s_mul_i32 s41, s39, 229376"); a("s_mul_i32 s46, s36, 28672"); a("s_add_u32 s41, s41, s46"); a("s_lshl_b32 s46, s40, 7"); a("s_add_u32 s41, s41, s46")
    a("s_lshl_b32 s46, s36, 10"); a(f"s_add_u32 m0, s46, {WBASE}")
    a("s_nop 0")
    a("buffer_load_dwordx4 v4, s[12:15], s41 offen lds")
    a(f"s_add_u32 m0, s46, {WBASE+8192}")
    a("s_nop 0")
    a("buffer_load_dwordx4 v4, s[16:19], s41 offen lds")
    a("s_lshl_b32 s41, s39, 18"); a("s_lshl_b32 s46, s36, 15"); a("s_add_u32 s41, s41, s46"); a("s_lshl_b32 s46, s39, 7"); a("s_add_u32 s41, s41, s46")
    a("s_lshl_b32 s49, s36, 12")
    for z in range(4):
        a(f"s_add_u32 m0, s49, {z*1024}"); a(f"s_add_u32 s46, s41, {z*8192}")
        a(f"buffer_load_dwordx4 v{2 + (z&1)}, s[8:11], s46 offen lds")

def prefill(a):
    a("s_bfe_u32 s58, s36, 0x10001"); a("s_lshl_b32 s59, s2, 1"); a("s_add_u32 s58, s58, s59"); a("s_lshl_b32 s58, s58, 12")
    a("s_and_b32 s59, s36, 1"); a("s_lshl_b32 s59, s59, 11"); a("s_add_u32 s58, s58, s59"); a(f"s_add_u32 s58, s58, {G.WS_ST}")
    for i in range(4): a(f"v_mov_b32 v{156+i}, -1")
    a("buffer_store_dwordx4 v[156:159], v245, s[20:23], s58 offen sc1")
    a("buffer_store_dwordx4 v[156:159], v245, s[20:23], s58 offen offset:1024 sc1")


def phaseA_gemm1(a):
    if OPT.get("local"):
        a("s_mov_b32 s39, s37"); a("s_mov_b32 s40, s38")
    else:
        a("s_mul_i32 s41, s38, 37"); a("s_lshr_b32 s41, s41, 8"); a("s_mul_i32 s42, s41, 7"); a("s_sub_u32 s42, s38, s42")
        a("s_lshr_b32 s39, s37, 2"); a("s_lshl_b32 s39, s39, 2"); a("s_add_u32 s39, s39, s41")
        a("s_and_b32 s40, s37, 3"); a("s_mul_i32 s40, s40, 7"); a("s_add_u32 s40, s40, s42")
    dma_voff(a)
    dma0(a)
    a("s_cmp_ge_u32 s36, 4"); a("s_cbranch_scc1 A_LOAD")
    a("s_setprio 2")
    a("s_lshr_b32 s47, s36, 1"); a("s_and_b32 s48, s36, 1")
    a("v_and_b32 v16, 31, v1"); a("v_lshlrev_b32 v16, 7, v16")
    a("s_lshl_b32 s41, s47, 14"); a("v_add_u32 v16, s41, v16")
    a("v_lshrrev_b32 v17, 5, v1"); a("v_bfe_u32 v18, v1, 1, 3")
    XA = 6
    for s in range(4):
        a(f"v_add_u32 v19, {2*s}, v17"); a("v_xor_b32 v19, v19, v18")
        a(f"v_lshl_add_u32 v{XA+s}, v19, 4, v16")
        a(f"v_add_u32 v{XA+4+s}, 65536, v{XA+s}")
    a("v_bfe_u32 v18, v1, 2, 2")
    a("v_lshl_add_u32 v19, v17, 3, v18"); a("v_lshlrev_b32 v19, 7, v19")
    a("v_lshrrev_b32 v20, 1, v18"); a("v_xor_b32 v20, s48, v20"); a("v_lshlrev_b32 v20, 2, v20")
    a("v_bfe_u32 v21, v1, 4, 1"); a("v_lshl_add_u32 v20, v21, 1, v20")
    a("v_bfe_u32 v21, v1, 1, 1"); a("v_add_u32 v20, v20, v21")
    a("v_lshl_add_u32 v19, v20, 4, v19")
    a("v_and_b32 v21, 1, v1"); a("v_lshl_add_u32 v19, v21, 3, v19")
    a(f"v_add_u32 v5, {WBASE}, v19")
    for i in range(4): a(f"v_mov_b32 v{48+i}, 0x3f803f80")
    FB = 192; ACC = 64
    def reads(g):
        j, s = g >> 2, g & 3
        sl = j % 3; b = FB + 24*(g & 1)
        xa = XA + s + (4 if sl == 2 else 0); xo = (sl*XSLOT) & 0xffff
        wo = sl*WSLOT + 16*s*128
        L = [f"ds_read_b64_tr_b16 v[{b}:{b+1}], v5 offset:{wo}", f"ds_read_b64_tr_b16 v[{b+2}:{b+3}], v5 offset:{wo+512}"]
        for rt in range(4): L.append(f"ds_read_b128 v[{b+4+4*rt}:{b+7+4*rt}], v{xa} offset:{xo+4096*rt}")
        L += [f"ds_read_b64_tr_b16 v[{b+20}:{b+21}], v5 offset:{wo+8192}", f"ds_read_b64_tr_b16 v[{b+22}:{b+23}], v5 offset:{wo+8192+512}"]
        return L
    stamp(a, 1)
    a("s_waitcnt vmcnt(0) lgkmcnt(0)")
    a("s_barrier")
    stamp(a, 2)
    for r in reads(0): a(r)
    for g in range(32):
        j, s = g >> 2, g & 3
        b = FB + 24*(g & 1)
        nxt = reads(g+1) if g < 31 else []
        def mf(gu, rt):
            ac = ACC + 16*(4*gu + rt)
            c = "0" if g == 0 else f"v[{ac}:{ac+15}]"
            wa = b if gu == 0 else b + 20
            xb = b + 4 + 4*rt
            a(f"v_mfma_f32_32x32x16_bf16 v[{ac}:{ac+15}], v[{wa}:{wa+3}], v[{xb}:{xb+3}], {c}")
        a("s_waitcnt lgkmcnt(0)")
        mf(0, 0)
        if s == 3 and j < 7:
            if j == 1:
                a("v_lshrrev_b32 v58, 5, v1"); a("v_lshlrev_b32 v58, 4, v58")
                a("s_lshl_b32 s41, s47, 9"); a("s_lshl_b32 s46, s48, 7"); a("s_add_u32 s41, s41, s46"); a(f"s_add_u32 s41, s41, {L_PCS}")
                a("v_add_u32 v58, s41, v58")
                a("s_mov_b32 exec_lo, 1"); a("s_mov_b32 exec_hi, 1")
                for gu in range(2):
                    for q in range(4): a(f"ds_write_b128 v58, v[{16+16*gu+4*q}:{16+16*gu+4*q+3}] offset:{gu*256+q*32}")
                a("s_mov_b64 exec, -1")
                a("s_waitcnt vmcnt(0) lgkmcnt(0)")
            a("s_barrier")
            if OPT.get("stA"): stamp(a, 6+j, force=True)
            if j == 5:
                a("v_and_b32 v14, 31, v1"); a("v_lshlrev_b32 v14, 3, v14")
                a("s_lshl_b32 s41, s39, 11"); a("s_lshl_b32 s46, s47, 10"); a("s_add_u32 s41, s41, s46"); a(f"s_add_u32 s41, s41, {G.WS_STATS}")
                for rt in range(4): a(f"buffer_load_dwordx2 v[{52+2*rt}:{53+2*rt}], v14, s[20:23], s41 offen offset:{256*rt} sc1")
        for r in nxt[0:2]: a(r)
        mf(0, 1)
        for r in nxt[2:4]: a(r)
        mf(0, 2)
        for r in nxt[4:6]: a(r)
        mf(0, 3)
        for r in nxt[6:8]: a(r)
        for rt in range(4): mf(1, rt)
        if g < 4:
            lab = a.newlabel("A_CM")
            a(f"s_cmp_lg_u32 s47, {g>>1}"); a(f"s_cbranch_scc1 {lab}")
            a.skip_begin()
            c0 = "0" if (g & 1) == 0 else "v[16:31]"; c1 = "0" if (g & 1) == 0 else "v[32:47]"
            a(f"v_mfma_f32_32x32x16_bf16 v[16:31], v[{b}:{b+3}], v[48:51], {c0}")
            a(f"v_mfma_f32_32x32x16_bf16 v[32:47], v[{b+20}:{b+23}], v[48:51], {c1}")
            a.skip_end()
            a.label(lab)
    stamp(a, 3)
    a("v_lshrrev_b32 v15, 5, v1"); a("v_lshlrev_b32 v15, 4, v15"); a("s_lshl_b32 s41, s48, 7"); a(f"s_add_u32 s41, s41, {L_CSF}"); a("v_add_u32 v15, s41, v15")
    for gu in range(2):
        for q in range(4): a(f"ds_read_b128 v[{16+16*gu+4*q}:{16+16*gu+4*q+3}], v15 offset:{gu*256+q*32}")
    a(f"v_mov_b32 v14, {L_MODE}"); a("ds_read_b32 v13, v14")
    a("s_lshl_b32 s41, s47, 2"); a("s_lshl_b32 s50, s39, 3"); a("s_add_u32 s41, s41, s50")
    a("s_mul_i32 s41, s41, 112"); a("s_lshl_b32 s50, s40, 2"); a("s_add_u32 s41, s41, s50"); a("s_lshl_b32 s50, s48, 1"); a("s_add_u32 s41, s41, s50")
    a("s_lshl_b32 s56, s41, 10")
    if G.WS_HF: a(f"s_add_u32 s56, s56, {G.WS_HF}")
    for rt in range(1, 4): a(f"s_add_u32 s{56+rt}, s56, {rt*114688}")
    a("s_mov_b32 s46, 1.0"); a("s_mov_b32 s47, 1.0")
    a("v_lshlrev_b32 v62, 4, v1")
    a("s_waitcnt vmcnt(0) lgkmcnt(0)")
    a("v_readfirstlane_b32 s91, v13")
    HR = 192; TM = 224
    for rt in range(4):
        nm, rsd = 52+2*rt, 53+2*rt
        o = 2 + 6*(rt & 1)
        a(f"v_mov_b32 v{o}, v{nm}"); a(f"v_mov_b32 v{o+1}, v{nm}")
        a(f"v_mul_f32 v{o+2}, {f2u(-1.4426950408889634):#x}, v{rsd}"); a(f"v_mov_b32 v{o+3}, v{o+2}")
        a(f"v_mul_f32 v{o+4}, v{rsd}, v{rsd}"); a(f"v_mov_b32 v{o+5}, v{o+4}")
        for half in range(2):
            prs = [8*half + 2*k for k in range(4)]
            Gp = lambda i: f"v[{ACC+16*rt+i}:{ACC+16*rt+i+1}]"
            Up = lambda i: f"v[{ACC+64+16*rt+i}:{ACC+64+16*rt+i+1}]"
            CG = lambda i: f"v[{16+i}:{16+i+1}]"
            CU = lambda i: f"v[{32+i}:{32+i+1}]"
            Tm = lambda k: TM + 8*half + 2*k
            for i in prs: a(f"v_pk_fma_f32 {Gp(i)}, {CG(i)}, v[{o}:{o+1}], {Gp(i)}")
            for i in prs: a(f"v_pk_fma_f32 {Up(i)}, {CU(i)}, v[{o}:{o+1}], {Up(i)}")
            for k, i in enumerate(prs): a(f"v_pk_mul_f32 v[{Tm(k)}:{Tm(k)+1}], {Gp(i)}, v[{o+2}:{o+3}]")
            for k, i in enumerate(prs):
                a(f"v_exp_f32 v{Tm(k)}, v{Tm(k)}"); a(f"v_exp_f32 v{Tm(k)+1}, v{Tm(k)+1}")
            for k, i in enumerate(prs): a(f"v_pk_mul_f32 {Gp(i)}, {Gp(i)}, {Up(i)}")
            for k, i in enumerate(prs): a(f"v_pk_add_f32 v[{Tm(k)}:{Tm(k)+1}], v[{Tm(k)}:{Tm(k)+1}], s[46:47]")
            for k, i in enumerate(prs): a(f"v_pk_mul_f32 {Gp(i)}, {Gp(i)}, v[{o+4}:{o+5}]")
            for k, i in enumerate(prs):
                a(f"v_rcp_f32 v{Tm(k)}, v{Tm(k)}"); a(f"v_rcp_f32 v{Tm(k)+1}, v{Tm(k)+1}")
            for k, i in enumerate(prs): a(f"v_pk_mul_f32 {Gp(i)}, {Gp(i)}, v[{Tm(k)}:{Tm(k)+1}]")
            F = 2*rt + half
            for k, i in enumerate(prs):
                a(f"v_cvt_pk_bf16_f32 v{HR+4*F+k}, v{ACC+16*rt+i}, v{ACC+16*rt+i+1}")
            l1 = a.newlabel("A_S"); l2 = a.newlabel("A_S")
            a("s_cmp_eq_u32 s91, 1"); a(f"s_cbranch_scc0 {l1}")
            a(f"buffer_store_dwordx4 v[{HR+4*F}:{HR+4*F+3}], v62, s[20:23], s{56+rt} offen offset:{half*1024}")
            a(f"s_branch {l2}")
            a.label(l1)
            a(f"buffer_store_dwordx4 v[{HR+4*F}:{HR+4*F+3}], v62, s[20:23], s{56+rt} offen offset:{half*1024} sc1")
            a.label(l2)
    stamp(a, 4)
    a("s_waitcnt vmcnt(0)")
    a("s_setprio 0")
    a(f"v_mov_b32 v2, {L_CNT+76}"); a("v_mov_b32 v3, 1")
    a("s_mov_b64 exec, 1")
    a("ds_add_rtn_u32 v4, v2, v3")
    a("s_waitcnt lgkmcnt(0)")
    a("v_readfirstlane_b32 s41, v4")
    a("s_mov_b64 exec, -1")
    labn = a.newlabel("A_NH")
    a("s_cmp_lg_u32 s41, 3"); a(f"s_cbranch_scc1 {labn}")
    a.skip_begin()
    a("s_lshl_b32 s41, s39, 7"); a("s_lshl_b32 s46, s40, 2"); a("s_add_u32 s41, s41, s46"); a(f"s_add_u32 s41, s41, {F_H}")
    l1 = a.newlabel("A_F"); l2 = a.newlabel("A_F")
    a("v_mov_b32 v4, 0")
    a("s_mov_b64 exec, 1")
    a("s_cmp_eq_u32 s91, 1"); a(f"s_cbranch_scc0 {l1}")
    a("buffer_store_dword v3, v4, s[20:23], s41 offen")
    a(f"s_branch {l2}")
    a.label(l1)
    a("buffer_store_dword v3, v4, s[20:23], s41 offen sc1")
    a.label(l2)
    a("s_mov_b64 exec, -1")
    a.skip_end()
    a.label(labn)
    stamp(a, 5)
    a("s_branch B_GEMM2")

    a.label("A_LOAD")
    a.barrier_hazard()
    a("s_sub_u32 s47, s36, 4")
    a(f"s_setprio {OPT.get('lprio', 3)}")
    dma_setup(a, "s47")
    dma(a, 1)
    a("s_lshl_b32 s41, s53, 3"); a("s_lshl_b32 s46, s47, 1"); a("s_add_u32 s41, s41, s46")
    a("s_lshl_b32 s52, s41, 3"); a(f"s_add_u32 s52, s52, {G.WS_STATS}"); a("s_lshl_b32 s41, s41, 10")
    a("v_lshlrev_b32 v245, 4, v1")
    a("buffer_load_dwordx4 v[220:223], v245, s[8:11], s41 offen")
    a("buffer_load_dwordx4 v[224:227], v245, s[8:11], s41 offen offset:1024")
    srd(a, 24, 32, 33, 256)
    kops = kgen_ops()
    nea = 0
    iea = next(k for k, o in enumerate(kops) if isinstance(o, str) and o.startswith("s_and_b32 s92, s36, 1"))
    ea_ops, k_ops = kops[iea:], kops[:iea]
    stamp(a, 1)
    a("s_waitcnt vmcnt(14) lgkmcnt(0)")
    a("s_barrier")
    stamp(a, 2)
    def dummy(): a("buffer_load_dword v218, v245, s[8:11], 0 offen")
    rs = row_stats2_ops((220, 224), 132)
    allk = k_ops + ea_ops
    ntail = OPT.get("ntail", 0)
    body, tail_ops = (allk[:len(allk)-ntail], allk[len(allk)-ntail:]) if ntail else (allk, [])
    per = (len(body) + 5)//6
    fills = {}
    for idx, key in enumerate((0, 2, 3, 4, 5, 6)):
        fills[key] = body[idx*per:(idx+1)*per]
    fills[1] = rs
    dma(a, 2, fills[0])
    a("v_mov_b32 v217, 0"); a("v_mov_b32 v9, 0")
    either(a, 4, lambda: a("buffer_load_dword v9, v217, s[24:27], 0 offen sc1"), dummy)
    for j in range(7):
        if j == 5:
            a("s_waitcnt vmcnt(12)")
            only_wave(a, 4, lambda: flags_check(a, "A_POLL", 10, 9))
        if j == 6:
            emit_ops(a, fills[6])
            a("s_waitcnt vmcnt(1)")
            a("v_add_f32 v144, v144, v145"); a("v_add_f32 v146, v146, v147"); a("v_add_f32 v148, v148, v149"); a("v_add_f32 v150, v150, v151")
            a("v_add_f32 v144, v144, v146"); a("v_add_f32 v148, v148, v150"); a("v_add_f32 v144, v144, v148")
            a(f"v_add_u32 v153, {L_CSF}, v152"); a("ds_write_b32 v153, v144")
        n = {0: 13, 1: 16, 2: 0, 3: 13, 4: 13, 5: 12, 6: 1}[j]
        a(f"s_waitcnt vmcnt({n}) lgkmcnt(0)")
        a("s_barrier")
        if j == 1:
            a("v_and_b32 v152, 31, v1"); a("s_lshl_b32 s41, s47, 5"); a("v_add_u32 v152, s41, v152"); a("v_lshlrev_b32 v152, 2, v152"); a(f"v_add_u32 v153, {L_PCS}, v152")
            a("ds_read_b32 v144, v153"); a("ds_read_b32 v145, v153 offset:512")
            a("s_waitcnt lgkmcnt(0)")
            a("v_add_f32 v144, v144, v145")
            a("s_lshl_b32 s41, s40, 3"); a("s_add_u32 s41, s41, s39"); a("s_lshl_b32 s41, s41, 9"); a(f"s_add_u32 s41, s41, {WS_PCS}")
            a("buffer_store_dword v144, v152, s[20:23], s41 offen sc1")
        if j == 4:
            flags_poll_setup(a, 10)
            a("v_mov_b32 v9, 0")
            either(a, 4, lambda: a("buffer_load_dword v9, v10, s[20:23], 0 offen sc1"), dummy)
        if j + 3 <= 7: dma(a, j+3, fills[j+1])
        if j == 0:
            prefill(a)
        if j == 2:
            def pub():
                init_check(a, "A_INIT", 9)
                publish_ready(a, True)
            either(a, 4, pub, dummy)
        if j == 5:
            a("s_lshl_b32 s41, s40, 12"); a(f"s_add_u32 s41, s41, {WS_PCS}")
            for m8 in range(8): a(f"buffer_load_dword v{144+m8}, v152, s[20:23], s41 offen offset:{m8*512} sc1")
            a("v_and_b32 v7, 31, v1"); a("v_lshlrev_b32 v7, 2, v7"); a("s_lshl_b32 s41, s37, 7"); a(f"s_add_u32 s41, s41, {F_A}"); a("v_add_u32 v7, s41, v7")
            a("v_mov_b32 v8, 0")
            either(a, 7, lambda: a("buffer_load_dword v8, v7, s[20:23], 0 offen sc1"), dummy)
    stamp(a, 3)
    emit_ops(a, tail_ops)
    a("s_branch B_CONV")

def phaseA_aux(a):
    a("s_sub_u32 s39, s38, 28"); a("s_lshl_b32 s39, s39, 3"); a("s_add_u32 s39, s39, s37")
    a("s_cmp_ge_u32 s39, 28"); a("s_cselect_b32 s40, 28, 0"); a("s_sub_u32 s40, s39, s40")
    a("v_lshlrev_b32 v2, 4, v1"); a("v_add_u32 v3, 4096, v2")
    srd(a, 24, 32, 33, 256)
    labz = a.newlabel("A_NZ")
    a("s_cmp_lg_u32 s39, 31"); a(f"s_cbranch_scc1 {labz}")
    a("s_cmp_lg_u32 s36, 0"); a(f"s_cbranch_scc1 {labz}")
    a.skip_begin()
    for r in range(8, 12): a(f"v_mov_b32 v{r}, 0")
    a(f"s_mov_b32 s45, {G.WS_FLAG}")
    for z in range(8):
        a(f"buffer_store_dwordx4 v[8:11], v{2 if z < 4 else 3}, s[20:23], s45 offen offset:{(z&3)*1024} sc1")
    a("s_waitcnt vmcnt(0)")
    a("v_mov_b32 v12, 1")
    a("s_mov_b64 exec, 1")
    a("buffer_store_dword v12, v8, s[24:27], 0 offen sc1")
    a("s_mov_b64 exec, -1")
    a.skip_end()
    a.label(labz)
    a("s_lshl_b32 s41, s53, 3"); a("s_add_u32 s41, s41, s36"); a("s_lshl_b32 s52, s41, 3"); a(f"s_add_u32 s52, s52, {G.WS_STATS}"); a("s_lshl_b32 s41, s41, 10")
    a("buffer_load_dwordx4 v[40:43], v2, s[8:11], s41 offen")
    a("s_lshl_b32 s42, s36, 13")
    a("s_lshl_b32 s41, s39, 16"); a("s_add_u32 s41, s41, s42")
    for i in range(8):
        a(f"buffer_load_dwordx4 v[{96+4*i}:{96+4*i+3}], v{2 if i<4 else 3}, s[8:11], s41 offen offset:{(i&3)*1024}")
    srd(a, 24, 6, 7, 1792*512*2)
    a("s_lshl_b32 s44, s40, 16"); a("s_add_u32 s44, s44, s42")
    for i in range(8):
        a(f"buffer_load_dwordx4 v[{176+4*i}:{176+4*i+3}], v{2 if i<4 else 3}, s[24:27], s44 offen offset:{(i&3)*1024}")
    srd(a, 24, 32, 33, 256)
    labq = a.newlabel("A_NPF")
    a("s_cmp_lt_u32 s36, 4"); a(f"s_cbranch_scc1 {labq}")
    a.skip_begin()
    a("v_lshlrev_b32 v245, 4, v1")
    prefill(a)
    a.skip_end()
    a.label(labq)
    a("s_mov_b32 s84, 0xaaaaaaaa"); a("s_mov_b32 s85, 0xaaaaaaaa"); a("s_mov_b32 s86, 0xcccccccc"); a("s_mov_b32 s87, 0xcccccccc"); a("s_mov_b32 s88, 0xf0f0f0f0"); a("s_mov_b32 s89, 0xf0f0f0f0")
    stamp(a, 1)
    a("s_waitcnt vmcnt(16) lgkmcnt(0)")
    for grp in row_stats_ops(40, 44):
        for i in grp: a(i)
    a("s_waitcnt vmcnt(9)")
    X = 32
    for i in range(8):
        for d in range(4):
            a(f"v_lshlrev_b32 v{X+8*i+2*d}, 16, v{96+4*i+d}")
            a(f"v_and_b32 v{X+8*i+2*d+1}, 0xffff0000, v{96+4*i+d}")
    for i in range(8):
        b = X + 8*i; t = 144 + 2*(i & 3)
        a(f"v_pk_add_f32 v[{t}:{t+1}], v[{b}:{b+1}], v[{b+2}:{b+3}]")
        a(f"v_pk_mul_f32 v[{t+8}:{t+9}], v[{b}:{b+1}], v[{b}:{b+1}]")
        a(f"v_pk_add_f32 v[{t}:{t+1}], v[{t}:{t+1}], v[{b+4}:{b+5}]")
        a(f"v_pk_fma_f32 v[{t+8}:{t+9}], v[{b+2}:{b+3}], v[{b+2}:{b+3}], v[{t+8}:{t+9}]")
        a(f"v_pk_add_f32 v[{t}:{t+1}], v[{t}:{t+1}], v[{b+6}:{b+7}]")
        a(f"v_pk_fma_f32 v[{t+8}:{t+9}], v[{b+4}:{b+5}], v[{b+4}:{b+5}], v[{t+8}:{t+9}]")
        a(f"v_add_f32 v{128+i}, v{t}, v{t+1}")
        a(f"v_pk_fma_f32 v[{t+8}:{t+9}], v[{b+6}:{b+7}], v[{b+6}:{b+7}], v[{t+8}:{t+9}]")
        a(f"v_add_f32 v{136+i}, v{t+8}, v{t+9}")
    def rs_level(src, n, mask, perm, dst, tmp):
        for k in range(n):
            A_, B_ = src[2*k], src[2*k+1]
            a(f"v_cndmask_b32 v{dst[k]}, v{A_}, v{B_}, {mask}")
            a(f"v_cndmask_b32 v{tmp+k}, v{B_}, v{A_}, {mask}")
        for k in range(n):
            a(f"v_add_f32_dpp v{dst[k]}, v{tmp+k}, v{dst[k]} {perm} row_mask:0xf bank_mask:0xf")
    src = [128+i for i in range(16)]
    d1 = [144+k for k in range(8)]
    rs_level(src, 8, "s[84:85]", "quad_perm:[1,0,3,2]", d1, 160)
    d2 = [128+k for k in range(4)]
    rs_level(d1, 4, "s[86:87]", "quad_perm:[2,3,0,1]", d2, 160)
    for m in ("row_ror:4", "row_ror:8"):
        for r in d2: a(f"v_add_f32_dpp v{r}, v{r}, v{r} {m} row_mask:0xf bank_mask:0xf")
    for sw in ("v_permlane16_swap_b32", "v_permlane32_swap_b32"):
        for k, r in enumerate(d2): a(f"v_mov_b32 v{160+k}, v{r}")
        for k, r in enumerate(d2): a(f"{sw} v{r}, v{160+k}")
        for k, r in enumerate(d2): a(f"v_add_f32 v{r}, v{r}, v{160+k}")
    a("v_cndmask_b32 v8, v128, v129, s[88:89]")
    a("v_cndmask_b32 v9, v130, v131, s[88:89]")
    a(f"v_mul_f32 v8, {f2u(1/512):#x}, v8"); a(f"v_mul_f32 v9, {f2u(1/512):#x}, v9")
    a("v_fma_f32 v9, -v8, v8, v9"); a("v_max_f32 v9, 0, v9")
    bf16r(a, 8, 8); bf16r(a, 9, 9)
    a(f"v_add_f32 v9, {f2u(1e-5):#x}, v9"); bf16r(a, 9, 9)
    a("v_sqrt_f32 v9, v9"); bf16r(a, 9, 9)
    a("v_rcp_f32 v9, v9"); a("v_sub_f32 v8, 0, v8")
    a("v_mul_f32 v11, v8, v9")
    stamp(a, 2)
    RS = [92, 94, 56, 58, 80, 82, 84, 86]
    for i in range(8):
        a(f"v_readlane_b32 s{RS[i]}, v9, {i}"); a(f"v_readlane_b32 s{RS[i]+1}, v9, {i}")
    for i in range(8):
        a(f"v_readlane_b32 s{46+(i&1)}, v11, {i}"); a(f"v_mov_b32 v{224+2*i}, s{46+(i&1)}"); a(f"v_mov_b32 v{225+2*i}, s{46+(i&1)}")
    for i in range(8):
        for d in range(4):
            a(f"v_pk_fma_f32 v[{X+8*i+2*d}:{X+8*i+2*d+1}], v[{X+8*i+2*d}:{X+8*i+2*d+1}], s[{RS[i]}:{RS[i]+1}], v[{224+2*i}:{225+2*i}]")
    a("s_add_u32 s45, s42, 65536")
    for i in range(4):
        a(f"v_xor_b32 v{4+i}, {4*i}, v1"); a(f"v_lshlrev_b32 v{4+i}, 4, v{4+i}"); a(f"v_add_u32 v{4+i}, s45, v{4+i}")
    a("s_waitcnt vmcnt(0)")
    for i in range(8): a(f"ds_write_b128 v{4+(i&3)}, v[{176+4*i}:{176+4*i+3}] offset:{i*1024}")
    P = 128
    for i in range(8):
        for d in range(4): a(f"v_cvt_pk_bf16_f32 v{P+4*i+d}, v{X+8*i+2*d}, v{X+8*i+2*d+1}")
    a("s_mov_b32 s46, 0x05040100"); a("s_mov_b32 s47, 0x07060302")
    for e in range(8):
        for k in range(4):
            a(f"v_perm_b32 v{64+4*e+k}, v{P+4*(2*k+1)+(e>>1)}, v{P+4*(2*k)+(e>>1)}, s{46+(e&1)}")
    a("v_and_b32 v16, 7, v1"); a("v_xor_b32 v16, s36, v16"); a("v_lshlrev_b32 v16, 4, v16"); a("v_lshl_add_u32 v16, v1, 10, v16")
    for e in range(8): a(f"ds_write_b128 v16, v[{64+4*e}:{64+4*e+3}] offset:{e*128}")
    a("s_waitcnt vmcnt(0) lgkmcnt(0)")
    a("s_barrier")
    def pubx():
        a("v_mov_b32 v158, 0"); a("buffer_load_dword v9, v158, s[24:27], 0 offen sc1"); a("s_waitcnt vmcnt(0)")
        init_check(a, "X_INIT", 9)
        publish_ready(a, False)
    only_wave0(a, pubx)
    stamp(a, 3)
    a("v_lshrrev_b32 v16, 3, v1"); a("v_and_b32 v17, 7, v1")
    a("v_lshlrev_b32 v18, 12, v16"); a("v_lshl_add_u32 v18, v17, 4, v18")
    a("v_lshlrev_b32 v19, 7, v16"); a("s_lshl_b32 s45, s36, 13"); a("v_add_u32 v19, s45, v19")
    for z in range(8):
        a(f"v_xor_b32 v20, {z}, v17"); a(f"v_lshl_add_u32 v20, v20, 4, v19")
        a(f"ds_read_b128 v[{32+4*z}:{32+4*z+3}], v20 offset:{z*1024}")
    a("s_lshl_b32 s45, s36, 18"); a("s_lshl_b32 s46, s39, 7"); a("s_add_u32 s45, s45, s46"); a(f"s_add_u32 s45, s45, {G.WS_UT}")
    a("v_lshrrev_b32 v24, 5, v1"); a("v_bfe_u32 v25, v1, 4, 1"); a("v_bfe_u32 v26, v1, 2, 2"); a("v_bfe_u32 v27, v1, 1, 1"); a("v_and_b32 v28, 1, v1")
    a("s_and_b32 s43, s36, 3")
    a("v_xor_b32 v21, s43, v26"); a("v_lshlrev_b32 v21, 2, v21"); a("v_lshl_add_u32 v21, v25, 1, v21"); a("v_add_u32 v21, v21, v27")
    a("v_lshlrev_b32 v21, 4, v21"); a("v_lshl_add_u32 v21, v28, 3, v21")
    a("v_lshl_add_u32 v22, v24, 2, v26"); a("v_lshl_add_u32 v21, v22, 10, v21")
    a("s_and_b32 s43, s36, 4"); a("s_lshl_b32 s43, s43, 6"); a("s_add_u32 s43, s43, 65536"); a("v_add_u32 v21, s43, v21")
    for y in range(2):
        for sp in range(4):
            b = 64 + 4*(4*y+sp)
            for rd in range(2):
                a(f"ds_read_b64_tr_b16 v[{b+2*rd}:{b+2*rd+1}], v21 offset:{sp*16384 + rd*8192 + y*512}")
    a("s_waitcnt lgkmcnt(0)")
    for z in range(8):
        a(f"s_add_u32 s46, s45, {z*32768}")
        a(f"buffer_store_dwordx4 v[{32+4*z}:{32+4*z+3}], v18, s[20:23], s46 offen sc1")
    labn = a.newlabel("A_NOWD")
    a("s_cmp_ge_u32 s39, 28"); a(f"s_cbranch_scc1 {labn}")
    a.skip_begin()
    a("s_mul_i32 s44, s36, 112"); a("s_lshl_b32 s45, s39, 2"); a("s_add_u32 s44, s44, s45"); a("s_lshl_b32 s44, s44, 10")
    a(f"s_add_u32 s44, s44, {G.WS_WDF}")
    for y in range(2):
        if y: a(f"s_add_u32 s44, s44, {8*112*1024}")
        for sp in range(4):
            b = 64 + 4*(4*y+sp)
            a(f"buffer_store_dwordx4 v[{b}:{b+3}], v2, s[20:23], s44 offen offset:{sp*1024} sc1")
    a.skip_end()
    a.label(labn)
    stamp(a, 4)
    a("s_waitcnt vmcnt(0)")
    a("s_barrier")
    a("s_lshl_b32 s41, s39, 2"); a(f"s_add_u32 s41, s41, {F_A}")
    def af():
        a("v_mov_b32 v154, 1"); a("v_lshlrev_b32 v219, 7, v1")
        a("s_mov_b64 exec, 0xff")
        a("buffer_store_dword v154, v219, s[20:23], s41 offen sc1")
        a("s_mov_b64 exec, -1")
    only_wave0(a, af)
    stamp(a, 5)
    a("s_cmp_lt_u32 s36, 4"); a("s_cbranch_scc1 B_GEMM2")
    emit_ops(a, kgen_ops())
    a("v_mov_b32 v8, 0")
    a("s_branch B_CONV")

def phaseB_common(a):
    a("s_lshl_b32 s39, s37, 2"); a("s_lshr_b32 s3, s38, 3"); a("s_add_u32 s39, s39, s3")
    a("s_and_b32 s3, s38, 7")
    srd(a, 12, 96, 97, 2048*512*2)
    a("v_lshrrev_b32 v5, 3, v1"); a("v_lshlrev_b32 v5, 10, v5")
    a("v_and_b32 v6, 7, v1"); a("v_lshl_add_u32 v5, v6, 4, v5")
    a("s_lshl_b32 s34, s39, 16"); a("s_lshl_b32 s35, s36, 13"); a("s_add_u32 s34, s34, s35")
    a("s_lshl_b32 s35, s3, 7"); a("s_add_u32 s34, s34, s35")
    a("buffer_load_dwordx4 v[252:255], v5, s[8:11], s34 offen")

def phaseB(a):
    if OPT.get('stA'): OPT['stB_off'] = 1
    a.label("B_GEMM2")
    a.barrier_hazard()
    phaseB_common(a)
    DEPTH = 8
    a("v_and_b32 v14, 31, v1"); a("v_lshlrev_b32 v12, 2, v14")
    a("s_lshl_b32 s26, s37, 7"); a(f"s_add_u32 s26, s26, {F_H}"); a("s_lshl_b32 s27, s37, 7"); a(f"s_add_u32 s27, s27, {F_A}"); a("v_mov_b32 v13, s27"); a("v_mov_b32 v15, s26")
    a("v_cmp_gt_u32 vcc, 32, v1"); a("v_cndmask_b32 v13, v13, v15, vcc"); a("v_add_u32 v12, v12, v13")
    a("v_cmp_gt_u32 vcc, 28, v14"); a("v_mov_b32 v13, 0"); a("v_mov_b32 v15, 1"); a("v_cndmask_b32 v13, v13, v15, vcc")
    a(f"v_mov_b32 v16, {L_CNT+72}"); a("v_mov_b32 v17, 1")
    a("s_cmp_lg_u32 s36, 0"); a("s_cbranch_scc1 B_GWAIT")
    poll(a, "B_GPOLL", 20, 12, 13, 14, sleep=4)
    a("ds_write_b32 v16, v17")
    a("s_branch B_GGO")
    lds_spin(a, "B_GWAIT", 16, 18)
    a.label("B_GGO")
    stamp(a, 6)
    a("v_lshlrev_b32 v2, 4, v1")
    for q in range(7): a(f"v_add_u32 v{12+q}, {q*4096}, v2")
    a("s_mul_i32 s26, s39, 224"); a("s_mul_i32 s27, s36, 28"); a("s_add_u32 s26, s26, s27"); a("s_lshl_b32 s26, s26, 10")
    if G.WS_HF: a(f"s_add_u32 s26, s26, {G.WS_HF}")
    a("s_add_u32 s28, s26, 114688")
    a("s_mul_i32 s29, s3, 224"); a("s_add_u32 s29, s29, s27"); a("s_lshl_b32 s29, s29, 10"); a(f"s_add_u32 s29, s29, {G.WS_WDF}")
    a("s_add_u32 s30, s29, 114688")
    FR = 48; AC = 176
    def loads(s):
        b = FR + (s % DEPTH)*16
        for j, sr in enumerate(["s26","s28","s29","s30"]):
            a(f"buffer_load_dwordx4 v[{b+4*j}:{b+4*j+3}], v{12+s//4}, s[20:23], {sr} offen offset:{(s%4)*1024}{'' if OPT.get('g2plain') else ' sc1'}")
    for s in range(DEPTH): loads(s)
    for s in range(28):
        a(f"s_waitcnt vmcnt({4*min(DEPTH-1, 27-s)})")
        b = FR + (s % DEPTH)*16
        for nt2 in range(2):
            for rt in range(2):
                ac = AC + 16*(2*nt2+rt)
                c = "0" if s == 0 else f"v[{ac}:{ac+15}]"
                a(f"v_mfma_f32_32x32x16_bf16 v[{ac}:{ac+15}], v[{b+8+4*nt2}:{b+11+4*nt2}], v[{b+4*rt}:{b+3+4*rt}], {c}")
        if s + DEPTH < 28: loads(s + DEPTH)
        if s == OPT.get("near", 18):
            def sig():
                a(f"v_mov_b32 v2, {L_CNT+64}"); a("v_mov_b32 v3, 1"); a("ds_write_b32 v2, v3")
            only_wave0(a, sig)
    stamp(a, 7)
    a("v_and_b32 v2, 31, v1"); a("v_and_b32 v3, 15, v1"); a("v_lshrrev_b32 v4, 5, v1"); a("v_xor_b32 v3, v3, v4")
    a("s_and_b32 s26, s36, 1"); a("s_lshl_b32 s26, s26, 14"); a("s_lshr_b32 s27, s36, 1"); a("s_lshl_b32 s27, s27, 16"); a("s_add_u32 s26, s26, s27"); a("s_add_u32 s26, s26, 32768")
    a("v_lshlrev_b32 v2, 8, v2"); a("v_add_u32 v2, s26, v2")
    for cq in range(8):
        a(f"v_xor_b32 v6, {2*cq}, v3"); a(f"v_lshl_add_u32 v{12+cq}, v6, 4, v2")
    for nt2 in range(2):
        for rt in range(2):
            ac = AC + 16*(2*nt2+rt)
            for q in range(4):
                a(f"ds_write_b128 v{12+4*nt2+q}, v[{ac+4*q}:{ac+4*q+3}] offset:{rt*32*256}")
    a("s_waitcnt lgkmcnt(0)")
    stamp(a, 8)
    a("s_branch K2_FINAL")

    a.label("B_CONV")
    a.barrier_hazard()
    a(f"s_setprio {OPT.get('cprio', 1)}")
    phaseB_common(a)
    a("s_sub_u32 s24, s36, 4")
    a("s_lshr_b32 s25, s24, 1")
    a("s_and_b32 s26, s24, 1")
    a("s_lshl_b32 s27, s2, 1"); a("s_add_u32 s27, s27, s25")
    a("s_mov_b32 s31, s93")
    UB = 200
    a("v_and_b32 v3, 15, v1"); a("v_lshrrev_b32 v4, 4, v1")
    a("v_lshlrev_b32 v7, 4, v1")
    a("s_lshl_b32 s17, s25, 16")
    a("s_add_u32 s18, s17, 16384")
    a("s_lshl_b32 s16, s26, 14"); a("s_add_u32 s16, s16, s17")
    stamp(a, 6)
    a("v_lshlrev_b32 v6, 2, v1"); a("v_add_u32 v6, s16, v6")
    for row in range(57): a(f"ds_write_b32 v6, v{PK+row} offset:{row*288}")
    for e in range(17): a(f"v_add_u32 v{EA+e}, s17, v{EA+e}")
    a(f"v_mov_b32 v45, {L_CNT+68}"); a("v_mov_b32 v46, 1")
    a("s_cmp_lg_u32 s36, 7"); a("s_cbranch_scc1 B_UWAIT")
    a("v_and_b32 v48, 31, v1"); a("v_lshlrev_b32 v48, 2, v48"); a("s_lshl_b32 s28, s37, 7"); a(f"s_add_u32 s28, s28, {F_A}"); a("v_add_u32 v48, s28, v48"); a("v_mov_b32 v49, 1")
    a("s_waitcnt vmcnt(0)")
    a("v_cmp_ne_u32 vcc, 1, v8"); a("s_nop 4"); a("s_cbranch_vccz B_UPOLL_OK")
    poll(a, "B_UPOLL", 20, 48, 49, 47, sleep=4)
    a("ds_write_b32 v45, v46")
    a("s_branch B_UGO")
    lds_spin(a, "B_UWAIT", 45, 47)
    a.label("B_UGO")
    a("s_lshl_b32 s28, s27, 12"); a("s_lshl_b32 s35, s26, 11"); a("s_add_u32 s28, s28, s35"); a(f"s_add_u32 s29, s28, {G.WS_UT}")
    a("buffer_load_dwordx4 v[144:147], v7, s[20:23], s29 offen sc1")
    a("buffer_load_dwordx4 v[148:151], v7, s[20:23], s29 offen offset:1024 sc1")
    a("v_mul_u32_u24 v44, 288, v3"); a("v_lshl_add_u32 v44, v4, 4, v44"); a("v_add_u32 v44, s16, v44")
    a("s_waitcnt lgkmcnt(0)")
    AF = 64; BF = 112; KA = 128
    for ks in range(4):
        a(f"ds_read_b128 v[{BF+4*ks}:{BF+4*ks+3}], v44 offset:{41*288 + ks*64}")
        for mt in range(3):
            b = AF + 4*(3*ks+mt)
            a(f"ds_read_b128 v[{b}:{b+3}], v44 offset:{mt*16*288 + ks*64}")
    a("s_waitcnt lgkmcnt(0)")
    for ks in range(4):
        for mt in range(3):
            b = AF + 4*(3*ks+mt)
            c = "0" if ks == 0 else f"v[{KA+4*mt}:{KA+4*mt+3}]"
            a(f"v_mfma_f32_16x16x32_bf16 v[{KA+4*mt}:{KA+4*mt+3}], v[{b}:{b+3}], v[{BF+4*ks}:{BF+4*ks+3}], {c}")
    def set_flag(off_sgpr_expr_fn):
        pass
    a(f"v_mov_b32 v45, {L_CNT}")
    a("s_lshl_b32 s28, s25, 2"); a("v_add_u32 v45, s28, v45")
    a("v_mov_b32 v46, 1")
    a("v_mul_u32_u24 v47, 48, v1"); a("v_add_u32 v47, s18, v47")
    labE = "K2_EVEN"; labX = "K2_EXPAND"
    a("s_cmp_eq_u32 s26, 0")
    a(f"s_cbranch_scc1 {labE}")
    for mt in range(3): a(f"ds_write_b128 v47, v[{KA+4*mt}:{KA+4*mt+3}] offset:{16*mt}")
    a("s_waitcnt lgkmcnt(0)")
    a("ds_write_b32 v45, v46")
    def spin(vaddr, off, lab):
        a.label(lab)
        a(f"ds_read_b32 v48, v{vaddr} offset:{off}")
        a("s_waitcnt lgkmcnt(0)")
        a("v_readfirstlane_b32 s28, v48")
        a("s_cmp_eq_u32 s28, 0")
        a(f"s_cbranch_scc1 {lab}")
    spin(45, 8, "K2_SP2")
    a(f"s_branch {labX}")
    a.label(labE)
    a.barrier_hazard()
    spin(45, 0, "K2_SP1")
    for mt in range(3): a(f"ds_read_b128 v[{64+4*mt}:{64+4*mt+3}], v47 offset:{16*mt}")
    a("v_lshrrev_b32 v48, 1, v4"); a("v_lshlrev_b32 v48, 7, v48")
    a("v_and_b32 v49, 1, v4"); a("v_lshl_add_u32 v48, v49, 2, v48"); a("v_lshl_add_u32 v48, v3, 3, v48")
    a("v_lshl_add_u32 v48, v48, 1, s17")
    a("v_lshlrev_b32 v49, 6, v4"); a("v_add_u32 v49, 256, v49")
    a("v_cmp_gt_u32 vcc, 2, v4")
    a("v_lshlrev_b32 v50, 2, v3"); a("v_lshlrev_b32 v51, 1, v3")
    a("v_cndmask_b32 v50, v51, v50, vcc")
    a("v_add_u32 v49, v49, v50"); a("v_lshl_add_u32 v49, v49, 1, s17")
    a("v_mov_b32 v50, 64"); a("v_mov_b32 v51, 4"); a("v_cndmask_b32 v50, v50, v51, vcc"); a("v_add_u32 v50, v49, v50")
    a("v_lshlrev_b32 v51, 6, v4"); a("v_add_u32 v51, v51, v3"); a("v_add_u32 v51, 512, v51")
    a("v_mov_b32 v52, 704"); a("v_cndmask_b32 v51, v52, v51, vcc")
    a("v_cmp_eq_u32 vcc, 32, v1"); a("v_mov_b32 v52, 640"); a("v_cndmask_b32 v51, v51, v52, vcc")
    a("v_lshl_add_u32 v51, v51, 1, s17")
    a("s_waitcnt lgkmcnt(0)")
    for i in range(12): a(f"v_add_f32 v{KA+i}, v{KA+i}, v{64+i}")
    a("v_cmp_eq_u32 vcc, 0, v1"); a("v_mov_b32 v52, 0"); a("v_mov_b32 v53, s31"); a("v_cndmask_b32 v52, v52, v53, vcc")
    a(f"v_add_f32 v{KA}, v{KA}, v52")
    for i in range(6): a(f"v_cvt_pk_bf16_f32 v{76+i}, v{KA+2*i}, v{KA+2*i+1}")
    a("ds_write_b64 v48, v[76:77]")
    a("ds_write_b32 v49, v78"); a("ds_write_b32 v50, v79")
    a("ds_write_b16 v51, v80"); a("ds_write_b16_d16_hi v51, v80 offset:32")
    a("ds_write_b16 v51, v81 offset:64"); a("ds_write_b16_d16_hi v51, v81 offset:96")
    a("v_mov_b32 v52, 0"); a("v_mov_b32 v53, s17"); a("ds_write_b16 v53, v52 offset:1282")
    a("s_waitcnt lgkmcnt(0)")
    a("ds_write_b32 v45, v46 offset:8")
    a.label(labX)
    a.barrier_hazard()
    DD = 88
    for e in range(17):
        a(f"ds_read_u16 v{DD+e}, v{EA+e}")
    a("s_lshl_b32 s28, s26, 11"); a("s_add_u32 s28, s28, s18")
    a("v_lshl_add_u32 v48, v1, 5, s28")
    a("v_mov_b32 v52, 0")
    a("v_and_b32 v49, 15, v1"); a("v_lshl_add_u32 v49, v49, 2, s18")
    a("s_waitcnt lgkmcnt(0)")
    for i in range(8): a(f"v_lshl_or_b32 v{64+i}, v{DD+2*i+1}, 16, v{DD+2*i}")
    for i in range(8): a(f"v_lshl_or_b32 v{76+i}, v{DD+2*i+2}, 16, v{DD+2*i+1}")
    a(f"ds_write_b128 v48, v[64:67] offset:{R0_OFF}"); a(f"ds_write_b128 v48, v[68:71] offset:{R0_OFF+16}")
    a(f"ds_write_b128 v48, v[76:79] offset:{R1_OFF}"); a(f"ds_write_b128 v48, v[80:83] offset:{R1_OFF+16}")
    a(f"ds_write_b32 v49, v52 offset:{R0_OFF+4096}"); a(f"ds_write_b32 v49, v52 offset:{R1_OFF+4096}")
    a("s_lshl_b32 s28, s25, 12"); a("s_lshl_b32 s35, s26, 11"); a("s_add_u32 s28, s28, s35"); a(f"s_add_u32 s28, s28, {L_U}"); a("v_add_u32 v49, s28, v7")
    a("s_waitcnt vmcnt(0)")
    a("ds_write_b128 v49, v[144:147]"); a("ds_write_b128 v49, v[148:151] offset:1024")
    a("s_waitcnt lgkmcnt(0)")
    a(f"v_mov_b32 v48, {L_CNT+16}")
    a("s_lshl_b32 s28, s24, 2"); a("v_add_u32 v49, s28, v48")
    a("s_xor_b32 s28, s28, 4"); a("v_add_u32 v50, s28, v48")
    a("ds_write_b32 v49, v46")
    spin(50, 0, "K2_SP3")
    stamp(a, 7)
    if OPT.get("dumpK"):
        a("s_lshl_b32 s28, s26, 11"); a("s_add_u32 s28, s28, s18")
        a("v_lshl_add_u32 v48, v1, 5, s28")
        a(f"ds_read_b128 v[64:67], v48 offset:{R0_OFF}"); a(f"ds_read_b128 v[68:71], v48 offset:{R0_OFF+16}")
        a(f"ds_read_b128 v[72:75], v48 offset:{R1_OFF}"); a(f"ds_read_b128 v[76:79], v48 offset:{R1_OFF+16}")
        a("s_waitcnt lgkmcnt(0)")
        a("v_lshlrev_b32 v48, 5, v1")
        a("s_lshl_b32 s28, s27, 13"); a("s_lshl_b32 s29, s26, 11"); a("s_add_u32 s28, s28, s29"); a(f"s_add_u32 s28, s28, {0x1000000}")
        a("s_mov_b32 s22, 0x2000000")
        a("buffer_store_dwordx4 v[64:67], v48, s[20:23], s28 offen"); a("buffer_store_dwordx4 v[68:71], v48, s[20:23], s28 offen offset:16")
        a("s_add_u32 s28, s28, 4096")
        a("buffer_store_dwordx4 v[72:75], v48, s[20:23], s28 offen"); a("buffer_store_dwordx4 v[76:79], v48, s[20:23], s28 offen offset:16")
        a("s_waitcnt vmcnt(0)")
    a("v_lshlrev_b32 v48, 3, v4"); a("v_sub_u32 v48, v48, v3"); a("v_add_u32 v48, 2047, v48"); a("v_and_b32 v48, -2, v48"); a("v_lshlrev_b32 v48, 1, v48")
    a("v_and_b32 v49, 1, v3"); a("v_xor_b32 v49, 1, v49"); a("v_mul_u32_u24 v49, 4160, v49")
    a("v_add_u32 v48, v48, v49")
    a(f"s_add_u32 s28, s18, {R0_OFF}"); a("s_lshl_b32 s29, s26, 5"); a("s_sub_u32 s28, s28, s29")
    a("v_add_u32 v48, s28, v48")
    BZ = 52
    for z in range(4): a(f"v_subrev_u32 v{BZ+z}, {32*(32*z+30)}, v48")
    FRG = 64
    ACC = 112
    for i in range(16): a(f"v_mov_b32 v{ACC+i}, 0")
    def fr(q): return FRG + 4*(q % 12)
    def fread(q):
        z = q >> 4; o = 8*(32*z + 30 - 2*q); b = fr(q)
        a(f"ds_read2_b32 v[{b}:{b+1}], v{BZ+z} offset0:{o} offset1:{o+1}")
        a(f"ds_read2_b32 v[{b+2}:{b+3}], v{BZ+z} offset0:{o+2} offset1:{o+3}")
    a("v_lshlrev_b32 v49, 8, v3"); a("v_lshl_add_u32 v49, v4, 4, v49"); a("s_lshl_b32 s28, s25, 12"); a(f"s_add_u32 s28, s28, {L_U}"); a("v_add_u32 v49, s28, v49")
    for h in range(4): a(f"ds_read_b128 v[{UB+4*h}:{UB+4*h+3}], v49 offset:{64*h}")
    for q in range(4): fread(q)
    for dl in range(16):
        a("s_waitcnt lgkmcnt(0)")
        if dl < 15:
            for q in range(4*(dl+1), 4*(dl+1)+4): fread(q)
        for h in (3, 2, 1, 0):
            for j in range(4):
                m = j - h
                q = 4*dl + m
                if q < 0: continue
                b = fr(q)
                a(f"v_mfma_f32_16x16x32_bf16 v[{ACC+4*j}:{ACC+4*j+3}], v[{b}:{b+3}], v[{UB+4*h}:{UB+4*h+3}], v[{ACC+4*j}:{ACC+4*j+3}]")
            if dl < 15:
                for i in range(4):
                    a(f"v_mov_b32_dpp v{UB+4*h+i}, v{UB+4*h+i} row_shr:1 row_mask:0xf bank_mask:0xf bound_ctrl:0")
    stamp(a, 8)
    a("v_lshlrev_b32 v48, 8, v3"); a("v_lshl_add_u32 v48, v4, 3, v48")
    a("s_lshl_b32 s28, s26, 5"); a("s_add_u32 s28, s28, s17"); a(f"s_add_u32 s28, s28, {SROW_OFF}"); a("v_add_u32 v48, s28, v48")
    for j in range(4):
        y = ACC + 4*j
        a(f"v_cvt_pk_bf16_f32 v{64+2*j}, v{y}, v{y+1}"); a(f"v_cvt_pk_bf16_f32 v{65+2*j}, v{y+2}, v{y+3}")
    for j in range(4): a(f"ds_write_b64 v48, v[{64+2*j}:{65+2*j}] offset:{64*j}")
    a("s_waitcnt lgkmcnt(0)")
    a(f"v_mov_b32 v48, {L_CNT+40}")
    a("s_lshl_b32 s28, s24, 2"); a("v_add_u32 v49, s28, v48")
    a("s_xor_b32 s28, s28, 4"); a("v_add_u32 v50, s28, v48")
    a("ds_write_b32 v49, v46")
    spin(50, 0, "K2_SP5")
    a("s_lshl_b32 s28, s26, 11"); a("s_add_u32 s29, s28, s17"); a(f"s_add_u32 s29, s29, {SROW_OFF}")
    a("v_add_u32 v48, s29, v7")
    a("ds_read_b128 v[64:67], v48"); a("ds_read_b128 v[68:71], v48 offset:1024")
    a("s_lshl_b32 s29, s27, 12"); a("s_add_u32 s29, s29, s28"); a(f"s_add_u32 s29, s29, {G.WS_ST}")
    a("s_waitcnt lgkmcnt(0)")
    for d in range(8): a(f"v_min_u32 v{64+d}, -2, v{64+d}")
    a("buffer_store_dwordx4 v[64:67], v7, s[20:23], s29 offen sc1")
    a("buffer_store_dwordx4 v[68:71], v7, s[20:23], s29 offen offset:1024 sc1")
    stamp(a, 9)
    a(f"v_mov_b32 v50, {L_CNT+64}")
    a("v_and_b32 v48, 31, v1"); a("v_lshlrev_b32 v48, 2, v48"); a("s_lshl_b32 s28, s3, 7"); a(f"s_add_u32 s28, s28, {F_P}"); a("v_add_u32 v48, s28, v48")
    a.label("B_PPOLL")
    a("buffer_load_dword v49, v48, s[20:23], 0 offen sc1"); a("s_waitcnt vmcnt(0)")
    a("v_cmp_eq_u32 vcc, 0, v49"); a("s_nop 4"); a("s_cbranch_vccz B_PPOLL_OK"); a("s_sleep 8"); a("s_branch B_PPOLL")
    a.label("B_PPOLL_OK")
    lds_spin(a, "B_SWAIT", 50, 49, sleep=4)
    stamp(a, 10)
    a("v_lshrrev_b32 v48, 3, v1"); a("v_and_b32 v49, 7, v1")
    a("v_lshlrev_b32 v50, 12, v48"); a("v_lshl_add_u32 v50, v49, 4, v50")
    a("s_lshl_b32 s28, s3, 18"); a("s_lshl_b32 s29, s24, 16"); a("s_add_u32 s28, s28, s29")
    a("s_lshl_b32 s29, s39, 7"); a("s_add_u32 s28, s28, s29"); a(f"s_add_u32 s28, s28, {G.WS_ST}")
    a("s_add_u32 s29, s28, 32768")
    a(f"v_mul_u32_u24 v51, {STL_PITCH}, v48"); a("v_lshl_add_u32 v51, v49, 4, v51")
    a(f"s_mul_i32 s30, s24, {16*STL_PITCH}"); a(f"s_add_u32 s30, s30, {L_STL}"); a("v_add_u32 v51, s30, v51")
    a.label("B_SLOAD")
    a("buffer_load_dwordx4 v[64:67], v50, s[20:23], s28 offen sc1")
    a("buffer_load_dwordx4 v[68:71], v50, s[20:23], s29 offen sc1")
    a("s_waitcnt vmcnt(0)")
    a("v_max3_u32 v72, v64, v65, v66"); a("v_max3_u32 v73, v67, v68, v69"); a("v_max3_u32 v72, v72, v70, v71"); a("v_max_u32 v72, v72, v73")
    a("v_cmp_eq_u32 vcc, -1, v72")
    a("s_nop 4")
    a("s_cbranch_vccz B_SLOADED")
    a("s_sleep 8")
    a("s_branch B_SLOAD")
    a.label("B_SLOADED")
    a("ds_write_b128 v51, v[64:67]"); a(f"ds_write_b128 v51, v[68:71] offset:{8*STL_PITCH}")
    a("s_waitcnt lgkmcnt(0)")
    stamp(a, 11)
    a.label("K2_FINAL")
    a.barrier_hazard()
    a("s_barrier")
    a("v_lshrrev_b32 v2, 3, v1"); a("s_lshl_b32 s28, s36, 3"); a("v_add_u32 v2, s28, v2")
    a("v_and_b32 v3, 7, v1")
    a("v_and_b32 v4, 15, v2"); a("v_lshlrev_b32 v6, 1, v3"); a("v_xor_b32 v4, v4, v6"); a("v_lshlrev_b32 v4, 4, v4"); a("v_lshl_add_u32 v4, v2, 8, v4")
    a("v_xor_b32 v7, 16, v4")
    a("v_add_u32 v12, 65536, v4"); a("v_add_u32 v13, 65536, v7")
    for w in range(4):
        off = 32768 + (w & 1)*16384
        a(f"ds_read_b128 v[{16+8*w}:{19+8*w}], v{4 if w < 2 else 12} offset:{off}")
        a(f"ds_read_b128 v[{20+8*w}:{23+8*w}], v{7 if w < 2 else 13} offset:{off}")
    a(f"v_mul_u32_u24 v6, {8*STL_PITCH}, v3"); a("v_lshl_add_u32 v6, v2, 1, v6"); a(f"v_add_u32 v6, {L_STL}, v6")
    for e in range(8):
        a(f"ds_read_u16 v{48+e}, v6 offset:{e*STL_PITCH}")
    a("s_waitcnt lgkmcnt(0)")
    for e in range(8): a(f"v_add_f32 v{16+e}, v{16+e}, v{24+e}")
    for e in range(8): a(f"v_add_f32 v{32+e}, v{32+e}, v{40+e}")
    for e in range(8): a(f"v_add_f32 v{16+e}, v{16+e}, v{32+e}")
    for d in range(4): a(f"v_cvt_pk_bf16_f32 v{24+d}, v{16+2*d}, v{17+2*d}")
    for d in range(4):
        a(f"v_lshlrev_b32 v{16+2*d}, 16, v{24+d}"); a(f"v_and_b32 v{17+2*d}, 0xffff0000, v{24+d}")
    for e in range(8): a(f"v_mul_f32 v{24+e}, {f2u(-1.4426950408889634):#x}, v{16+e}")
    for e in range(8): a(f"v_exp_f32 v{24+e}, v{24+e}")
    for e in range(8): a(f"v_add_f32 v{24+e}, 1.0, v{24+e}")
    for e in range(8): a(f"v_rcp_f32 v{24+e}, v{24+e}")
    for e in range(8): a(f"v_mul_f32 v{16+e}, v{16+e}, v{24+e}")
    for d in range(4): a(f"v_cvt_pk_bf16_f32 v{24+d}, v{16+2*d}, v{17+2*d}")
    for d in range(4):
        a(f"v_lshlrev_b32 v{16+2*d}, 16, v{24+d}"); a(f"v_and_b32 v{17+2*d}, 0xffff0000, v{24+d}")
        a(f"v_lshlrev_b32 v{32+2*d}, 16, v{48+2*d}"); a(f"v_lshlrev_b32 v{33+2*d}, 16, v{49+2*d}")
    for e in range(8): a(f"v_mul_f32 v{16+e}, v{16+e}, v{32+e}")
    for d in range(4): a(f"v_cvt_pk_bf16_f32 v{24+d}, v{16+2*d}, v{17+2*d}")
    a("s_waitcnt vmcnt(0)")
    for d in range(4):
        a(f"v_lshlrev_b32 v{16+2*d}, 16, v{24+d}"); a(f"v_and_b32 v{17+2*d}, 0xffff0000, v{24+d}")
        a(f"v_lshlrev_b32 v{32+2*d}, 16, v{252+d}"); a(f"v_and_b32 v{33+2*d}, 0xffff0000, v{252+d}")
    for e in range(8): a(f"v_add_f32 v{16+e}, v{16+e}, v{32+e}")
    for d in range(4): a(f"v_cvt_pk_bf16_f32 v{24+d}, v{16+2*d}, v{17+2*d}")
    a("buffer_store_dwordx4 v[24:27], v5, s[12:15], s34 offen")
    stamp(a, 12)
    stamp_store(a, 13, 0)


def gen_mk():
    a = Asm()
    a("s_cmp_ge_u32 s2, 256")
    a("s_cbranch_scc1 MK_END")
    stamp(a, 0)
    a("s_load_dwordx2 s[4:5], s[0:1], 0")
    a("s_load_dwordx4 s[28:31], s[0:1], 80")
    a("s_load_dwordx2 s[6:7], s[0:1], 96")
    a("s_load_dwordx4 s[32:35], s[0:1], 112")
    a("s_load_dwordx16 s[40:55], s[0:1], 0")
    a("s_load_dwordx2 s[56:57], s[0:1], 64")
    a("s_load_dwordx2 s[96:97], s[0:1], 104")
    a("v_lshrrev_b32 v1, 6, v0")
    a("v_readfirstlane_b32 s36, v1")
    a("v_and_b32 v1, 63, v0")
    a("s_and_b32 s37, s2, 7")
    a("s_lshr_b32 s38, s2, 3")
    a("s_getreg_b32 s90, hwreg(HW_REG_XCC_ID)"); a("s_and_b32 s90, s90, 15"); a("s_add_u32 s90, s90, 1")
    a(f"v_and_b32 v2, 31, v1"); a("v_lshlrev_b32 v2, 2, v2"); a(f"v_add_u32 v2, {L_CNT}, v2"); a("v_mov_b32 v3, 0"); a("ds_write_b32 v2, v3")
    a("s_waitcnt lgkmcnt(0)")
    srd(a, 8, 4, 5, 2048*512*2)
    labp = a.newlabel("MK_NP")
    a("s_cmp_lt_u32 s36, 4"); a(f"s_cbranch_scc1 {labp}")
    a.skip_begin()
    a("s_bfe_u32 s58, s36, 0x10001"); a("s_lshl_b32 s59, s2, 1"); a("s_add_u32 s58, s58, s59"); a("s_lshl_b32 s58, s58, 8")
    a("s_and_b32 s59, s36, 1"); a("s_lshl_b32 s59, s59, 7"); a("s_add_u32 s58, s58, s59")
    a("v_lshl_add_u32 v2, v1, 1, s58")
    for i, base in enumerate((42, 44, 46, 48, 50, 52)):
        a(f"global_load_ushort v{PRM+i}, v2, s[{base}:{base+1}]")
    a("s_lshl_b32 s58, s2, 2")
    a("s_load_dword s100, s[54:55], s58")
    a("s_load_dword s101, s[56:57], s58")
    a.skip_end()
    a.label(labp)
    a("s_lshl_b32 s53, s37, 5"); a("s_add_u32 s53, s53, s38")
    srd(a, 12, 28, 29, 512*1792*2)
    srd(a, 16, 30, 31, 512*1792*2)
    srd(a, 20, 34, 35, G.WS_END)
    a("s_cmp_ge_u32 s38, 28")
    a("s_cbranch_scc1 MK_AUX")
    phaseA_gemm1(a)
    a.label("MK_AUX")
    a.barrier_hazard()
    phaseA_aux(a)
    phaseB(a)
    a.label("MK_END")
    a("s_endpgm")
    return a, LDS_TOTAL
```

```python
import sys, os
sys.path.insert(0, os.path.dirname(os.path.abspath(__file__)))
import gen, gen8
out = sys.argv[1] if len(sys.argv) > 1 else "t.s"
for arg in sys.argv[2:]:
    k, v = arg.split("=")
    gen.OPT[k] = int(v)
k, lds = gen8.gen_mk()
gen.build([("recurrent_scan__ssm_conv_s4__swiglu_ffn__prompt_kernel", k, 256, 512, lds)], out)
print("written", out, "nops:", k.total_nops, "lds", lds, "bytes", os.path.getsize(out))
```

```python
from asmlib import Asm
import gen as G
from gen import srd, bf16r, f2u, stamp, stamp_store, OPT
import gen2
from gen2 import cmul, STL_PITCH, R0_OFF, R1_OFF, SROW_OFF
L_U = 131072
L_STL = 139264
L_CNT = 150080

XSLOT = 32768
WBASE = 3*XSLOT
WSLOT = 16384
L_PCS = WBASE + 3*WSLOT
L_STAT = L_PCS + 1024
L_CSF = L_PCS + 2048
L_MODE = L_CSF + 512
LDS_TOTAL = L_CNT + 128
assert L_MODE + 64 <= L_CNT
WS_PCS = G.WS_CS
F_H = G.WS_FLAG
F_A = G.WS_FLAG + 1024
F_R = G.WS_FLAG + 2048
F_P = G.WS_FLAG + 3072
F_C = G.WS_FLAG + 4096
FLAG_BYTES = 8192

def allreduce_ops(regs, t):
    L = []
    for mod in ("quad_perm:[1,0,3,2]", "quad_perm:[2,3,0,1]", "row_half_mirror", "row_mirror"):
        for r in regs: L.append(f"v_add_f32_dpp v{r}, v{r}, v{r} {mod} row_mask:0xf bank_mask:0xf")
    for sw in ("v_permlane16_swap_b32", "v_permlane32_swap_b32"):
        for k, r in enumerate(regs): L.append(f"v_mov_b32 v{t+k}, v{r}")
        for k, r in enumerate(regs): L.append(f"{sw} v{r}, v{t+k}")
        for k, r in enumerate(regs): L.append(f"v_add_f32 v{r}, v{r}, v{t+k}")
    return L

def row_stats_ops(raw, t):
    L = []
    for d in range(4):
        L += [f"v_lshlrev_b32 v{t+2*d}, 16, v{raw+d}", f"v_and_b32 v{t+2*d+1}, 0xffff0000, v{raw+d}"]
    L += [f"v_pk_add_f32 v[{t+8}:{t+9}], v[{t}:{t+1}], v[{t+2}:{t+3}]",
          f"v_pk_add_f32 v[{t+10}:{t+11}], v[{t+4}:{t+5}], v[{t+6}:{t+7}]",
          f"v_pk_add_f32 v[{t+8}:{t+9}], v[{t+8}:{t+9}], v[{t+10}:{t+11}]",
          f"v_add_f32 v{t+8}, v{t+8}, v{t+9}"]
    L += allreduce_ops([t+8], t+9)
    L.append(f"v_mul_f32 v{t+8}, {f2u(1/512):#x}, v{t+8}")
    for k in range(8): L.append(f"v_sub_f32 v{t+k}, v{t+k}, v{t+8}")
    L += [f"v_mul_f32 v{t+9}, v{t}, v{t}", f"v_mul_f32 v{t+10}, v{t+1}, v{t+1}"]
    for k in range(2, 8): L.append(f"v_fmac_f32 v{t+9+(k&1)}, v{t+k}, v{t+k}")
    L.append(f"v_add_f32 v{t+9}, v{t+9}, v{t+10}")
    L += allreduce_ops([t+9], t+10)
    L.append(f"v_mul_f32 v{t+9}, {f2u(1/512):#x}, v{t+9}")
    def r16(x): return [f"v_cvt_pk_bf16_f32 v{x}, v{x}, v{x}", f"v_lshlrev_b32 v{x}, 16, v{x}"]
    L += r16(t+8) + r16(t+9)
    L.append(f"v_add_f32 v{t+9}, {f2u(1e-5):#x}, v{t+9}")
    L += r16(t+9)
    L.append(f"v_sqrt_f32 v{t+9}, v{t+9}")
    L += r16(t+9)
    L += [f"v_rcp_f32 v{t+9}, v{t+9}", f"v_sub_f32 v{t+8}, 0, v{t+8}", f"v_mov_b32 v{t+10}, 0"]
    groups = [[x] for x in L]
    groups.append(["s_mov_b64 exec, 1", f"buffer_store_dwordx2 v[{t+8}:{t+9}], v{t+10}, s[20:23], s52 offen sc1", "s_mov_b64 exec, -1"])
    return groups

def set_flag_byte(a, val):
    a(f"v_mov_b32 v154, {val}"); a("v_mov_b32 v219, 0")
    a("s_mov_b64 exec, 1")
    a("buffer_store_byte v154, v219, s[24:27], s53 offen sc1")
    a("s_mov_b64 exec, -1")

def set_flag_dword(a, soff):
    a("v_mov_b32 v154, 1"); a("v_mov_b32 v219, 0")
    a("s_mov_b64 exec, 1")
    a(f"buffer_store_dword v154, v219, s[20:23], {soff} offen sc1")
    a("s_mov_b64 exec, -1")

def poll(a, lab, srdn, vaddr, vmask, vt, sleep=2):
    a.label(lab)
    a(f"buffer_load_dword v{vt}, v{vaddr}, s[{srdn}:{srdn+3}], 0 offen sc1")
    a("s_waitcnt vmcnt(0)")
    a(f"v_and_b32 v{vt}, v{vt}, v{vmask}")
    a(f"v_cmp_ne_u32 vcc, v{vt}, v{vmask}")
    a("s_nop 4")
    a(f"s_cbranch_vccz {lab}_OK")
    a(f"s_sleep {sleep}")
    a(f"s_branch {lab}")
    a.label(lab + "_OK")

def lds_spin(a, lab, vaddr, vt, sleep=1):
    a.label(lab)
    a(f"ds_read_b32 v{vt}, v{vaddr}")
    a("s_waitcnt lgkmcnt(0)")
    a(f"v_readfirstlane_b32 s92, v{vt}")
    a("s_cmp_eq_u32 s92, 0")
    a("s_cbranch_scc0 " + lab + "_OK")
    a(f"s_sleep {sleep}")
    a(f"s_branch {lab}")
    a.label(lab + "_OK")

def only_wave0(a, fn):
    lab = a.newlabel("W0")
    a("s_cmp_lg_u32 s36, 0"); a(f"s_cbranch_scc1 {lab}")
    a.skip_begin(); fn(); a._skip = a._skip; a.skip_end()
    a.label(lab)


def publish_ready(a, gemm, ta=219, tb=154):
    a("s_lshl_b32 s41, s37, 7"); a("s_lshl_b32 s46, s38, 2"); a("s_add_u32 s41, s41, s46"); a(f"s_add_u32 s41, s41, {F_R}")
    a(f"v_mov_b32 v{ta}, s41")
    if gemm:
        a("s_lshl_b32 s41, s40, 7"); a("s_lshl_b32 s46, s39, 2"); a("s_add_u32 s41, s41, s46"); a(f"s_add_u32 s41, s41, {F_C}")
        a(f"v_mov_b32 v{tb}, s41"); a(f"v_cmp_eq_u32 vcc, 1, v1"); a(f"v_cndmask_b32 v{ta}, v{ta}, v{tb}, vcc")
    a("s_lshr_b32 s41, s2, 5"); a("s_lshl_b32 s41, s41, 7"); a("s_and_b32 s46, s2, 31"); a("s_lshl_b32 s46, s46, 2"); a("s_add_u32 s41, s41, s46"); a(f"s_add_u32 s41, s41, {F_P}")
    a(f"v_mov_b32 v{tb}, s41"); a(f"v_cmp_eq_u32 vcc, 2, v1"); a(f"v_cndmask_b32 v{ta}, v{ta}, v{tb}, vcc")
    a(f"v_mov_b32 v{tb}, s90")
    a("s_mov_b64 exec, 7")
    a(f"buffer_store_dword v{tb}, v{ta}, s[20:23], 0 offen sc1")
    a("s_mov_b64 exec, -1")

def init_check(a, lab, vval, tc=158):
    a.label(lab)
    a(f"v_readfirstlane_b32 s41, v{vval}")
    a("s_cmp_lg_u32 s41, 0"); a(f"s_cbranch_scc1 {lab}_OK")
    a("s_sleep 8")
    a(f"v_mov_b32 v{tc}, 0")
    a(f"buffer_load_dword v{vval}, v{tc}, s[24:27], 0 offen sc1")
    a("s_waitcnt vmcnt(0)")
    a(f"s_branch {lab}")
    a.label(lab + "_OK")

def flags_poll_setup(a, vaddr):
    a(f"v_and_b32 v{vaddr}, 31, v1"); a(f"v_lshlrev_b32 v{vaddr}, 2, v{vaddr}")
    a("s_lshl_b32 s41, s39, 7"); a(f"s_add_u32 s41, s41, {F_R}"); a("s_lshl_b32 s46, s40, 7"); a(f"s_add_u32 s46, s46, {F_C}")
    a("v_mov_b32 v158, s41"); a("v_mov_b32 v159, s46")
    a("v_cmp_gt_u32 vcc, 32, v1"); a("v_cndmask_b32 v158, v159, v158, vcc")
    a(f"v_add_u32 v{vaddr}, v{vaddr}, v158")
    a("v_cmp_lt_u32 vcc, 39, v1"); a("v_mov_b32 v158, s41"); a(f"v_cndmask_b32 v{vaddr}, v{vaddr}, v158, vcc")

def flags_check(a, lab, vaddr, vval):
    a.label(lab)
    a(f"v_cmp_eq_u32 vcc, 0, v{vval}")
    a("s_nop 4")
    a(f"s_cbranch_vccz {lab}_OK")
    a("s_sleep 8")
    a(f"buffer_load_dword v{vval}, v{vaddr}, s[20:23], 0 offen sc1")
    a("s_waitcnt vmcnt(0)")
    a(f"s_branch {lab}")
    a.label(lab + "_OK")
    a(f"v_cmp_eq_u32 vcc, s90, v{vval}")
    a("s_nop 4")
    a("s_cmp_eq_u32 vcc_lo, -1"); a("s_cselect_b32 s41, 1, 2")
    if OPT.get("force_global") or not OPT.get("local"): a("s_mov_b32 s41, 2")
    a("v_mov_b32 v157, s41"); a(f"v_mov_b32 v158, {L_MODE}")
    a("ds_write_b32 v158, v157")


PK = 160
EA = 228
PRM = 246
def kgen_ops():
    L = []
    A = L.append
    A("s_bfe_u32 s92, s36, 0x10001"); A("s_lshl_b32 s92, s92, 4")
    A("s_lshr_b32 s94, s100, s92"); A("s_lshl_b32 s94, s94, 16")
    A("s_lshr_b32 s93, s101, s92"); A("s_lshl_b32 s93, s93, 16")
    for i in range(6): A(f"v_lshlrev_b32 v{12+i}, 16, v{PRM+i}")
    A(f"v_mov_b32 v18, {G.LOG2E:#x}"); A("v_mul_f32 v18, s94, v18"); A("v_exp_f32 v18, v18")
    A("v_cvt_pk_bf16_f32 v18, v18, v18"); A("v_lshlrev_b32 v18, 16, v18")
    A("v_mul_f32 v12, v18, v12"); A("v_mul_f32 v13, v18, v13"); A("v_mul_f32 v14, v18, v14"); A("v_mul_f32 v15, v18, v15")
    A(f"v_mul_f32 v12, {G.LOG2E:#x}, v12"); A(f"v_mul_f32 v13, {f2u(0.15915494309189535):#x}, v13")
    F = lambda c: 20 + 2*(c-1)
    W1 = 34; V1 = 36; W2 = 38; V2 = 40
    cx = [(F(1), 1, 44), (W1, 8, 46), (V1, 128, 48)]
    for d, m, t in cx:
        if m != 1: A(f"v_mul_f32 v{t}, {f2u(float(m)):#x}, v12"); A(f"v_mul_f32 v{t+1}, {f2u(float(m)):#x}, v13")
        else: A(f"v_mov_b32 v{t}, v12"); A(f"v_mov_b32 v{t+1}, v13")
    for d, m, t in cx: A(f"v_fract_f32 v{t+1}, v{t+1}")
    for d, m, t in cx: A(f"v_exp_f32 v{t}, v{t}")
    for d, m, t in cx: A(f"v_cos_f32 v{d}, v{t+1}")
    for d, m, t in cx: A(f"v_sin_f32 v{d+1}, v{t+1}")
    for d, m, t in cx: A(f"v_mul_f32 v{d}, v{d}, v{t}"); A(f"v_mul_f32 v{d+1}, v{d+1}, v{t}")
    def cm(tasks):
        if OPT.get("pkc"):
            pairs = [cmul(None, d, x, y, 50 + 2*(k % 6)) for k, (d, x, y) in enumerate(tasks)]
            for i1, _ in pairs: A(i1)
            for _, i2 in pairs: A(i2)
        else:
            T = [(50 + 2*(k % 6)) for k in range(len(tasks))]
            for t, (d, x, y) in zip(T, tasks): A(f"v_mul_f32 v{t}, v{x}, v{y}")
            for t, (d, x, y) in zip(T, tasks): A(f"v_mul_f32 v{t+1}, v{x}, v{y+1}")
            for t, (d, x, y) in zip(T, tasks): A(f"v_fma_f32 v{d}, -v{x+1}, v{y+1}, v{t}")
            for t, (d, x, y) in zip(T, tasks): A(f"v_fma_f32 v{d+1}, v{x+1}, v{y}, v{t+1}")
    Y = lambda b: 64 + 2*b
    Gq = lambda q: 96 + 2*q
    def put(row, reg, neg): A(f"v_cvt_pk_bf16_f32 v{PK+row}, v{reg}, {'-' if neg else ''}v{reg+1}")
    A(f"v_mov_b32 v{Y(0)}, 1.0"); A(f"v_mov_b32 v{Y(0)+1}, 0"); A(f"v_mov_b32 v{Y(1)}, v{W1}"); A(f"v_mov_b32 v{Y(1)+1}, v{W1+1}")
    cm([(Gq(0), 16, 14), (F(2), F(1), F(1)), (W2, W1, W1), (V2, V1, V1)])
    cm([(Gq(1), Gq(0), V1), (F(3), F(2), F(1)), (F(4), F(2), F(2)), (Y(2), Y(0), W2), (Y(3), Y(1), W2)])
    cm([(Gq(2), Gq(0), V2), (Gq(3), Gq(1), V2), (F(5), F(4), F(1)), (F(6), F(4), F(2)), (F(7), F(4), F(3)), (Y(4), Y(2), W2)])
    for b in range(4): put(41+b, Y(b), False)
    put(0, Gq(0), True); put(8, Gq(1), True); put(16, Gq(2), True); put(20, Gq(3), True)
    for k in range(2, 8):
        t = [(Gq(2*k), Gq(2*k-2), V2), (Gq(2*k+1), Gq(2*k-1), V2), (Y(2*k+1), Y(2*k-1), W2)]
        if 2*k+2 <= 15: t.append((Y(2*k+2), Y(2*k), W2))
        cm(t)
    cm([(Gq(16), Gq(14), V2)])
    for b in range(4, 16): put(41+b, Y(b), False)
    for q in range(4): put(24+2*q, Gq(4+q), True)
    for q in range(8): put(32+q, Gq(8+q), True)
    put(40, Gq(16), True)
    ex = []
    for c in range(1, 8): ex.append((c, 0, c)); ex.append((8+c, 1, c))
    for c in range(1, 4): ex.append((16+c, 2, 2*c)); ex.append((20+c, 3, 2*c))
    for q in range(4): ex.append((24+2*q+1, 4+q, 4))
    XT = 130
    for i in range(0, len(ex), 6):
        grp = ex[i:i+6]
        cm([(XT+2*k, Gq(g), F(c)) for k, (row, g, c) in enumerate(grp)])
        for k, (row, g, c) in enumerate(grp): put(row, XT+2*k, True)
    A("s_and_b32 s92, s36, 1"); A("s_lshl_b32 s92, s92, 10")
    A("v_lshlrev_b32 v44, 4, v1"); A("v_add_u32 v44, s92, v44"); A("v_sub_u32 v44, 2047, v44")
    for e in range(17): A(f"v_subrev_u32 v{EA+e}, {e}, v44")
    for e in range(0, 17, 2):
        e2 = min(e+1, 16); t = 46 + 2*((e//2) & 3)
        A(f"v_cvt_f32_i32 v{t}, v{EA+e}"); A(f"v_cvt_f32_i32 v{t+1}, v{EA+e2}")
        A(f"v_cvt_pk_bf16_f32 v{t}, v{t}, v{t+1}")
        A(f"v_lshrrev_b32 v{t+1}, 16, v{t}"); A(f"v_and_b32 v{t}, 0xffff, v{t}")
        A(f"v_subrev_u32 v{t}, 17024, v{t}"); A(f"v_subrev_u32 v{t+1}, 17024, v{t+1}")
        A([f"v_cmp_gt_i32 vcc, 128, v{EA+e}", "s_nop 1", f"v_cndmask_b32 v{EA+e}, v{t}, v{EA+e}, vcc"])
        if e2 != e: A([f"v_cmp_gt_i32 vcc, 128, v{EA+e2}", "s_nop 1", f"v_cndmask_b32 v{EA+e2}, v{t+1}, v{EA+e2}, vcc"])
    A([f"v_cmp_gt_i32 vcc, 0, v{EA+16}", "v_mov_b32 v46, 641", "s_nop 0", f"v_cndmask_b32 v{EA+16}, v{EA+16}, v46, vcc"])
    for e in range(17): A(f"v_lshlrev_b32 v{EA+e}, 1, v{EA+e}")
    return L

def emit_ops(a, ops):
    for o in ops:
        if isinstance(o, list):
            for i in o: a(i)
        else: a(o)

def row_stats2_ops(raws, t):
    L = []
    for r, raw in enumerate(raws):
        b = t + 12*r
        for d in range(4): L += [f"v_lshlrev_b32 v{b+2*d}, 16, v{raw+d}", f"v_and_b32 v{b+2*d+1}, 0xffff0000, v{raw+d}"]
    for r in range(2):
        b = t + 12*r
        L += [f"v_pk_add_f32 v[{b+8}:{b+9}], v[{b}:{b+1}], v[{b+2}:{b+3}]", f"v_pk_add_f32 v[{b+10}:{b+11}], v[{b+4}:{b+5}], v[{b+6}:{b+7}]"]
    for r in range(2):
        b = t + 12*r
        L += [f"v_pk_add_f32 v[{b+8}:{b+9}], v[{b+8}:{b+9}], v[{b+10}:{b+11}]", f"v_add_f32 v{b+8}, v{b+8}, v{b+9}"]
    def allred(off, toff):
        regs = [t + off, t + 12 + off]
        for mod in ("quad_perm:[1,0,3,2]", "quad_perm:[2,3,0,1]", "row_half_mirror", "row_mirror"):
            for x in regs: L.append(f"v_add_f32_dpp v{x}, v{x}, v{x} {mod} row_mask:0xf bank_mask:0xf")
        for sw in ("v_permlane16_swap_b32", "v_permlane32_swap_b32"):
            for x in regs: L.append(f"v_mov_b32 v{x - off + toff}, v{x}")
            for x in regs: L.append(f"{sw} v{x}, v{x - off + toff}")
            for x in regs: L.append(f"v_add_f32 v{x}, v{x}, v{x - off + toff}")
    allred(8, 9)
    for r in range(2): L.append(f"v_mul_f32 v{t+12*r+8}, {f2u(1/512):#x}, v{t+12*r+8}")
    for r in range(2):
        b = t + 12*r
        for k in range(8): L.append(f"v_sub_f32 v{b+k}, v{b+k}, v{b+8}")
    for r in range(2):
        b = t + 12*r
        L += [f"v_mul_f32 v{b+9}, v{b}, v{b}", f"v_mul_f32 v{b+10}, v{b+1}, v{b+1}"]
    for k in range(2, 8):
        for r in range(2):
            b = t + 12*r
            L.append(f"v_fmac_f32 v{b+9+(k&1)}, v{b+k}, v{b+k}")
    for r in range(2): L.append(f"v_add_f32 v{t+12*r+9}, v{t+12*r+9}, v{t+12*r+10}")
    allred(9, 10)
    def both(fmt):
        for r in range(2): L.append(fmt.format(m=t+12*r+8, v=t+12*r+9))
    both(f"v_mul_f32 v{{v}}, {f2u(1/512):#x}, v{{v}}")
    both("v_cvt_pk_bf16_f32 v{m}, v{m}, v{m}"); both("v_cvt_pk_bf16_f32 v{v}, v{v}, v{v}")
    both("v_lshlrev_b32 v{m}, 16, v{m}"); both("v_lshlrev_b32 v{v}, 16, v{v}")
    both(f"v_add_f32 v{{v}}, {f2u(1e-5):#x}, v{{v}}")
    both("v_cvt_pk_bf16_f32 v{v}, v{v}, v{v}"); both("v_lshlrev_b32 v{v}, 16, v{v}")
    both("v_sqrt_f32 v{v}, v{v}")
    both("v_cvt_pk_bf16_f32 v{v}, v{v}, v{v}"); both("v_lshlrev_b32 v{v}, 16, v{v}")
    both("v_rcp_f32 v{v}, v{v}"); both("v_sub_f32 v{m}, 0, v{m}")
    L += [f"v_mov_b32 v{t+10}, v{t+12+8}", f"v_mov_b32 v{t+11}, v{t+12+9}", f"v_mov_b32 v{t+7}, 0"]
    L[-1] = f"v_mov_b32 v{t+7}, s52"
    L.append(["s_mov_b64 exec, 1", f"ds_write_b128 v{t+7}, v[{t+8}:{t+11}]", "s_mov_b64 exec, -1"])
    return L

def only_wave(a, w, fn):
    lab = a.newlabel("W")
    a(f"s_cmp_lg_u32 s36, {w}"); a(f"s_cbranch_scc1 {lab}")
    a.skip_begin(); fn(); a.skip_end()
    a.label(lab)


def either(a, w, fn1, fn2):
    l1 = a.newlabel("E"); l2 = a.newlabel("E")
    a(f"s_cmp_lg_u32 s36, {w}"); a(f"s_cbranch_scc1 {l1}")
    fn1()
    a(f"s_branch {l2}")
    a.label(l1)
    fn2()
    a.label(l2)

def dma_setup(a, wq):
    a("s_lshl_b32 s43, s39, 18"); a(f"s_lshl_b32 s41, {wq}, 16"); a("s_add_u32 s43, s43, s41")
    a(f"s_mul_i32 s42, {wq}, 57344"); a("s_lshl_b32 s41, s40, 7"); a("s_add_u32 s42, s42, s41")
    a(f"s_lshl_b32 s44, {wq}, 13")
    a(f"s_lshl_b32 s45, {wq}, 11"); a(f"s_add_u32 s45, s45, {WBASE}")

def dma(a, j, fill=None):
    fill = list(fill or [])
    per = (len(fill) + 11)//12
    def f():
        nonlocal fill
        emit_ops(a, fill[:per]); fill = fill[per:]
    sl = j % 3
    a(f"s_add_u32 s41, s39, {j}"); a("s_and_b32 s41, s41, 7"); a("s_lshl_b32 s55, s41, 7"); a("s_add_u32 s55, s55, s43")
    a("s_mul_i32 s41, s41, 229376"); a("s_add_u32 s41, s41, s42"); a("s_add_u32 s49, s41, 28672")
    for gu in range(2):
        for z in range(2):
            a(f"s_add_u32 m0, s45, {sl*WSLOT + gu*8192 + z*1024}")
            a("s_nop 0")
            a(f"buffer_load_dwordx4 v4, s[{12+4*gu}:{15+4*gu}], s{41 if z == 0 else 49} offen lds")
            f()
    for z in range(8):
        a(f"s_add_u32 m0, s44, {sl*XSLOT + z*1024}"); a(f"s_add_u32 s46, s55, {z*8192}")
        a(f"buffer_load_dwordx4 v{2 + (z&1)}, s[8:11], s46 offen lds")
        f()
    emit_ops(a, fill)

def dma_voff(a):
    a("v_lshrrev_b32 v16, 3, v1"); a("v_lshrrev_b32 v17, 4, v1"); a("v_and_b32 v18, 7, v1")
    a("v_xor_b32 v19, v18, v17"); a("v_lshlrev_b32 v19, 4, v19"); a("v_lshl_add_u32 v2, v16, 10, v19")
    a("v_xor_b32 v3, 64, v2")
    a("v_mul_u32_u24 v4, 3584, v16"); a("v_and_b32 v19, 1, v17"); a("v_lshlrev_b32 v19, 2, v19"); a("v_xor_b32 v19, v19, v18")
    a("v_lshl_add_u32 v4, v19, 4, v4")

def dma0(a):
    a("s_mul_i32 s41, s39, 229376"); a("s_mul_i32 s46, s36, 28672"); a("s_add_u32 s41, s41, s46"); a("s_lshl_b32 s46, s40, 7"); a("s_add_u32 s41, s41, s46")
    a("s_lshl_b32 s46, s36, 10"); a(f"s_add_u32 m0, s46, {WBASE}")
    a("s_nop 0")
    a("buffer_load_dwordx4 v4, s[12:15], s41 offen lds")
    a(f"s_add_u32 m0, s46, {WBASE+8192}")
    a("s_nop 0")
    a("buffer_load_dwordx4 v4, s[16:19], s41 offen lds")
    a("s_lshl_b32 s41, s39, 18"); a("s_lshl_b32 s46, s36, 15"); a("s_add_u32 s41, s41, s46"); a("s_lshl_b32 s46, s39, 7"); a("s_add_u32 s41, s41, s46")
    a("s_lshl_b32 s49, s36, 12")
    for z in range(4):
        a(f"s_add_u32 m0, s49, {z*1024}"); a(f"s_add_u32 s46, s41, {z*8192}")
        a(f"buffer_load_dwordx4 v{2 + (z&1)}, s[8:11], s46 offen lds")

def prefill(a, r=156):
    a("s_bfe_u32 s58, s36, 0x10001"); a("s_lshl_b32 s59, s2, 1"); a("s_add_u32 s58, s58, s59"); a("s_lshl_b32 s58, s58, 12")
    a("s_and_b32 s59, s36, 1"); a("s_lshl_b32 s59, s59, 11"); a("s_add_u32 s58, s58, s59"); a(f"s_add_u32 s58, s58, {G.WS_ST}")
    for i in range(4): a(f"v_mov_b32 v{r+i}, -1")
    a(f"buffer_store_dwordx4 v[{r}:{r+3}], v245, s[20:23], s58 offen sc1")
    a(f"buffer_store_dwordx4 v[{r}:{r+3}], v245, s[20:23], s58 offen offset:1024 sc1")


def phaseA_gemm1(a):
    if OPT.get("local"):
        a("s_mov_b32 s39, s37"); a("s_mov_b32 s40, s38")
    else:
        a("s_mul_i32 s41, s38, 37"); a("s_lshr_b32 s41, s41, 8"); a("s_mul_i32 s42, s41, 7"); a("s_sub_u32 s42, s38, s42")
        a("s_lshr_b32 s39, s37, 2"); a("s_lshl_b32 s39, s39, 2"); a("s_add_u32 s39, s39, s41")
        a("s_and_b32 s40, s37, 3"); a("s_mul_i32 s40, s40, 7"); a("s_add_u32 s40, s40, s42")
    dma_voff(a)
    a("s_cmp_ge_u32 s36, 4"); a("s_cbranch_scc1 A_LOAD")
    dma_setup(a, "s36")
    dma(a, 0)
    a(f"v_mov_b32 v56, {L_CNT+84}"); a("v_mov_b32 v57, 1")
    a("s_mov_b64 exec, 1"); a("ds_add_u32 v56, v57"); a("s_mov_b64 exec, -1")
    a("v_lshlrev_b32 v245, 4, v1")
    srd(a, 24, 32, 33, 256)
    a("s_setprio 2")
    a("s_lshr_b32 s47, s36, 1"); a("s_and_b32 s48, s36, 1")
    a("v_and_b32 v16, 31, v1"); a("v_lshlrev_b32 v16, 7, v16")
    a("s_lshl_b32 s41, s47, 14"); a("v_add_u32 v16, s41, v16")
    a("v_lshrrev_b32 v17, 5, v1"); a("v_bfe_u32 v18, v1, 1, 3")
    XA = 6
    for s in range(4):
        a(f"v_add_u32 v19, {2*s}, v17"); a("v_xor_b32 v19, v19, v18")
        a(f"v_lshl_add_u32 v{XA+s}, v19, 4, v16")
        a(f"v_add_u32 v{XA+4+s}, 65536, v{XA+s}")
    a("v_bfe_u32 v18, v1, 2, 2")
    a("v_lshl_add_u32 v19, v17, 3, v18"); a("v_lshlrev_b32 v19, 7, v19")
    a("v_lshrrev_b32 v20, 1, v18"); a("v_xor_b32 v20, s48, v20"); a("v_lshlrev_b32 v20, 2, v20")
    a("v_bfe_u32 v21, v1, 4, 1"); a("v_lshl_add_u32 v20, v21, 1, v20")
    a("v_bfe_u32 v21, v1, 1, 1"); a("v_add_u32 v20, v20, v21")
    a("v_lshl_add_u32 v19, v20, 4, v19")
    a("v_and_b32 v21, 1, v1"); a("v_lshl_add_u32 v19, v21, 3, v19")
    a(f"v_add_u32 v5, {WBASE}, v19")
    for i in range(4): a(f"v_mov_b32 v{48+i}, 0x3f803f80")
    FB = 192; ACC = 64
    def reads(g):
        j, s = g >> 2, g & 3
        sl = j % 3; b = FB + 24*(g & 1)
        xa = XA + s + (4 if sl == 2 else 0); xo = (sl*XSLOT) & 0xffff
        wo = sl*WSLOT + 16*s*128
        L = [f"ds_read_b64_tr_b16 v[{b}:{b+1}], v5 offset:{wo}", f"ds_read_b64_tr_b16 v[{b+2}:{b+3}], v5 offset:{wo+512}"]
        for rt in range(4): L.append(f"ds_read_b128 v[{b+4+4*rt}:{b+7+4*rt}], v{xa} offset:{xo+4096*rt}")
        L += [f"ds_read_b64_tr_b16 v[{b+20}:{b+21}], v5 offset:{wo+8192}", f"ds_read_b64_tr_b16 v[{b+22}:{b+23}], v5 offset:{wo+8192+512}"]
        return L
    stamp(a, 1)
    a("s_waitcnt vmcnt(0)")
    a(f"v_mov_b32 v56, {L_CNT+80}"); a("v_mov_b32 v57, 1")
    a("s_mov_b64 exec, 1"); a("ds_add_u32 v56, v57"); a("s_mov_b64 exec, -1")
    a.label("A_C0")
    a("ds_read_b32 v57, v56"); a("s_waitcnt lgkmcnt(0)"); a("v_readfirstlane_b32 s41, v57")
    a("s_cmp_lt_u32 s41, 4"); a("s_cbranch_scc1 A_C0")
    stamp(a, 2)
    for r in reads(0): a(r)
    for g in range(32):
        j, s = g >> 2, g & 3
        b = FB + 24*(g & 1)
        nxt = reads(g+1) if g < 31 else []
        def mf(gu, rt):
            ac = ACC + 16*(4*gu + rt)
            c = "0" if g == 0 else f"v[{ac}:{ac+15}]"
            wa = b if gu == 0 else b + 20
            xb = b + 4 + 4*rt
            a(f"v_mfma_f32_32x32x16_bf16 v[{ac}:{ac+15}], v[{wa}:{wa+3}], v[{xb}:{xb+3}], {c}")
        a("s_waitcnt lgkmcnt(0)")
        mf(0, 0)
        if s == 3 and j < 7:
            if j == 1:
                a("v_lshrrev_b32 v58, 5, v1"); a("v_lshlrev_b32 v58, 4, v58")
                a("s_lshl_b32 s41, s47, 9"); a("s_lshl_b32 s46, s48, 7"); a("s_add_u32 s41, s41, s46"); a(f"s_add_u32 s41, s41, {L_PCS}")
                a("v_add_u32 v58, s41, v58")
                a("s_mov_b32 exec_lo, 1"); a("s_mov_b32 exec_hi, 1")
                for gu in range(2):
                    for q in range(4): a(f"ds_write_b128 v58, v[{16+16*gu+4*q}:{16+16*gu+4*q+3}] offset:{gu*256+q*32}")
                a("s_mov_b64 exec, -1")
                a("s_waitcnt lgkmcnt(0)")
            if j == 2: a("s_waitcnt vmcnt(0)")
            a("s_barrier")
            if OPT.get("stA"): stamp(a, 6+j, force=True)
            if j == 0:
                prefill(a, 240)
                a("v_mov_b32 v60, 0"); a("buffer_load_dword v61, v60, s[24:27], 0 offen sc1")
            if j == 1:
                lab = a.newlabel("A_CP")
                a("s_cmp_ge_u32 s36, 2"); a(f"s_cbranch_scc1 {lab}")
                a.skip_begin()
                a("v_lshlrev_b32 v58, 2, v0"); a(f"v_add_u32 v59, {L_PCS}, v58")
                a("ds_read_b32 v56, v59"); a("ds_read_b32 v57, v59 offset:512")
                a("s_lshl_b32 s41, s40, 3"); a("s_add_u32 s41, s41, s39"); a("s_lshl_b32 s41, s41, 9"); a(f"s_add_u32 s41, s41, {WS_PCS}")
                a("s_waitcnt lgkmcnt(0)")
                a("v_add_f32 v56, v56, v57")
                a("buffer_store_dword v56, v58, s[20:23], s41 offen sc1")
                a.skip_end()
                a.label(lab)
                def st():
                    a("v_and_b32 v58, 15, v1"); a("v_lshlrev_b32 v58, 2, v58"); a(f"v_add_u32 v59, {L_STAT}, v58")
                    a("ds_read_b32 v56, v59")
                    a("s_lshl_b32 s41, s53, 6"); a(f"s_add_u32 s41, s41, {G.WS_STATS}")
                    a("s_waitcnt lgkmcnt(0)")
                    a("s_mov_b64 exec, 0xffff")
                    a("buffer_store_dword v56, v58, s[20:23], s41 offen sc1")
                    a("s_mov_b64 exec, -1")
                only_wave(a, 2, st)
            if j == 2:
                def pub():
                    init_check(a, "A_INIT", 61, tc=18)
                    publish_ready(a, True, ta=16, tb=17)
                only_wave0(a, pub)
            if j == 5:
                a("v_and_b32 v14, 31, v1"); a("v_lshlrev_b32 v14, 3, v14")
                a("s_lshl_b32 s41, s39, 11"); a("s_lshl_b32 s46, s47, 10"); a("s_add_u32 s41, s41, s46"); a(f"s_add_u32 s41, s41, {G.WS_STATS}")
                for rt in range(4): a(f"buffer_load_dwordx2 v[{52+2*rt}:{53+2*rt}], v14, s[20:23], s41 offen offset:{256*rt} sc1")
        for r in nxt[0:2]: a(r)
        mf(0, 1)
        for r in nxt[2:4]: a(r)
        mf(0, 2)
        for r in nxt[4:6]: a(r)
        mf(0, 3)
        for r in nxt[6:8]: a(r)
        for rt in range(4): mf(1, rt)
        if g < 4:
            lab = a.newlabel("A_CM")
            a(f"s_cmp_lg_u32 s47, {g>>1}"); a(f"s_cbranch_scc1 {lab}")
            a.skip_begin()
            c0 = "0" if (g & 1) == 0 else "v[16:31]"; c1 = "0" if (g & 1) == 0 else "v[32:47]"
            a(f"v_mfma_f32_32x32x16_bf16 v[16:31], v[{b}:{b+3}], v[48:51], {c0}")
            a(f"v_mfma_f32_32x32x16_bf16 v[32:47], v[{b+20}:{b+23}], v[48:51], {c1}")
            a.skip_end()
            a.label(lab)
    stamp(a, 3)
    a("v_lshrrev_b32 v15, 5, v1"); a("v_lshlrev_b32 v15, 4, v15"); a("s_lshl_b32 s41, s48, 7"); a(f"s_add_u32 s41, s41, {L_CSF}"); a("v_add_u32 v15, s41, v15")
    for gu in range(2):
        for q in range(4): a(f"ds_read_b128 v[{16+16*gu+4*q}:{16+16*gu+4*q+3}], v15 offset:{gu*256+q*32}")
    a(f"v_mov_b32 v14, {L_MODE}"); a("ds_read_b32 v13, v14")
    a("s_lshl_b32 s41, s47, 2"); a("s_lshl_b32 s50, s39, 3"); a("s_add_u32 s41, s41, s50")
    a("s_mul_i32 s41, s41, 112"); a("s_lshl_b32 s50, s40, 2"); a("s_add_u32 s41, s41, s50"); a("s_lshl_b32 s50, s48, 1"); a("s_add_u32 s41, s41, s50")
    a("s_lshl_b32 s56, s41, 10")
    if G.WS_HF: a(f"s_add_u32 s56, s56, {G.WS_HF}")
    for rt in range(1, 4): a(f"s_add_u32 s{56+rt}, s56, {rt*114688}")
    a("s_mov_b32 s46, 1.0"); a("s_mov_b32 s47, 1.0")
    a("v_lshlrev_b32 v62, 4, v1")
    a("s_waitcnt vmcnt(0) lgkmcnt(0)")
    a("v_readfirstlane_b32 s91, v13")
    HR = 192; TM = 224
    for rt in range(4):
        nm, rsd = 52+2*rt, 53+2*rt
        o = 2 + 6*(rt & 1)
        a(f"v_mov_b32 v{o}, v{nm}"); a(f"v_mov_b32 v{o+1}, v{nm}")
        a(f"v_mul_f32 v{o+2}, {f2u(-1.4426950408889634):#x}, v{rsd}"); a(f"v_mov_b32 v{o+3}, v{o+2}")
        a(f"v_mul_f32 v{o+4}, v{rsd}, v{rsd}"); a(f"v_mov_b32 v{o+5}, v{o+4}")
        for half in range(2):
            prs = [8*half + 2*k for k in range(4)]
            Gp = lambda i: f"v[{ACC+16*rt+i}:{ACC+16*rt+i+1}]"
            Up = lambda i: f"v[{ACC+64+16*rt+i}:{ACC+64+16*rt+i+1}]"
            CG = lambda i: f"v[{16+i}:{16+i+1}]"
            CU = lambda i: f"v[{32+i}:{32+i+1}]"
            Tm = lambda k: TM + 8*half + 2*k
            if OPT.get("epk", 1):
                for i in prs: a(f"v_pk_fma_f32 {Gp(i)}, {CG(i)}, v[{o}:{o+1}], {Gp(i)}")
                for i in prs: a(f"v_pk_fma_f32 {Up(i)}, {CU(i)}, v[{o}:{o+1}], {Up(i)}")
                for k, i in enumerate(prs): a(f"v_pk_mul_f32 v[{Tm(k)}:{Tm(k)+1}], {Gp(i)}, v[{o+2}:{o+3}]")
                for k, i in enumerate(prs):
                    a(f"v_exp_f32 v{Tm(k)}, v{Tm(k)}"); a(f"v_exp_f32 v{Tm(k)+1}, v{Tm(k)+1}")
                for k, i in enumerate(prs): a(f"v_pk_mul_f32 {Gp(i)}, {Gp(i)}, {Up(i)}")
                for k, i in enumerate(prs): a(f"v_pk_add_f32 v[{Tm(k)}:{Tm(k)+1}], v[{Tm(k)}:{Tm(k)+1}], s[46:47]")
                for k, i in enumerate(prs): a(f"v_pk_mul_f32 {Gp(i)}, {Gp(i)}, v[{o+4}:{o+5}]")
                for k, i in enumerate(prs):
                    a(f"v_rcp_f32 v{Tm(k)}, v{Tm(k)}"); a(f"v_rcp_f32 v{Tm(k)+1}, v{Tm(k)+1}")
                for k, i in enumerate(prs): a(f"v_pk_mul_f32 {Gp(i)}, {Gp(i)}, v[{Tm(k)}:{Tm(k)+1}]")
            else:
                els = [8*half + k for k in range(8)]
                g = lambda i: ACC+16*rt+i
                u = lambda i: ACC+64+16*rt+i
                t = lambda k: TM + 8*half + k
                for i in els: a(f"v_fma_f32 v{g(i)}, v{16+i}, v{o}, v{g(i)}")
                for k, i in enumerate(els): a(f"v_mul_f32 v{t(k)}, v{g(i)}, v{o+2}")
                for i in els: a(f"v_fma_f32 v{u(i)}, v{32+i}, v{o}, v{u(i)}")
                for k, i in enumerate(els): a(f"v_exp_f32 v{t(k)}, v{t(k)}")
                for i in els: a(f"v_mul_f32 v{g(i)}, v{g(i)}, v{u(i)}")
                for k, i in enumerate(els): a(f"v_add_f32 v{t(k)}, 1.0, v{t(k)}")
                for i in els: a(f"v_mul_f32 v{g(i)}, v{g(i)}, v{o+4}")
                for k, i in enumerate(els): a(f"v_rcp_f32 v{t(k)}, v{t(k)}")
                for k, i in enumerate(els): a(f"v_mul_f32 v{g(i)}, v{g(i)}, v{t(k)}")
            F = 2*rt + half
            for k, i in enumerate(prs):
                a(f"v_cvt_pk_bf16_f32 v{HR+4*F+k}, v{ACC+16*rt+i}, v{ACC+16*rt+i+1}")
            l1 = a.newlabel("A_S"); l2 = a.newlabel("A_S")
            a("s_cmp_eq_u32 s91, 1"); a(f"s_cbranch_scc0 {l1}")
            a(f"buffer_store_dwordx4 v[{HR+4*F}:{HR+4*F+3}], v62, s[20:23], s{56+rt} offen offset:{half*1024}")
            a(f"s_branch {l2}")
            a.label(l1)
            a(f"buffer_store_dwordx4 v[{HR+4*F}:{HR+4*F+3}], v62, s[20:23], s{56+rt} offen offset:{half*1024} sc1")
            a.label(l2)
    stamp(a, 4)
    a("s_waitcnt vmcnt(0)")
    a("s_setprio 0")
    a(f"v_mov_b32 v2, {L_CNT+76}"); a("v_mov_b32 v3, 1")
    a("s_mov_b64 exec, 1")
    a("ds_add_rtn_u32 v4, v2, v3")
    a("s_waitcnt lgkmcnt(0)")
    a("v_readfirstlane_b32 s41, v4")
    a("s_mov_b64 exec, -1")
    labn = a.newlabel("A_NH")
    a("s_cmp_lg_u32 s41, 3"); a(f"s_cbranch_scc1 {labn}")
    a.skip_begin()
    a("s_lshl_b32 s41, s39, 7"); a("s_lshl_b32 s46, s40, 2"); a("s_add_u32 s41, s41, s46"); a(f"s_add_u32 s41, s41, {F_H}")
    l1 = a.newlabel("A_F"); l2 = a.newlabel("A_F")
    a("v_mov_b32 v4, 0")
    a("s_mov_b64 exec, 1")
    a("s_cmp_eq_u32 s91, 1"); a(f"s_cbranch_scc0 {l1}")
    a("buffer_store_dword v3, v4, s[20:23], s41 offen")
    a(f"s_branch {l2}")
    a.label(l1)
    a("buffer_store_dword v3, v4, s[20:23], s41 offen sc1")
    a.label(l2)
    a("s_mov_b64 exec, -1")
    a.skip_end()
    a.label(labn)
    stamp(a, 5)
    a("s_branch B_GEMM2")

    a.label("A_LOAD")
    a.barrier_hazard()
    a("s_sub_u32 s47, s36, 4")
    a(f"s_setprio {OPT.get('lprio', 3)}")
    dma_setup(a, "s47")
    a(f"v_mov_b32 v56, {L_CNT+84}")
    a.label("A_L0")
    a("ds_read_b32 v57, v56"); a("s_waitcnt lgkmcnt(0)"); a("v_readfirstlane_b32 s41, v57")
    a("s_cmp_lt_u32 s41, 4"); a("s_cbranch_scc1 A_L0")
    dma(a, 1)
    a("s_lshl_b32 s41, s53, 3"); a("s_lshl_b32 s46, s47, 1"); a("s_add_u32 s41, s41, s46"); a("s_lshl_b32 s41, s41, 10")
    a("s_lshl_b32 s52, s47, 4"); a(f"s_add_u32 s52, s52, {L_STAT}")
    a("v_lshlrev_b32 v245, 4, v1")
    a("buffer_load_dwordx4 v[220:223], v245, s[8:11], s41 offen")
    a("buffer_load_dwordx4 v[224:227], v245, s[8:11], s41 offen offset:1024")
    dma(a, 2)
    srd(a, 24, 32, 33, 256)
    kops = kgen_ops()
    nea = 0
    iea = next(k for k, o in enumerate(kops) if isinstance(o, str) and o.startswith("s_and_b32 s92, s36, 1"))
    ea_ops, k_ops = kops[iea:], kops[:iea]
    stamp(a, 1)
    def dummy(): a("buffer_load_dword v218, v245, s[8:11], 0 offen")
    rs = row_stats2_ops((220, 224), 132)
    allk = k_ops + ea_ops
    ntail = OPT.get("ntail", 0)
    body, tail_ops = (allk[:len(allk)-ntail], allk[len(allk)-ntail:]) if ntail else (allk, [])
    per = (len(body) + 4)//5
    fills = {1: rs}
    for idx, key in enumerate((2, 3, 4, 5, 6)):
        fills[key] = body[idx*per:(idx+1)*per]
    for j in range(7):
        if j == 5:
            a("s_waitcnt vmcnt(12)")
            only_wave(a, 4, lambda: flags_check(a, "A_POLL", 10, 9))
        if j == 6:
            emit_ops(a, fills[6])
            a("s_waitcnt vmcnt(1)")
            a("v_add_f32 v144, v144, v145"); a("v_add_f32 v146, v146, v147"); a("v_add_f32 v148, v148, v149"); a("v_add_f32 v150, v150, v151")
            a("v_add_f32 v144, v144, v146"); a("v_add_f32 v148, v148, v150"); a("v_add_f32 v144, v144, v148")
            a(f"v_add_u32 v153, {L_CSF}, v152"); a("ds_write_b32 v153, v144")
        n = {0: 12, 1: 12, 2: 12, 3: 12, 4: 12, 5: 12, 6: 1}[j]
        a(f"s_waitcnt vmcnt({n}) lgkmcnt(0)")
        a("s_barrier")
        if j == 1:
            a("v_and_b32 v152, 31, v1"); a("s_lshl_b32 s41, s47, 5"); a("v_add_u32 v152, s41, v152"); a("v_lshlrev_b32 v152, 2, v152")
        if j == 4:
            flags_poll_setup(a, 10)
            a("v_mov_b32 v9, 0")
            either(a, 4, lambda: a("buffer_load_dword v9, v10, s[20:23], 0 offen sc1"), dummy)
        if j == 0:
            dma(a, 3, fills[1])
        elif j + 3 <= 7: dma(a, j+3, fills[j+1])
        if j == 5:
            a("s_lshl_b32 s41, s40, 12"); a(f"s_add_u32 s41, s41, {WS_PCS}")
            for m8 in range(8): a(f"buffer_load_dword v{144+m8}, v152, s[20:23], s41 offen offset:{m8*512} sc1")
            a("v_and_b32 v7, 31, v1"); a("v_lshlrev_b32 v7, 2, v7"); a("s_lshl_b32 s41, s37, 7"); a(f"s_add_u32 s41, s41, {F_A}"); a("v_add_u32 v7, s41, v7")
            a("v_mov_b32 v8, 0")
            either(a, 7, lambda: a("buffer_load_dword v8, v7, s[20:23], 0 offen sc1"), dummy)
    stamp(a, 3)
    emit_ops(a, tail_ops)
    a("s_branch B_CONV")

def phaseA_aux(a):
    a("s_sub_u32 s39, s38, 28"); a("s_lshl_b32 s39, s39, 3"); a("s_add_u32 s39, s39, s37")
    a("s_cmp_ge_u32 s39, 28"); a("s_cselect_b32 s40, 28, 0"); a("s_sub_u32 s40, s39, s40")
    a("v_lshlrev_b32 v2, 4, v1"); a("v_add_u32 v3, 4096, v2")
    srd(a, 24, 32, 33, 256)
    labz = a.newlabel("A_NZ")
    a("s_cmp_lg_u32 s39, 31"); a(f"s_cbranch_scc1 {labz}")
    a("s_cmp_lg_u32 s36, 0"); a(f"s_cbranch_scc1 {labz}")
    a.skip_begin()
    for r in range(8, 12): a(f"v_mov_b32 v{r}, 0")
    a(f"s_mov_b32 s45, {G.WS_FLAG}")
    for z in range(8):
        a(f"buffer_store_dwordx4 v[8:11], v{2 if z < 4 else 3}, s[20:23], s45 offen offset:{(z&3)*1024} sc1")
    a("s_waitcnt vmcnt(0)")
    a("v_mov_b32 v12, 1")
    a("s_mov_b64 exec, 1")
    a("buffer_store_dword v12, v8, s[24:27], 0 offen sc1")
    a("s_mov_b64 exec, -1")
    a.skip_end()
    a.label(labz)
    a("s_lshl_b32 s41, s53, 3"); a("s_add_u32 s41, s41, s36"); a("s_lshl_b32 s52, s41, 3"); a(f"s_add_u32 s52, s52, {G.WS_STATS}"); a("s_lshl_b32 s41, s41, 10")
    a("buffer_load_dwordx4 v[40:43], v2, s[8:11], s41 offen")
    a("s_lshl_b32 s42, s36, 13")
    a("s_lshl_b32 s41, s39, 16"); a("s_add_u32 s41, s41, s42")
    for i in range(8):
        a(f"buffer_load_dwordx4 v[{96+4*i}:{96+4*i+3}], v{2 if i<4 else 3}, s[8:11], s41 offen offset:{(i&3)*1024}")
    srd(a, 24, 6, 7, 1792*512*2)
    a("s_lshl_b32 s44, s40, 16"); a("s_add_u32 s44, s44, s42")
    for i in range(8):
        a(f"buffer_load_dwordx4 v[{176+4*i}:{176+4*i+3}], v{2 if i<4 else 3}, s[24:27], s44 offen offset:{(i&3)*1024}")
    srd(a, 24, 32, 33, 256)
    labq = a.newlabel("A_NPF")
    a("s_cmp_lt_u32 s36, 4"); a(f"s_cbranch_scc1 {labq}")
    a.skip_begin()
    a("v_lshlrev_b32 v245, 4, v1")
    prefill(a)
    a.skip_end()
    a.label(labq)
    a("s_mov_b32 s84, 0xaaaaaaaa"); a("s_mov_b32 s85, 0xaaaaaaaa"); a("s_mov_b32 s86, 0xcccccccc"); a("s_mov_b32 s87, 0xcccccccc"); a("s_mov_b32 s88, 0xf0f0f0f0"); a("s_mov_b32 s89, 0xf0f0f0f0")
    stamp(a, 1)
    a("s_waitcnt vmcnt(16) lgkmcnt(0)")
    for grp in row_stats_ops(40, 44):
        for i in grp: a(i)
    a("s_waitcnt vmcnt(9)")
    X = 32
    for i in range(8):
        for d in range(4):
            a(f"v_lshlrev_b32 v{X+8*i+2*d}, 16, v{96+4*i+d}")
            a(f"v_and_b32 v{X+8*i+2*d+1}, 0xffff0000, v{96+4*i+d}")
    for i in range(8):
        b = X + 8*i; t = 144 + 2*(i & 3)
        a(f"v_pk_add_f32 v[{t}:{t+1}], v[{b}:{b+1}], v[{b+2}:{b+3}]")
        a(f"v_pk_mul_f32 v[{t+8}:{t+9}], v[{b}:{b+1}], v[{b}:{b+1}]")
        a(f"v_pk_add_f32 v[{t}:{t+1}], v[{t}:{t+1}], v[{b+4}:{b+5}]")
        a(f"v_pk_fma_f32 v[{t+8}:{t+9}], v[{b+2}:{b+3}], v[{b+2}:{b+3}], v[{t+8}:{t+9}]")
        a(f"v_pk_add_f32 v[{t}:{t+1}], v[{t}:{t+1}], v[{b+6}:{b+7}]")
        a(f"v_pk_fma_f32 v[{t+8}:{t+9}], v[{b+4}:{b+5}], v[{b+4}:{b+5}], v[{t+8}:{t+9}]")
        a(f"v_add_f32 v{128+i}, v{t}, v{t+1}")
        a(f"v_pk_fma_f32 v[{t+8}:{t+9}], v[{b+6}:{b+7}], v[{b+6}:{b+7}], v[{t+8}:{t+9}]")
        a(f"v_add_f32 v{136+i}, v{t+8}, v{t+9}")
    def rs_level(src, n, mask, perm, dst, tmp):
        for k in range(n):
            A_, B_ = src[2*k], src[2*k+1]
            a(f"v_cndmask_b32 v{dst[k]}, v{A_}, v{B_}, {mask}")
            a(f"v_cndmask_b32 v{tmp+k}, v{B_}, v{A_}, {mask}")
        for k in range(n):
            a(f"v_add_f32_dpp v{dst[k]}, v{tmp+k}, v{dst[k]} {perm} row_mask:0xf bank_mask:0xf")
    src = [128+i for i in range(16)]
    d1 = [144+k for k in range(8)]
    rs_level(src, 8, "s[84:85]", "quad_perm:[1,0,3,2]", d1, 160)
    d2 = [128+k for k in range(4)]
    rs_level(d1, 4, "s[86:87]", "quad_perm:[2,3,0,1]", d2, 160)
    for m in ("row_ror:4", "row_ror:8"):
        for r in d2: a(f"v_add_f32_dpp v{r}, v{r}, v{r} {m} row_mask:0xf bank_mask:0xf")
    for sw in ("v_permlane16_swap_b32", "v_permlane32_swap_b32"):
        for k, r in enumerate(d2): a(f"v_mov_b32 v{160+k}, v{r}")
        for k, r in enumerate(d2): a(f"{sw} v{r}, v{160+k}")
        for k, r in enumerate(d2): a(f"v_add_f32 v{r}, v{r}, v{160+k}")
    a("v_cndmask_b32 v8, v128, v129, s[88:89]")
    a("v_cndmask_b32 v9, v130, v131, s[88:89]")
    a(f"v_mul_f32 v8, {f2u(1/512):#x}, v8"); a(f"v_mul_f32 v9, {f2u(1/512):#x}, v9")
    a("v_fma_f32 v9, -v8, v8, v9"); a("v_max_f32 v9, 0, v9")
    bf16r(a, 8, 8); bf16r(a, 9, 9)
    a(f"v_add_f32 v9, {f2u(1e-5):#x}, v9"); bf16r(a, 9, 9)
    a("v_sqrt_f32 v9, v9"); bf16r(a, 9, 9)
    a("v_rcp_f32 v9, v9"); a("v_sub_f32 v8, 0, v8")
    a("v_mul_f32 v11, v8, v9")
    stamp(a, 2)
    RS = [92, 94, 56, 58, 80, 82, 84, 86]
    for i in range(8):
        a(f"v_readlane_b32 s{RS[i]}, v9, {i}"); a(f"v_readlane_b32 s{RS[i]+1}, v9, {i}")
    for i in range(8):
        a(f"v_readlane_b32 s{46+(i&1)}, v11, {i}"); a(f"v_mov_b32 v{224+2*i}, s{46+(i&1)}"); a(f"v_mov_b32 v{225+2*i}, s{46+(i&1)}")
    for i in range(8):
        for d in range(4):
            a(f"v_pk_fma_f32 v[{X+8*i+2*d}:{X+8*i+2*d+1}], v[{X+8*i+2*d}:{X+8*i+2*d+1}], s[{RS[i]}:{RS[i]+1}], v[{224+2*i}:{225+2*i}]")
    a("s_add_u32 s45, s42, 65536")
    for i in range(4):
        a(f"v_xor_b32 v{4+i}, {4*i}, v1"); a(f"v_lshlrev_b32 v{4+i}, 4, v{4+i}"); a(f"v_add_u32 v{4+i}, s45, v{4+i}")
    a("s_waitcnt vmcnt(0)")
    for i in range(8): a(f"ds_write_b128 v{4+(i&3)}, v[{176+4*i}:{176+4*i+3}] offset:{i*1024}")
    P = 128
    for i in range(8):
        for d in range(4): a(f"v_cvt_pk_bf16_f32 v{P+4*i+d}, v{X+8*i+2*d}, v{X+8*i+2*d+1}")
    a("s_mov_b32 s46, 0x05040100"); a("s_mov_b32 s47, 0x07060302")
    for e in range(8):
        for k in range(4):
            a(f"v_perm_b32 v{64+4*e+k}, v{P+4*(2*k+1)+(e>>1)}, v{P+4*(2*k)+(e>>1)}, s{46+(e&1)}")
    a("v_and_b32 v16, 7, v1"); a("v_xor_b32 v16, s36, v16"); a("v_lshlrev_b32 v16, 4, v16"); a("v_lshl_add_u32 v16, v1, 10, v16")
    for e in range(8): a(f"ds_write_b128 v16, v[{64+4*e}:{64+4*e+3}] offset:{e*128}")
    a("s_waitcnt vmcnt(0) lgkmcnt(0)")
    a("s_barrier")
    def pubx():
        a("v_mov_b32 v158, 0"); a("buffer_load_dword v9, v158, s[24:27], 0 offen sc1"); a("s_waitcnt vmcnt(0)")
        init_check(a, "X_INIT", 9)
        publish_ready(a, False)
    only_wave0(a, pubx)
    stamp(a, 3)
    a("v_lshrrev_b32 v16, 3, v1"); a("v_and_b32 v17, 7, v1")
    a("v_lshlrev_b32 v18, 12, v16"); a("v_lshl_add_u32 v18, v17, 4, v18")
    a("v_lshlrev_b32 v19, 7, v16"); a("s_lshl_b32 s45, s36, 13"); a("v_add_u32 v19, s45, v19")
    for z in range(8):
        a(f"v_xor_b32 v20, {z}, v17"); a(f"v_lshl_add_u32 v20, v20, 4, v19")
        a(f"ds_read_b128 v[{32+4*z}:{32+4*z+3}], v20 offset:{z*1024}")
    a("s_lshl_b32 s45, s36, 18"); a("s_lshl_b32 s46, s39, 7"); a("s_add_u32 s45, s45, s46"); a(f"s_add_u32 s45, s45, {G.WS_UT}")
    a("v_lshrrev_b32 v24, 5, v1"); a("v_bfe_u32 v25, v1, 4, 1"); a("v_bfe_u32 v26, v1, 2, 2"); a("v_bfe_u32 v27, v1, 1, 1"); a("v_and_b32 v28, 1, v1")
    a("s_and_b32 s43, s36, 3")
    a("v_xor_b32 v21, s43, v26"); a("v_lshlrev_b32 v21, 2, v21"); a("v_lshl_add_u32 v21, v25, 1, v21"); a("v_add_u32 v21, v21, v27")
    a("v_lshlrev_b32 v21, 4, v21"); a("v_lshl_add_u32 v21, v28, 3, v21")
    a("v_lshl_add_u32 v22, v24, 2, v26"); a("v_lshl_add_u32 v21, v22, 10, v21")
    a("s_and_b32 s43, s36, 4"); a("s_lshl_b32 s43, s43, 6"); a("s_add_u32 s43, s43, 65536"); a("v_add_u32 v21, s43, v21")
    for y in range(2):
        for sp in range(4):
            b = 64 + 4*(4*y+sp)
            for rd in range(2):
                a(f"ds_read_b64_tr_b16 v[{b+2*rd}:{b+2*rd+1}], v21 offset:{sp*16384 + rd*8192 + y*512}")
    a("s_waitcnt lgkmcnt(0)")
    for z in range(8):
        a(f"s_add_u32 s46, s45, {z*32768}")
        a(f"buffer_store_dwordx4 v[{32+4*z}:{32+4*z+3}], v18, s[20:23], s46 offen sc1")
    labn = a.newlabel("A_NOWD")
    a("s_cmp_ge_u32 s39, 28"); a(f"s_cbranch_scc1 {labn}")
    a.skip_begin()
    a("s_mul_i32 s44, s36, 112"); a("s_lshl_b32 s45, s39, 2"); a("s_add_u32 s44, s44, s45"); a("s_lshl_b32 s44, s44, 10")
    a(f"s_add_u32 s44, s44, {G.WS_WDF}")
    for y in range(2):
        if y: a(f"s_add_u32 s44, s44, {8*112*1024}")
        for sp in range(4):
            b = 64 + 4*(4*y+sp)
            a(f"buffer_store_dwordx4 v[{b}:{b+3}], v2, s[20:23], s44 offen offset:{sp*1024} sc1")
    a.skip_end()
    a.label(labn)
    stamp(a, 4)
    a("s_waitcnt vmcnt(0)")
    a("s_barrier")
    a("s_lshl_b32 s41, s39, 2"); a(f"s_add_u32 s41, s41, {F_A}")
    def af():
        a("v_mov_b32 v154, 1"); a("v_lshlrev_b32 v219, 7, v1")
        a("s_mov_b64 exec, 0xff")
        a("buffer_store_dword v154, v219, s[20:23], s41 offen sc1")
        a("s_mov_b64 exec, -1")
    only_wave0(a, af)
    stamp(a, 5)
    a("s_cmp_lt_u32 s36, 4"); a("s_cbranch_scc1 B_GEMM2")
    emit_ops(a, kgen_ops())
    a("v_mov_b32 v8, 0")
    a("s_branch B_CONV")

def phaseB_common(a):
    a("s_lshl_b32 s39, s37, 2"); a("s_lshr_b32 s3, s38, 3"); a("s_add_u32 s39, s39, s3")
    a("s_and_b32 s3, s38, 7")
    srd(a, 12, 96, 97, 2048*512*2)
    a("v_lshrrev_b32 v5, 3, v1"); a("v_lshlrev_b32 v5, 10, v5")
    a("v_and_b32 v6, 7, v1"); a("v_lshl_add_u32 v5, v6, 4, v5")
    a("s_lshl_b32 s34, s39, 16"); a("s_lshl_b32 s35, s36, 13"); a("s_add_u32 s34, s34, s35")
    a("s_lshl_b32 s35, s3, 7"); a("s_add_u32 s34, s34, s35")
    a("buffer_load_dwordx4 v[252:255], v5, s[8:11], s34 offen")

def phaseB(a):
    if OPT.get('stA'): OPT['stB_off'] = 1
    a.label("B_GEMM2")
    a.barrier_hazard()
    phaseB_common(a)
    WD = OPT.get("wd", 11); HD = OPT.get("hd", 8)
    WB = 24; HB = WB + 8*WD; AC = 176
    assert HB + 8*HD <= AC
    a("v_lshlrev_b32 v2, 4, v1")
    for q in range(7): a(f"v_add_u32 v{12+q}, {q*4096}, v2")
    a("s_mul_i32 s26, s39, 224"); a("s_mul_i32 s27, s36, 28"); a("s_add_u32 s26, s26, s27"); a("s_lshl_b32 s26, s26, 10")
    if G.WS_HF: a(f"s_add_u32 s26, s26, {G.WS_HF}")
    a("s_add_u32 s28, s26, 114688")
    a("s_mul_i32 s29, s3, 224"); a("s_add_u32 s29, s29, s27"); a("s_lshl_b32 s29, s29, 10"); a(f"s_add_u32 s29, s29, {G.WS_WDF}")
    a("s_add_u32 s30, s29, 114688")
    issued = []
    def ldW(s):
        b = WB + (s % WD)*8
        for j, sr in enumerate(["s29","s30"]):
            a(f"buffer_load_dwordx4 v[{b+4*j}:{b+4*j+3}], v{12+s//4}, s[20:23], {sr} offen offset:{(s%4)*1024} sc1"); issued.append(("W", s))
    def ldH(s):
        b = HB + (s % HD)*8
        for j, sr in enumerate(["s26","s28"]):
            a(f"buffer_load_dwordx4 v[{b+4*j}:{b+4*j+3}], v{12+s//4}, s[20:23], {sr} offen offset:{(s%4)*1024} sc1"); issued.append(("H", s))
    a(f"v_mov_b32 v20, {L_CNT+68}")
    lds_spin(a, "B_WWAIT", 20, 21, sleep=2)
    for s in range(WD): ldW(s)
    a("v_and_b32 v22, 31, v1"); a("v_lshlrev_b32 v19, 2, v22"); a("s_lshl_b32 s27, s37, 7"); a(f"s_add_u32 s27, s27, {F_H}"); a("v_add_u32 v19, s27, v19")
    a("v_cmp_gt_u32 vcc, 28, v22"); a("v_mov_b32 v20, 0"); a("v_mov_b32 v21, 1"); a("v_cndmask_b32 v20, v20, v21, vcc")
    a(f"v_mov_b32 v22, {L_CNT+72}")
    a("s_cmp_lg_u32 s36, 0"); a("s_cbranch_scc1 B_GWAIT")
    poll(a, "B_GPOLL", 20, 19, 20, 23, sleep=OPT.get("hsleep", 2))
    a("ds_write_b32 v22, v21")
    a("s_branch B_GGO")
    lds_spin(a, "B_GWAIT", 22, 23)
    a.label("B_GGO")
    stamp(a, 6)
    for s in range(HD): ldH(s)
    for s in range(28):
        last = max(i for i, o in enumerate(issued) if o[1] == s)
        a(f"s_waitcnt vmcnt({len(issued) - 1 - last})")
        bw = WB + (s % WD)*8; bh = HB + (s % HD)*8
        for nt2 in range(2):
            for rt in range(2):
                ac = AC + 16*(2*nt2+rt)
                c = "0" if s == 0 else f"v[{ac}:{ac+15}]"
                a(f"v_mfma_f32_32x32x16_bf16 v[{ac}:{ac+15}], v[{bw+4*nt2}:{bw+3+4*nt2}], v[{bh+4*rt}:{bh+3+4*rt}], {c}")
        if s + HD < 28: ldH(s + HD)
        if s + WD < 28: ldW(s + WD)
        if s == OPT.get("near", 14):
            def sig():
                a(f"v_mov_b32 v2, {L_CNT+64}"); a("v_mov_b32 v3, 1"); a("ds_write_b32 v2, v3")
            only_wave0(a, sig)
    stamp(a, 7)
    a("v_and_b32 v2, 31, v1"); a("v_and_b32 v3, 15, v1"); a("v_lshrrev_b32 v4, 5, v1"); a("v_xor_b32 v3, v3, v4")
    a("s_and_b32 s26, s36, 1"); a("s_lshl_b32 s26, s26, 14"); a("s_lshr_b32 s27, s36, 1"); a("s_lshl_b32 s27, s27, 16"); a("s_add_u32 s26, s26, s27"); a("s_add_u32 s26, s26, 32768")
    a("v_lshlrev_b32 v2, 8, v2"); a("v_add_u32 v2, s26, v2")
    for cq in range(8):
        a(f"v_xor_b32 v6, {2*cq}, v3"); a(f"v_lshl_add_u32 v{12+cq}, v6, 4, v2")
    for nt2 in range(2):
        for rt in range(2):
            ac = AC + 16*(2*nt2+rt)
            for q in range(4):
                a(f"ds_write_b128 v{12+4*nt2+q}, v[{ac+4*q}:{ac+4*q+3}] offset:{rt*32*256}")
    a("s_waitcnt lgkmcnt(0)")
    stamp(a, 8)
    a("s_branch K2_FINAL")

    a.label("B_CONV")
    a.barrier_hazard()
    a(f"s_setprio {OPT.get('cprio', 1)}")
    phaseB_common(a)
    a("s_sub_u32 s24, s36, 4")
    a("s_lshr_b32 s25, s24, 1")
    a("s_and_b32 s26, s24, 1")
    a("s_lshl_b32 s27, s2, 1"); a("s_add_u32 s27, s27, s25")
    a("s_mov_b32 s31, s93")
    UB = 200
    a("v_and_b32 v3, 15, v1"); a("v_lshrrev_b32 v4, 4, v1")
    a("v_lshlrev_b32 v7, 4, v1")
    a("s_lshl_b32 s17, s25, 16")
    a("s_add_u32 s18, s17, 16384")
    a("s_lshl_b32 s16, s26, 14"); a("s_add_u32 s16, s16, s17")
    stamp(a, 6)
    a("v_lshlrev_b32 v6, 2, v1"); a("v_add_u32 v6, s16, v6")
    for row in range(57): a(f"ds_write_b32 v6, v{PK+row} offset:{row*288}")
    for e in range(17): a(f"v_add_u32 v{EA+e}, s17, v{EA+e}")
    a(f"v_mov_b32 v45, {L_CNT+68}"); a("v_mov_b32 v46, 1")
    a("s_cmp_lg_u32 s36, 7"); a("s_cbranch_scc1 B_UWAIT")
    a("v_and_b32 v48, 31, v1"); a("v_lshlrev_b32 v48, 2, v48"); a("s_lshl_b32 s28, s37, 7"); a(f"s_add_u32 s28, s28, {F_A}"); a("v_add_u32 v48, s28, v48"); a("v_mov_b32 v49, 1")
    a("s_waitcnt vmcnt(0)")
    a("v_cmp_ne_u32 vcc, 1, v8"); a("s_nop 4"); a("s_cbranch_vccz B_UPOLL_OK")
    poll(a, "B_UPOLL", 20, 48, 49, 47, sleep=4)
    a("ds_write_b32 v45, v46")
    a("s_branch B_UGO")
    lds_spin(a, "B_UWAIT", 45, 47)
    a.label("B_UGO")
    a("s_lshl_b32 s28, s27, 12"); a("s_lshl_b32 s35, s26, 11"); a("s_add_u32 s28, s28, s35"); a(f"s_add_u32 s29, s28, {G.WS_UT}")
    a("buffer_load_dwordx4 v[144:147], v7, s[20:23], s29 offen sc1")
    a("buffer_load_dwordx4 v[148:151], v7, s[20:23], s29 offen offset:1024 sc1")
    a("v_mul_u32_u24 v44, 288, v3"); a("v_lshl_add_u32 v44, v4, 4, v44"); a("v_add_u32 v44, s16, v44")
    a("s_waitcnt lgkmcnt(0)")
    AF = 64; BF = 112; KA = 128
    for ks in range(4):
        a(f"ds_read_b128 v[{BF+4*ks}:{BF+4*ks+3}], v44 offset:{41*288 + ks*64}")
        for mt in range(3):
            b = AF + 4*(3*ks+mt)
            a(f"ds_read_b128 v[{b}:{b+3}], v44 offset:{mt*16*288 + ks*64}")
    a("s_waitcnt lgkmcnt(0)")
    for ks in range(4):
        for mt in range(3):
            b = AF + 4*(3*ks+mt)
            c = "0" if ks == 0 else f"v[{KA+4*mt}:{KA+4*mt+3}]"
            a(f"v_mfma_f32_16x16x32_bf16 v[{KA+4*mt}:{KA+4*mt+3}], v[{b}:{b+3}], v[{BF+4*ks}:{BF+4*ks+3}], {c}")
    def set_flag(off_sgpr_expr_fn):
        pass
    a(f"v_mov_b32 v45, {L_CNT}")
    a("s_lshl_b32 s28, s25, 2"); a("v_add_u32 v45, s28, v45")
    a("v_mov_b32 v46, 1")
    a("v_mul_u32_u24 v47, 48, v1"); a("v_add_u32 v47, s18, v47")
    labE = "K2_EVEN"; labX = "K2_EXPAND"
    a("s_cmp_eq_u32 s26, 0")
    a(f"s_cbranch_scc1 {labE}")
    for mt in range(3): a(f"ds_write_b128 v47, v[{KA+4*mt}:{KA+4*mt+3}] offset:{16*mt}")
    a("s_waitcnt lgkmcnt(0)")
    a("ds_write_b32 v45, v46")
    def spin(vaddr, off, lab):
        a.label(lab)
        a(f"ds_read_b32 v48, v{vaddr} offset:{off}")
        a("s_waitcnt lgkmcnt(0)")
        a("v_readfirstlane_b32 s28, v48")
        a("s_cmp_eq_u32 s28, 0")
        a(f"s_cbranch_scc1 {lab}")
    spin(45, 8, "K2_SP2")
    a(f"s_branch {labX}")
    a.label(labE)
    a.barrier_hazard()
    spin(45, 0, "K2_SP1")
    for mt in range(3): a(f"ds_read_b128 v[{64+4*mt}:{64+4*mt+3}], v47 offset:{16*mt}")
    a("v_lshrrev_b32 v48, 1, v4"); a("v_lshlrev_b32 v48, 7, v48")
    a("v_and_b32 v49, 1, v4"); a("v_lshl_add_u32 v48, v49, 2, v48"); a("v_lshl_add_u32 v48, v3, 3, v48")
    a("v_lshl_add_u32 v48, v48, 1, s17")
    a("v_lshlrev_b32 v49, 6, v4"); a("v_add_u32 v49, 256, v49")
    a("v_cmp_gt_u32 vcc, 2, v4")
    a("v_lshlrev_b32 v50, 2, v3"); a("v_lshlrev_b32 v51, 1, v3")
    a("v_cndmask_b32 v50, v51, v50, vcc")
    a("v_add_u32 v49, v49, v50"); a("v_lshl_add_u32 v49, v49, 1, s17")
    a("v_mov_b32 v50, 64"); a("v_mov_b32 v51, 4"); a("v_cndmask_b32 v50, v50, v51, vcc"); a("v_add_u32 v50, v49, v50")
    a("v_lshlrev_b32 v51, 6, v4"); a("v_add_u32 v51, v51, v3"); a("v_add_u32 v51, 512, v51")
    a("v_mov_b32 v52, 704"); a("v_cndmask_b32 v51, v52, v51, vcc")
    a("v_cmp_eq_u32 vcc, 32, v1"); a("v_mov_b32 v52, 640"); a("v_cndmask_b32 v51, v51, v52, vcc")
    a("v_lshl_add_u32 v51, v51, 1, s17")
    a("s_waitcnt lgkmcnt(0)")
    for i in range(12): a(f"v_add_f32 v{KA+i}, v{KA+i}, v{64+i}")
    a("v_cmp_eq_u32 vcc, 0, v1"); a("v_mov_b32 v52, 0"); a("v_mov_b32 v53, s31"); a("v_cndmask_b32 v52, v52, v53, vcc")
    a(f"v_add_f32 v{KA}, v{KA}, v52")
    for i in range(6): a(f"v_cvt_pk_bf16_f32 v{76+i}, v{KA+2*i}, v{KA+2*i+1}")
    a("ds_write_b64 v48, v[76:77]")
    a("ds_write_b32 v49, v78"); a("ds_write_b32 v50, v79")
    a("ds_write_b16 v51, v80"); a("ds_write_b16_d16_hi v51, v80 offset:32")
    a("ds_write_b16 v51, v81 offset:64"); a("ds_write_b16_d16_hi v51, v81 offset:96")
    a("v_mov_b32 v52, 0"); a("v_mov_b32 v53, s17"); a("ds_write_b16 v53, v52 offset:1282")
    a("s_waitcnt lgkmcnt(0)")
    a("ds_write_b32 v45, v46 offset:8")
    a.label(labX)
    a.barrier_hazard()
    DD = 88
    for e in range(17):
        a(f"ds_read_u16 v{DD+e}, v{EA+e}")
    a("s_lshl_b32 s28, s26, 11"); a("s_add_u32 s28, s28, s18")
    a("v_lshl_add_u32 v48, v1, 5, s28")
    a("v_mov_b32 v52, 0")
    a("v_and_b32 v49, 15, v1"); a("v_lshl_add_u32 v49, v49, 2, s18")
    a("s_waitcnt lgkmcnt(0)")
    for i in range(8): a(f"v_lshl_or_b32 v{64+i}, v{DD+2*i+1}, 16, v{DD+2*i}")
    for i in range(8): a(f"v_lshl_or_b32 v{76+i}, v{DD+2*i+2}, 16, v{DD+2*i+1}")
    a(f"ds_write_b128 v48, v[64:67] offset:{R0_OFF}"); a(f"ds_write_b128 v48, v[68:71] offset:{R0_OFF+16}")
    a(f"ds_write_b128 v48, v[76:79] offset:{R1_OFF}"); a(f"ds_write_b128 v48, v[80:83] offset:{R1_OFF+16}")
    a(f"ds_write_b32 v49, v52 offset:{R0_OFF+4096}"); a(f"ds_write_b32 v49, v52 offset:{R1_OFF+4096}")
    a("s_lshl_b32 s28, s25, 12"); a("s_lshl_b32 s35, s26, 11"); a("s_add_u32 s28, s28, s35"); a(f"s_add_u32 s28, s28, {L_U}"); a("v_add_u32 v49, s28, v7")
    a("s_waitcnt vmcnt(0)")
    a("ds_write_b128 v49, v[144:147]"); a("ds_write_b128 v49, v[148:151] offset:1024")
    a("s_waitcnt lgkmcnt(0)")
    a(f"v_mov_b32 v48, {L_CNT+16}")
    a("s_lshl_b32 s28, s24, 2"); a("v_add_u32 v49, s28, v48")
    a("s_xor_b32 s28, s28, 4"); a("v_add_u32 v50, s28, v48")
    a("ds_write_b32 v49, v46")
    spin(50, 0, "K2_SP3")
    stamp(a, 7)
    if OPT.get("dumpK"):
        a("s_lshl_b32 s28, s26, 11"); a("s_add_u32 s28, s28, s18")
        a("v_lshl_add_u32 v48, v1, 5, s28")
        a(f"ds_read_b128 v[64:67], v48 offset:{R0_OFF}"); a(f"ds_read_b128 v[68:71], v48 offset:{R0_OFF+16}")
        a(f"ds_read_b128 v[72:75], v48 offset:{R1_OFF}"); a(f"ds_read_b128 v[76:79], v48 offset:{R1_OFF+16}")
        a("s_waitcnt lgkmcnt(0)")
        a("v_lshlrev_b32 v48, 5, v1")
        a("s_lshl_b32 s28, s27, 13"); a("s_lshl_b32 s29, s26, 11"); a("s_add_u32 s28, s28, s29"); a(f"s_add_u32 s28, s28, {0x1000000}")
        a("s_mov_b32 s22, 0x2000000")
        a("buffer_store_dwordx4 v[64:67], v48, s[20:23], s28 offen"); a("buffer_store_dwordx4 v[68:71], v48, s[20:23], s28 offen offset:16")
        a("s_add_u32 s28, s28, 4096")
        a("buffer_store_dwordx4 v[72:75], v48, s[20:23], s28 offen"); a("buffer_store_dwordx4 v[76:79], v48, s[20:23], s28 offen offset:16")
        a("s_waitcnt vmcnt(0)")
    a("v_lshlrev_b32 v48, 3, v4"); a("v_sub_u32 v48, v48, v3"); a("v_add_u32 v48, 2047, v48"); a("v_and_b32 v48, -2, v48"); a("v_lshlrev_b32 v48, 1, v48")
    a("v_and_b32 v49, 1, v3"); a("v_xor_b32 v49, 1, v49"); a("v_mul_u32_u24 v49, 4160, v49")
    a("v_add_u32 v48, v48, v49")
    a(f"s_add_u32 s28, s18, {R0_OFF}"); a("s_lshl_b32 s29, s26, 5"); a("s_sub_u32 s28, s28, s29")
    a("v_add_u32 v48, s28, v48")
    BZ = 52
    for z in range(4): a(f"v_subrev_u32 v{BZ+z}, {32*(32*z+30)}, v48")
    FRG = 64
    ACC = 112
    for i in range(16): a(f"v_mov_b32 v{ACC+i}, 0")
    def fr(q): return FRG + 4*(q % 12)
    def fread(q):
        z = q >> 4; o = 8*(32*z + 30 - 2*q); b = fr(q)
        a(f"ds_read2_b32 v[{b}:{b+1}], v{BZ+z} offset0:{o} offset1:{o+1}")
        a(f"ds_read2_b32 v[{b+2}:{b+3}], v{BZ+z} offset0:{o+2} offset1:{o+3}")
    a("v_lshlrev_b32 v49, 8, v3"); a("v_lshl_add_u32 v49, v4, 4, v49"); a("s_lshl_b32 s28, s25, 12"); a(f"s_add_u32 s28, s28, {L_U}"); a("v_add_u32 v49, s28, v49")
    for h in range(4): a(f"ds_read_b128 v[{UB+4*h}:{UB+4*h+3}], v49 offset:{64*h}")
    for q in range(4): fread(q)
    for dl in range(16):
        a("s_waitcnt lgkmcnt(0)")
        if dl < 15:
            for q in range(4*(dl+1), 4*(dl+1)+4): fread(q)
        for h in (3, 2, 1, 0):
            for j in range(4):
                m = j - h
                q = 4*dl + m
                if q < 0: continue
                b = fr(q)
                a(f"v_mfma_f32_16x16x32_bf16 v[{ACC+4*j}:{ACC+4*j+3}], v[{b}:{b+3}], v[{UB+4*h}:{UB+4*h+3}], v[{ACC+4*j}:{ACC+4*j+3}]")
            if dl < 15:
                for i in range(4):
                    a(f"v_mov_b32_dpp v{UB+4*h+i}, v{UB+4*h+i} row_shr:1 row_mask:0xf bank_mask:0xf bound_ctrl:0")
    stamp(a, 8)
    a("v_lshlrev_b32 v48, 8, v3"); a("v_lshl_add_u32 v48, v4, 3, v48")
    a("s_lshl_b32 s28, s26, 5"); a("s_add_u32 s28, s28, s17"); a(f"s_add_u32 s28, s28, {SROW_OFF}"); a("v_add_u32 v48, s28, v48")
    for j in range(4):
        y = ACC + 4*j
        a(f"v_cvt_pk_bf16_f32 v{64+2*j}, v{y}, v{y+1}"); a(f"v_cvt_pk_bf16_f32 v{65+2*j}, v{y+2}, v{y+3}")
    for j in range(4): a(f"ds_write_b64 v48, v[{64+2*j}:{65+2*j}] offset:{64*j}")
    a("s_waitcnt lgkmcnt(0)")
    a(f"v_mov_b32 v48, {L_CNT+40}")
    a("s_lshl_b32 s28, s24, 2"); a("v_add_u32 v49, s28, v48")
    a("s_xor_b32 s28, s28, 4"); a("v_add_u32 v50, s28, v48")
    a("ds_write_b32 v49, v46")
    spin(50, 0, "K2_SP5")
    a("s_lshl_b32 s28, s26, 11"); a("s_add_u32 s29, s28, s17"); a(f"s_add_u32 s29, s29, {SROW_OFF}")
    a("v_add_u32 v48, s29, v7")
    a("ds_read_b128 v[64:67], v48"); a("ds_read_b128 v[68:71], v48 offset:1024")
    a("s_lshl_b32 s29, s27, 12"); a("s_add_u32 s29, s29, s28"); a(f"s_add_u32 s29, s29, {G.WS_ST}")
    a("s_waitcnt lgkmcnt(0)")
    for d in range(8): a(f"v_min_u32 v{64+d}, -2, v{64+d}")
    a("buffer_store_dwordx4 v[64:67], v7, s[20:23], s29 offen sc1")
    a("buffer_store_dwordx4 v[68:71], v7, s[20:23], s29 offen offset:1024 sc1")
    stamp(a, 9)
    a(f"v_mov_b32 v50, {L_CNT+64}")
    a("v_and_b32 v48, 31, v1"); a("v_lshlrev_b32 v48, 2, v48"); a("s_lshl_b32 s28, s3, 7"); a(f"s_add_u32 s28, s28, {F_P}"); a("v_add_u32 v48, s28, v48")
    a.label("B_PPOLL")
    a("buffer_load_dword v49, v48, s[20:23], 0 offen sc1"); a("s_waitcnt vmcnt(0)")
    a("v_cmp_eq_u32 vcc, 0, v49"); a("s_nop 4"); a("s_cbranch_vccz B_PPOLL_OK"); a("s_sleep 8"); a("s_branch B_PPOLL")
    a.label("B_PPOLL_OK")
    lds_spin(a, "B_SWAIT", 50, 49, sleep=4)
    stamp(a, 10)
    a("v_lshrrev_b32 v48, 3, v1"); a("v_and_b32 v49, 7, v1")
    a("v_lshlrev_b32 v50, 12, v48"); a("v_lshl_add_u32 v50, v49, 4, v50")
    a("s_lshl_b32 s28, s3, 18"); a("s_lshl_b32 s29, s24, 16"); a("s_add_u32 s28, s28, s29")
    a("s_lshl_b32 s29, s39, 7"); a("s_add_u32 s28, s28, s29"); a(f"s_add_u32 s28, s28, {G.WS_ST}")
    a("s_add_u32 s29, s28, 32768")
    a(f"v_mul_u32_u24 v51, {STL_PITCH}, v48"); a("v_lshl_add_u32 v51, v49, 4, v51")
    a(f"s_mul_i32 s30, s24, {16*STL_PITCH}"); a(f"s_add_u32 s30, s30, {L_STL}"); a("v_add_u32 v51, s30, v51")
    a.label("B_SLOAD")
    a("buffer_load_dwordx4 v[64:67], v50, s[20:23], s28 offen sc1")
    a("buffer_load_dwordx4 v[68:71], v50, s[20:23], s29 offen sc1")
    a("s_waitcnt vmcnt(0)")
    a("v_max3_u32 v72, v64, v65, v66"); a("v_max3_u32 v73, v67, v68, v69"); a("v_max3_u32 v72, v72, v70, v71"); a("v_max_u32 v72, v72, v73")
    a("v_cmp_eq_u32 vcc, -1, v72")
    a("s_nop 4")
    a("s_cbranch_vccz B_SLOADED")
    a("s_sleep 8")
    a("s_branch B_SLOAD")
    a.label("B_SLOADED")
    a("ds_write_b128 v51, v[64:67]"); a(f"ds_write_b128 v51, v[68:71] offset:{8*STL_PITCH}")
    a("s_waitcnt lgkmcnt(0)")
    stamp(a, 11)
    a.label("K2_FINAL")
    a.barrier_hazard()
    a("s_barrier")
    a("v_lshrrev_b32 v2, 3, v1"); a("s_lshl_b32 s28, s36, 3"); a("v_add_u32 v2, s28, v2")
    a("v_and_b32 v3, 7, v1")
    a("v_and_b32 v4, 15, v2"); a("v_lshlrev_b32 v6, 1, v3"); a("v_xor_b32 v4, v4, v6"); a("v_lshlrev_b32 v4, 4, v4"); a("v_lshl_add_u32 v4, v2, 8, v4")
    a("v_xor_b32 v7, 16, v4")
    a("v_add_u32 v12, 65536, v4"); a("v_add_u32 v13, 65536, v7")
    for w in range(4):
        off = 32768 + (w & 1)*16384
        a(f"ds_read_b128 v[{16+8*w}:{19+8*w}], v{4 if w < 2 else 12} offset:{off}")
        a(f"ds_read_b128 v[{20+8*w}:{23+8*w}], v{7 if w < 2 else 13} offset:{off}")
    a(f"v_mul_u32_u24 v6, {8*STL_PITCH}, v3"); a("v_lshl_add_u32 v6, v2, 1, v6"); a(f"v_add_u32 v6, {L_STL}, v6")
    for e in range(8):
        a(f"ds_read_u16 v{48+e}, v6 offset:{e*STL_PITCH}")
    a("s_waitcnt lgkmcnt(0)")
    for e in range(8): a(f"v_add_f32 v{16+e}, v{16+e}, v{24+e}")
    for e in range(8): a(f"v_add_f32 v{32+e}, v{32+e}, v{40+e}")
    for e in range(8): a(f"v_add_f32 v{16+e}, v{16+e}, v{32+e}")
    for d in range(4): a(f"v_cvt_pk_bf16_f32 v{24+d}, v{16+2*d}, v{17+2*d}")
    for d in range(4):
        a(f"v_lshlrev_b32 v{16+2*d}, 16, v{24+d}"); a(f"v_and_b32 v{17+2*d}, 0xffff0000, v{24+d}")
    for e in range(8): a(f"v_mul_f32 v{24+e}, {f2u(-1.4426950408889634):#x}, v{16+e}")
    for e in range(8): a(f"v_exp_f32 v{24+e}, v{24+e}")
    for e in range(8): a(f"v_add_f32 v{24+e}, 1.0, v{24+e}")
    for e in range(8): a(f"v_rcp_f32 v{24+e}, v{24+e}")
    for e in range(8): a(f"v_mul_f32 v{16+e}, v{16+e}, v{24+e}")
    for d in range(4): a(f"v_cvt_pk_bf16_f32 v{24+d}, v{16+2*d}, v{17+2*d}")
    for d in range(4):
        a(f"v_lshlrev_b32 v{16+2*d}, 16, v{24+d}"); a(f"v_and_b32 v{17+2*d}, 0xffff0000, v{24+d}")
        a(f"v_lshlrev_b32 v{32+2*d}, 16, v{48+2*d}"); a(f"v_lshlrev_b32 v{33+2*d}, 16, v{49+2*d}")
    for e in range(8): a(f"v_mul_f32 v{16+e}, v{16+e}, v{32+e}")
    for d in range(4): a(f"v_cvt_pk_bf16_f32 v{24+d}, v{16+2*d}, v{17+2*d}")
    a("s_waitcnt vmcnt(0)")
    for d in range(4):
        a(f"v_lshlrev_b32 v{16+2*d}, 16, v{24+d}"); a(f"v_and_b32 v{17+2*d}, 0xffff0000, v{24+d}")
        a(f"v_lshlrev_b32 v{32+2*d}, 16, v{252+d}"); a(f"v_and_b32 v{33+2*d}, 0xffff0000, v{252+d}")
    for e in range(8): a(f"v_add_f32 v{16+e}, v{16+e}, v{32+e}")
    for d in range(4): a(f"v_cvt_pk_bf16_f32 v{24+d}, v{16+2*d}, v{17+2*d}")
    a("buffer_store_dwordx4 v[24:27], v5, s[12:15], s34 offen")
    stamp(a, 12)
    stamp_store(a, 13, 0)


def gen_mk():
    a = Asm()
    a("s_cmp_ge_u32 s2, 256")
    a("s_cbranch_scc1 MK_END")
    stamp(a, 0)
    a("s_load_dwordx2 s[4:5], s[0:1], 0")
    a("s_load_dwordx4 s[28:31], s[0:1], 80")
    a("s_load_dwordx2 s[6:7], s[0:1], 96")
    a("s_load_dwordx4 s[32:35], s[0:1], 112")
    a("s_load_dwordx16 s[40:55], s[0:1], 0")
    a("s_load_dwordx2 s[56:57], s[0:1], 64")
    a("s_load_dwordx2 s[96:97], s[0:1], 104")
    a("v_lshrrev_b32 v1, 6, v0")
    a("v_readfirstlane_b32 s36, v1")
    a("v_and_b32 v1, 63, v0")
    a("s_and_b32 s37, s2, 7")
    a("s_lshr_b32 s38, s2, 3")
    a("s_getreg_b32 s90, hwreg(HW_REG_XCC_ID)"); a("s_and_b32 s90, s90, 15"); a("s_add_u32 s90, s90, 1")
    a(f"v_and_b32 v2, 31, v1"); a("v_lshlrev_b32 v2, 2, v2"); a(f"v_add_u32 v2, {L_CNT}, v2"); a("v_mov_b32 v3, 0"); a("ds_write_b32 v2, v3")
    a("s_waitcnt lgkmcnt(0)")
    a("s_barrier")
    srd(a, 8, 4, 5, 2048*512*2)
    labp = a.newlabel("MK_NP")
    a("s_cmp_lt_u32 s36, 4"); a(f"s_cbranch_scc1 {labp}")
    a.skip_begin()
    a("s_bfe_u32 s58, s36, 0x10001"); a("s_lshl_b32 s59, s2, 1"); a("s_add_u32 s58, s58, s59"); a("s_lshl_b32 s58, s58, 8")
    a("s_and_b32 s59, s36, 1"); a("s_lshl_b32 s59, s59, 7"); a("s_add_u32 s58, s58, s59")
    a("v_lshl_add_u32 v2, v1, 1, s58")
    for i, base in enumerate((42, 44, 46, 48, 50, 52)):
        a(f"global_load_ushort v{PRM+i}, v2, s[{base}:{base+1}]")
    a("s_lshl_b32 s58, s2, 2")
    a("s_load_dword s100, s[54:55], s58")
    a("s_load_dword s101, s[56:57], s58")
    a.skip_end()
    a.label(labp)
    a("s_lshl_b32 s53, s37, 5"); a("s_add_u32 s53, s53, s38")
    srd(a, 12, 28, 29, 512*1792*2)
    srd(a, 16, 30, 31, 512*1792*2)
    srd(a, 20, 34, 35, G.WS_END)
    a("s_cmp_ge_u32 s38, 28")
    a("s_cbranch_scc1 MK_AUX")
    phaseA_gemm1(a)
    a.label("MK_AUX")
    a.barrier_hazard()
    phaseA_aux(a)
    phaseB(a)
    a.label("MK_END")
    a("s_endpgm")
    return a, LDS_TOTAL
```

```python
from asmlib import Asm
import gen as G
from gen import srd, bf16r, f2u, stamp, stamp_store, OPT
import gen2
from gen2 import cmul, STL_PITCH, R0_OFF, R1_OFF, SROW_OFF
L_U = 131072
L_STL = 139264
L_CNT = 150080

XSLOT = 32768
WBASE = 3*XSLOT
WSLOT = 16384
L_PCS = WBASE + 3*WSLOT
L_STAT = L_PCS + 1024
L_CSF = L_PCS + 2048
L_MODE = L_CSF + 512
LDS_TOTAL = L_CNT + 128
assert L_MODE + 64 <= L_CNT
WS_PCS = G.WS_CS
F_H = G.WS_FLAG
F_A = G.WS_FLAG + 1024
F_R = G.WS_FLAG + 2048
F_P = G.WS_FLAG + 3072
F_C = G.WS_FLAG + 4096
FLAG_BYTES = 8192

def allreduce_ops(regs, t):
    L = []
    for mod in ("quad_perm:[1,0,3,2]", "quad_perm:[2,3,0,1]", "row_half_mirror", "row_mirror"):
        for r in regs: L.append(f"v_add_f32_dpp v{r}, v{r}, v{r} {mod} row_mask:0xf bank_mask:0xf")
    for sw in ("v_permlane16_swap_b32", "v_permlane32_swap_b32"):
        for k, r in enumerate(regs): L.append(f"v_mov_b32 v{t+k}, v{r}")
        for k, r in enumerate(regs): L.append(f"{sw} v{r}, v{t+k}")
        for k, r in enumerate(regs): L.append(f"v_add_f32 v{r}, v{r}, v{t+k}")
    return L

def row_stats_ops(raw, t):
    L = []
    for d in range(4):
        L += [f"v_lshlrev_b32 v{t+2*d}, 16, v{raw+d}", f"v_and_b32 v{t+2*d+1}, 0xffff0000, v{raw+d}"]
    L += [f"v_pk_add_f32 v[{t+8}:{t+9}], v[{t}:{t+1}], v[{t+2}:{t+3}]",
          f"v_pk_add_f32 v[{t+10}:{t+11}], v[{t+4}:{t+5}], v[{t+6}:{t+7}]",
          f"v_pk_add_f32 v[{t+8}:{t+9}], v[{t+8}:{t+9}], v[{t+10}:{t+11}]",
          f"v_add_f32 v{t+8}, v{t+8}, v{t+9}"]
    L += allreduce_ops([t+8], t+9)
    L.append(f"v_mul_f32 v{t+8}, {f2u(1/512):#x}, v{t+8}")
    for k in range(8): L.append(f"v_sub_f32 v{t+k}, v{t+k}, v{t+8}")
    L += [f"v_mul_f32 v{t+9}, v{t}, v{t}", f"v_mul_f32 v{t+10}, v{t+1}, v{t+1}"]
    for k in range(2, 8): L.append(f"v_fmac_f32 v{t+9+(k&1)}, v{t+k}, v{t+k}")
    L.append(f"v_add_f32 v{t+9}, v{t+9}, v{t+10}")
    L += allreduce_ops([t+9], t+10)
    L.append(f"v_mul_f32 v{t+9}, {f2u(1/512):#x}, v{t+9}")
    def r16(x): return [f"v_cvt_pk_bf16_f32 v{x}, v{x}, v{x}", f"v_lshlrev_b32 v{x}, 16, v{x}"]
    L += r16(t+8) + r16(t+9)
    L.append(f"v_add_f32 v{t+9}, {f2u(1e-5):#x}, v{t+9}")
    L += r16(t+9)
    L.append(f"v_sqrt_f32 v{t+9}, v{t+9}")
    L += r16(t+9)
    L += [f"v_rcp_f32 v{t+9}, v{t+9}", f"v_sub_f32 v{t+8}, 0, v{t+8}", f"v_mov_b32 v{t+10}, 0"]
    groups = [[x] for x in L]
    groups.append(["s_mov_b64 exec, 1", f"buffer_store_dwordx2 v[{t+8}:{t+9}], v{t+10}, s[20:23], s52 offen sc1", "s_mov_b64 exec, -1"])
    return groups

def set_flag_byte(a, val):
    a(f"v_mov_b32 v154, {val}"); a("v_mov_b32 v219, 0")
    a("s_mov_b64 exec, 1")
    a("buffer_store_byte v154, v219, s[24:27], s53 offen sc1")
    a("s_mov_b64 exec, -1")

def set_flag_dword(a, soff):
    a("v_mov_b32 v154, 1"); a("v_mov_b32 v219, 0")
    a("s_mov_b64 exec, 1")
    a(f"buffer_store_dword v154, v219, s[20:23], {soff} offen sc1")
    a("s_mov_b64 exec, -1")

def poll(a, lab, srdn, vaddr, vmask, vt, sleep=2):
    a.label(lab)
    a(f"buffer_load_dword v{vt}, v{vaddr}, s[{srdn}:{srdn+3}], 0 offen sc1")
    a("s_waitcnt vmcnt(0)")
    a(f"v_and_b32 v{vt}, v{vt}, v{vmask}")
    a(f"v_cmp_ne_u32 vcc, v{vt}, v{vmask}")
    a("s_nop 4")
    a(f"s_cbranch_vccz {lab}_OK")
    a(f"s_sleep {sleep}")
    a(f"s_branch {lab}")
    a.label(lab + "_OK")

def lds_spin(a, lab, vaddr, vt, sleep=1):
    a.label(lab)
    a(f"ds_read_b32 v{vt}, v{vaddr}")
    a("s_waitcnt lgkmcnt(0)")
    a(f"v_readfirstlane_b32 s92, v{vt}")
    a("s_cmp_eq_u32 s92, 0")
    a("s_cbranch_scc0 " + lab + "_OK")
    a(f"s_sleep {sleep}")
    a(f"s_branch {lab}")
    a.label(lab + "_OK")

def only_wave0(a, fn):
    lab = a.newlabel("W0")
    a("s_cmp_lg_u32 s36, 0"); a(f"s_cbranch_scc1 {lab}")
    a.skip_begin(); fn(); a._skip = a._skip; a.skip_end()
    a.label(lab)


def publish_ready(a, gemm, ta=219, tb=154):
    a("s_lshl_b32 s41, s37, 7"); a("s_lshl_b32 s46, s38, 2"); a("s_add_u32 s41, s41, s46"); a(f"s_add_u32 s41, s41, {F_R}")
    a(f"v_mov_b32 v{ta}, s41")
    if gemm:
        a("s_lshl_b32 s41, s40, 7"); a("s_lshl_b32 s46, s39, 2"); a("s_add_u32 s41, s41, s46"); a(f"s_add_u32 s41, s41, {F_C}")
        a(f"v_mov_b32 v{tb}, s41"); a(f"v_cmp_eq_u32 vcc, 1, v1"); a(f"v_cndmask_b32 v{ta}, v{ta}, v{tb}, vcc")
    a("s_lshr_b32 s41, s2, 5"); a("s_lshl_b32 s41, s41, 7"); a("s_and_b32 s46, s2, 31"); a("s_lshl_b32 s46, s46, 2"); a("s_add_u32 s41, s41, s46"); a(f"s_add_u32 s41, s41, {F_P}")
    a(f"v_mov_b32 v{tb}, s41"); a(f"v_cmp_eq_u32 vcc, 2, v1"); a(f"v_cndmask_b32 v{ta}, v{ta}, v{tb}, vcc")
    a(f"v_mov_b32 v{tb}, s90")
    a("s_mov_b64 exec, 7")
    a(f"buffer_store_dword v{tb}, v{ta}, s[20:23], 0 offen sc1")
    a("s_mov_b64 exec, -1")

def init_check(a, lab, vval, tc=158):
    a.label(lab)
    a(f"v_readfirstlane_b32 s41, v{vval}")
    a("s_cmp_lg_u32 s41, 0"); a(f"s_cbranch_scc1 {lab}_OK")
    a("s_sleep 8")
    a(f"v_mov_b32 v{tc}, 0")
    a(f"buffer_load_dword v{vval}, v{tc}, s[24:27], 0 offen sc1")
    a("s_waitcnt vmcnt(0)")
    a(f"s_branch {lab}")
    a.label(lab + "_OK")

def flags_poll_setup(a, vaddr):
    a(f"v_and_b32 v{vaddr}, 31, v1"); a(f"v_lshlrev_b32 v{vaddr}, 2, v{vaddr}")
    a("s_lshl_b32 s41, s39, 7"); a(f"s_add_u32 s41, s41, {F_R}"); a("s_lshl_b32 s46, s40, 7"); a(f"s_add_u32 s46, s46, {F_C}")
    a("v_mov_b32 v158, s41"); a("v_mov_b32 v159, s46")
    a("v_cmp_gt_u32 vcc, 32, v1"); a("v_cndmask_b32 v158, v159, v158, vcc")
    a(f"v_add_u32 v{vaddr}, v{vaddr}, v158")
    a("v_cmp_lt_u32 vcc, 39, v1"); a("v_mov_b32 v158, s41"); a(f"v_cndmask_b32 v{vaddr}, v{vaddr}, v158, vcc")

def flags_check(a, lab, vaddr, vval):
    a.label(lab)
    a(f"v_cmp_eq_u32 vcc, 0, v{vval}")
    a("s_nop 4")
    a(f"s_cbranch_vccz {lab}_OK")
    a("s_sleep 8")
    a(f"buffer_load_dword v{vval}, v{vaddr}, s[20:23], 0 offen sc1")
    a("s_waitcnt vmcnt(0)")
    a(f"s_branch {lab}")
    a.label(lab + "_OK")
    a(f"v_cmp_eq_u32 vcc, s90, v{vval}")
    a("s_nop 4")
    a("s_cmp_eq_u32 vcc_lo, -1"); a("s_cselect_b32 s41, 1, 2")
    if OPT.get("force_global") or not OPT.get("local"): a("s_mov_b32 s41, 2")
    a("v_mov_b32 v157, s41"); a(f"v_mov_b32 v158, {L_MODE}")
    a("ds_write_b32 v158, v157")


PK = 160
EA = 228
PRM = 246
def kgen_ops():
    L = []
    A = L.append
    A("s_bfe_u32 s92, s36, 0x10001"); A("s_lshl_b32 s92, s92, 4")
    A("s_lshr_b32 s94, s100, s92"); A("s_lshl_b32 s94, s94, 16")
    A("s_lshr_b32 s93, s101, s92"); A("s_lshl_b32 s93, s93, 16")
    for i in range(6): A(f"v_lshlrev_b32 v{12+i}, 16, v{PRM+i}")
    A(f"v_mov_b32 v18, {G.LOG2E:#x}"); A("v_mul_f32 v18, s94, v18"); A("v_exp_f32 v18, v18")
    A("v_cvt_pk_bf16_f32 v18, v18, v18"); A("v_lshlrev_b32 v18, 16, v18")
    A("v_mul_f32 v12, v18, v12"); A("v_mul_f32 v13, v18, v13"); A("v_mul_f32 v14, v18, v14"); A("v_mul_f32 v15, v18, v15")
    A(f"v_mul_f32 v12, {G.LOG2E:#x}, v12"); A(f"v_mul_f32 v13, {f2u(0.15915494309189535):#x}, v13")
    F = lambda c: 20 + 2*(c-1)
    W1 = 34; V1 = 36; W2 = 38; V2 = 40
    cx = [(F(1), 1, 44), (W1, 8, 46), (V1, 128, 48)]
    for d, m, t in cx:
        if m != 1: A(f"v_mul_f32 v{t}, {f2u(float(m)):#x}, v12"); A(f"v_mul_f32 v{t+1}, {f2u(float(m)):#x}, v13")
        else: A(f"v_mov_b32 v{t}, v12"); A(f"v_mov_b32 v{t+1}, v13")
    for d, m, t in cx: A(f"v_fract_f32 v{t+1}, v{t+1}")
    for d, m, t in cx: A(f"v_exp_f32 v{t}, v{t}")
    for d, m, t in cx: A(f"v_cos_f32 v{d}, v{t+1}")
    for d, m, t in cx: A(f"v_sin_f32 v{d+1}, v{t+1}")
    for d, m, t in cx: A(f"v_mul_f32 v{d}, v{d}, v{t}"); A(f"v_mul_f32 v{d+1}, v{d+1}, v{t}")
    def cm(tasks):
        if OPT.get("pkc"):
            pairs = [cmul(None, d, x, y, 50 + 2*(k % 6)) for k, (d, x, y) in enumerate(tasks)]
            for i1, _ in pairs: A(i1)
            for _, i2 in pairs: A(i2)
        else:
            T = [(50 + 2*(k % 6)) for k in range(len(tasks))]
            for t, (d, x, y) in zip(T, tasks): A(f"v_mul_f32 v{t}, v{x}, v{y}")
            for t, (d, x, y) in zip(T, tasks): A(f"v_mul_f32 v{t+1}, v{x}, v{y+1}")
            for t, (d, x, y) in zip(T, tasks): A(f"v_fma_f32 v{d}, -v{x+1}, v{y+1}, v{t}")
            for t, (d, x, y) in zip(T, tasks): A(f"v_fma_f32 v{d+1}, v{x+1}, v{y}, v{t+1}")
    Y = lambda b: 64 + 2*b
    Gq = lambda q: 96 + 2*q
    def put(row, reg, neg): A(f"v_cvt_pk_bf16_f32 v{PK+row}, v{reg}, {'-' if neg else ''}v{reg+1}")
    A(f"v_mov_b32 v{Y(0)}, 1.0"); A(f"v_mov_b32 v{Y(0)+1}, 0"); A(f"v_mov_b32 v{Y(1)}, v{W1}"); A(f"v_mov_b32 v{Y(1)+1}, v{W1+1}")
    cm([(Gq(0), 16, 14), (F(2), F(1), F(1)), (W2, W1, W1), (V2, V1, V1)])
    cm([(Gq(1), Gq(0), V1), (F(3), F(2), F(1)), (F(4), F(2), F(2)), (Y(2), Y(0), W2), (Y(3), Y(1), W2)])
    cm([(Gq(2), Gq(0), V2), (Gq(3), Gq(1), V2), (F(5), F(4), F(1)), (F(6), F(4), F(2)), (F(7), F(4), F(3)), (Y(4), Y(2), W2)])
    for b in range(4): put(41+b, Y(b), False)
    put(0, Gq(0), True); put(8, Gq(1), True); put(16, Gq(2), True); put(20, Gq(3), True)
    for k in range(2, 8):
        t = [(Gq(2*k), Gq(2*k-2), V2), (Gq(2*k+1), Gq(2*k-1), V2), (Y(2*k+1), Y(2*k-1), W2)]
        if 2*k+2 <= 15: t.append((Y(2*k+2), Y(2*k), W2))
        cm(t)
    cm([(Gq(16), Gq(14), V2)])
    for b in range(4, 16): put(41+b, Y(b), False)
    for q in range(4): put(24+2*q, Gq(4+q), True)
    for q in range(8): put(32+q, Gq(8+q), True)
    put(40, Gq(16), True)
    ex = []
    for c in range(1, 8): ex.append((c, 0, c)); ex.append((8+c, 1, c))
    for c in range(1, 4): ex.append((16+c, 2, 2*c)); ex.append((20+c, 3, 2*c))
    for q in range(4): ex.append((24+2*q+1, 4+q, 4))
    XT = 130
    for i in range(0, len(ex), 6):
        grp = ex[i:i+6]
        cm([(XT+2*k, Gq(g), F(c)) for k, (row, g, c) in enumerate(grp)])
        for k, (row, g, c) in enumerate(grp): put(row, XT+2*k, True)
    A("s_and_b32 s92, s36, 1"); A("s_lshl_b32 s92, s92, 10")
    A("v_lshlrev_b32 v44, 4, v1"); A("v_add_u32 v44, s92, v44"); A("v_sub_u32 v44, 2047, v44")
    for e in range(17): A(f"v_subrev_u32 v{EA+e}, {e}, v44")
    for e in range(0, 17, 2):
        e2 = min(e+1, 16); t = 46 + 2*((e//2) & 3)
        A(f"v_cvt_f32_i32 v{t}, v{EA+e}"); A(f"v_cvt_f32_i32 v{t+1}, v{EA+e2}")
        A(f"v_cvt_pk_bf16_f32 v{t}, v{t}, v{t+1}")
        A(f"v_lshrrev_b32 v{t+1}, 16, v{t}"); A(f"v_and_b32 v{t}, 0xffff, v{t}")
        A(f"v_subrev_u32 v{t}, 17024, v{t}"); A(f"v_subrev_u32 v{t+1}, 17024, v{t+1}")
        A([f"v_cmp_gt_i32 vcc, 128, v{EA+e}", "s_nop 1", f"v_cndmask_b32 v{EA+e}, v{t}, v{EA+e}, vcc"])
        if e2 != e: A([f"v_cmp_gt_i32 vcc, 128, v{EA+e2}", "s_nop 1", f"v_cndmask_b32 v{EA+e2}, v{t+1}, v{EA+e2}, vcc"])
    A([f"v_cmp_gt_i32 vcc, 0, v{EA+16}", "v_mov_b32 v46, 641", "s_nop 0", f"v_cndmask_b32 v{EA+16}, v{EA+16}, v46, vcc"])
    for e in range(17): A(f"v_lshlrev_b32 v{EA+e}, 1, v{EA+e}")
    return L

def emit_ops(a, ops):
    for o in ops:
        if isinstance(o, list):
            for i in o: a(i)
        else: a(o)

def row_stats2_ops(raws, t):
    L = []
    for r, raw in enumerate(raws):
        b = t + 12*r
        for d in range(4): L += [f"v_lshlrev_b32 v{b+2*d}, 16, v{raw+d}", f"v_and_b32 v{b+2*d+1}, 0xffff0000, v{raw+d}"]
    for r in range(2):
        b = t + 12*r
        L += [f"v_pk_add_f32 v[{b+8}:{b+9}], v[{b}:{b+1}], v[{b+2}:{b+3}]", f"v_pk_add_f32 v[{b+10}:{b+11}], v[{b+4}:{b+5}], v[{b+6}:{b+7}]"]
    for r in range(2):
        b = t + 12*r
        L += [f"v_pk_add_f32 v[{b+8}:{b+9}], v[{b+8}:{b+9}], v[{b+10}:{b+11}]", f"v_add_f32 v{b+8}, v{b+8}, v{b+9}"]
    def allred(off, toff):
        regs = [t + off, t + 12 + off]
        for mod in ("quad_perm:[1,0,3,2]", "quad_perm:[2,3,0,1]", "row_half_mirror", "row_mirror"):
            for x in regs: L.append(f"v_add_f32_dpp v{x}, v{x}, v{x} {mod} row_mask:0xf bank_mask:0xf")
        for sw in ("v_permlane16_swap_b32", "v_permlane32_swap_b32"):
            for x in regs: L.append(f"v_mov_b32 v{x - off + toff}, v{x}")
            for x in regs: L.append(f"{sw} v{x}, v{x - off + toff}")
            for x in regs: L.append(f"v_add_f32 v{x}, v{x}, v{x - off + toff}")
    allred(8, 9)
    for r in range(2): L.append(f"v_mul_f32 v{t+12*r+8}, {f2u(1/512):#x}, v{t+12*r+8}")
    for r in range(2):
        b = t + 12*r
        for k in range(8): L.append(f"v_sub_f32 v{b+k}, v{b+k}, v{b+8}")
    for r in range(2):
        b = t + 12*r
        L += [f"v_mul_f32 v{b+9}, v{b}, v{b}", f"v_mul_f32 v{b+10}, v{b+1}, v{b+1}"]
    for k in range(2, 8):
        for r in range(2):
            b = t + 12*r
            L.append(f"v_fmac_f32 v{b+9+(k&1)}, v{b+k}, v{b+k}")
    for r in range(2): L.append(f"v_add_f32 v{t+12*r+9}, v{t+12*r+9}, v{t+12*r+10}")
    allred(9, 10)
    def both(fmt):
        for r in range(2): L.append(fmt.format(m=t+12*r+8, v=t+12*r+9))
    both(f"v_mul_f32 v{{v}}, {f2u(1/512):#x}, v{{v}}")
    both("v_cvt_pk_bf16_f32 v{m}, v{m}, v{m}"); both("v_cvt_pk_bf16_f32 v{v}, v{v}, v{v}")
    both("v_lshlrev_b32 v{m}, 16, v{m}"); both("v_lshlrev_b32 v{v}, 16, v{v}")
    both(f"v_add_f32 v{{v}}, {f2u(1e-5):#x}, v{{v}}")
    both("v_cvt_pk_bf16_f32 v{v}, v{v}, v{v}"); both("v_lshlrev_b32 v{v}, 16, v{v}")
    both("v_sqrt_f32 v{v}, v{v}")
    both("v_cvt_pk_bf16_f32 v{v}, v{v}, v{v}"); both("v_lshlrev_b32 v{v}, 16, v{v}")
    both("v_rcp_f32 v{v}, v{v}"); both("v_sub_f32 v{m}, 0, v{m}")
    L += [f"v_mov_b32 v{t+10}, v{t+12+8}", f"v_mov_b32 v{t+11}, v{t+12+9}", f"v_mov_b32 v{t+7}, 0"]
    L[-1] = f"v_mov_b32 v{t+7}, s52"
    L.append(["s_mov_b64 exec, 1", f"ds_write_b128 v{t+7}, v[{t+8}:{t+11}]", "s_mov_b64 exec, -1"])
    return L

def only_wave(a, w, fn):
    lab = a.newlabel("W")
    a(f"s_cmp_lg_u32 s36, {w}"); a(f"s_cbranch_scc1 {lab}")
    a.skip_begin(); fn(); a.skip_end()
    a.label(lab)


def either(a, w, fn1, fn2):
    l1 = a.newlabel("E"); l2 = a.newlabel("E")
    a(f"s_cmp_lg_u32 s36, {w}"); a(f"s_cbranch_scc1 {l1}")
    fn1()
    a(f"s_branch {l2}")
    a.label(l1)
    fn2()
    a.label(l2)

def dma_setup(a, wq):
    a("s_lshl_b32 s43, s39, 18"); a(f"s_lshl_b32 s41, {wq}, 16"); a("s_add_u32 s43, s43, s41")
    a(f"s_mul_i32 s42, {wq}, 57344"); a("s_lshl_b32 s41, s40, 7"); a("s_add_u32 s42, s42, s41")
    a(f"s_lshl_b32 s44, {wq}, 13")
    a(f"s_lshl_b32 s45, {wq}, 11"); a(f"s_add_u32 s45, s45, {WBASE}")

def dma(a, j, fill=None):
    fill = list(fill or [])
    per = (len(fill) + 11)//12
    def f():
        nonlocal fill
        emit_ops(a, fill[:per]); fill = fill[per:]
    sl = j % 3
    a(f"s_add_u32 s41, s39, {j}"); a("s_and_b32 s41, s41, 7"); a("s_lshl_b32 s55, s41, 7"); a("s_add_u32 s55, s55, s43")
    a("s_mul_i32 s41, s41, 229376"); a("s_add_u32 s41, s41, s42"); a("s_add_u32 s49, s41, 28672")
    for gu in range(2):
        for z in range(2):
            a(f"s_add_u32 m0, s45, {sl*WSLOT + gu*8192 + z*1024}")
            a("s_nop 0")
            a(f"buffer_load_dwordx4 v4, s[{12+4*gu}:{15+4*gu}], s{41 if z == 0 else 49} offen lds")
            f()
    for z in range(8):
        a(f"s_add_u32 m0, s44, {sl*XSLOT + z*1024}"); a(f"s_add_u32 s46, s55, {z*8192}")
        a(f"buffer_load_dwordx4 v{2 + (z&1)}, s[8:11], s46 offen lds")
        f()
    emit_ops(a, fill)

def dma_voff(a):
    a("v_lshrrev_b32 v16, 3, v1"); a("v_lshrrev_b32 v17, 4, v1"); a("v_and_b32 v18, 7, v1")
    a("v_xor_b32 v19, v18, v17"); a("v_lshlrev_b32 v19, 4, v19"); a("v_lshl_add_u32 v2, v16, 10, v19")
    a("v_xor_b32 v3, 64, v2")
    a("v_mul_u32_u24 v4, 3584, v16"); a("v_and_b32 v19, 1, v17"); a("v_lshlrev_b32 v19, 2, v19"); a("v_xor_b32 v19, v19, v18")
    a("v_lshl_add_u32 v4, v19, 4, v4")

def dma0(a):
    a("s_mul_i32 s41, s39, 229376"); a("s_mul_i32 s46, s36, 28672"); a("s_add_u32 s41, s41, s46"); a("s_lshl_b32 s46, s40, 7"); a("s_add_u32 s41, s41, s46")
    a("s_lshl_b32 s46, s36, 10"); a(f"s_add_u32 m0, s46, {WBASE}")
    a("s_nop 0")
    a("buffer_load_dwordx4 v4, s[12:15], s41 offen lds")
    a(f"s_add_u32 m0, s46, {WBASE+8192}")
    a("s_nop 0")
    a("buffer_load_dwordx4 v4, s[16:19], s41 offen lds")
    a("s_lshl_b32 s41, s39, 18"); a("s_lshl_b32 s46, s36, 15"); a("s_add_u32 s41, s41, s46"); a("s_lshl_b32 s46, s39, 7"); a("s_add_u32 s41, s41, s46")
    a("s_lshl_b32 s49, s36, 12")
    for z in range(4):
        a(f"s_add_u32 m0, s49, {z*1024}"); a(f"s_add_u32 s46, s41, {z*8192}")
        a(f"buffer_load_dwordx4 v{2 + (z&1)}, s[8:11], s46 offen lds")

def prefill(a, r=156):
    a("s_bfe_u32 s58, s36, 0x10001"); a("s_lshl_b32 s59, s2, 1"); a("s_add_u32 s58, s58, s59"); a("s_lshl_b32 s58, s58, 12")
    a("s_and_b32 s59, s36, 1"); a("s_lshl_b32 s59, s59, 11"); a("s_add_u32 s58, s58, s59"); a(f"s_add_u32 s58, s58, {G.WS_ST}")
    for i in range(4): a(f"v_mov_b32 v{r+i}, -1")
    a(f"buffer_store_dwordx4 v[{r}:{r+3}], v245, s[20:23], s58 offen sc1")
    a(f"buffer_store_dwordx4 v[{r}:{r+3}], v245, s[20:23], s58 offen offset:1024 sc1")


def phaseA_gemm1(a):
    if OPT.get("local"):
        a("s_mov_b32 s39, s37"); a("s_mov_b32 s40, s38")
    else:
        a("s_mul_i32 s41, s38, 37"); a("s_lshr_b32 s41, s41, 8"); a("s_mul_i32 s42, s41, 7"); a("s_sub_u32 s42, s38, s42")
        a("s_lshr_b32 s39, s37, 2"); a("s_lshl_b32 s39, s39, 2"); a("s_add_u32 s39, s39, s41")
        a("s_and_b32 s40, s37, 3"); a("s_mul_i32 s40, s40, 7"); a("s_add_u32 s40, s40, s42")
    dma_voff(a)
    a("s_cmp_ge_u32 s36, 4"); a("s_cbranch_scc1 A_LOAD")
    dma_setup(a, "s36")
    dma(a, 0)
    a(f"v_mov_b32 v56, {L_CNT+84}"); a("v_mov_b32 v57, 1")
    a("s_mov_b64 exec, 1"); a("ds_add_u32 v56, v57"); a("s_mov_b64 exec, -1")
    a("v_lshlrev_b32 v245, 4, v1")
    srd(a, 24, 32, 33, 256)
    a("s_setprio 2")
    a("s_lshr_b32 s47, s36, 1"); a("s_and_b32 s48, s36, 1")
    a("v_and_b32 v16, 31, v1"); a("v_lshlrev_b32 v16, 7, v16")
    a("s_lshl_b32 s41, s47, 14"); a("v_add_u32 v16, s41, v16")
    a("v_lshrrev_b32 v17, 5, v1"); a("v_bfe_u32 v18, v1, 1, 3")
    XA = 6
    for s in range(4):
        a(f"v_add_u32 v19, {2*s}, v17"); a("v_xor_b32 v19, v19, v18")
        a(f"v_lshl_add_u32 v{XA+s}, v19, 4, v16")
        a(f"v_add_u32 v{XA+4+s}, 65536, v{XA+s}")
    a("v_bfe_u32 v18, v1, 2, 2")
    a("v_lshl_add_u32 v19, v17, 3, v18"); a("v_lshlrev_b32 v19, 7, v19")
    a("v_lshrrev_b32 v20, 1, v18"); a("v_xor_b32 v20, s48, v20"); a("v_lshlrev_b32 v20, 2, v20")
    a("v_bfe_u32 v21, v1, 4, 1"); a("v_lshl_add_u32 v20, v21, 1, v20")
    a("v_bfe_u32 v21, v1, 1, 1"); a("v_add_u32 v20, v20, v21")
    a("v_lshl_add_u32 v19, v20, 4, v19")
    a("v_and_b32 v21, 1, v1"); a("v_lshl_add_u32 v19, v21, 3, v19")
    a(f"v_add_u32 v5, {WBASE}, v19")
    for i in range(4): a(f"v_mov_b32 v{48+i}, 0x3f803f80")
    FB = 192; ACC = 64
    def reads(g):
        j, s = g >> 2, g & 3
        sl = j % 3; b = FB + 24*(g & 1)
        xa = XA + s + (4 if sl == 2 else 0); xo = (sl*XSLOT) & 0xffff
        wo = sl*WSLOT + 16*s*128
        L = [f"ds_read_b64_tr_b16 v[{b}:{b+1}], v5 offset:{wo}", f"ds_read_b64_tr_b16 v[{b+2}:{b+3}], v5 offset:{wo+512}"]
        for rt in range(4): L.append(f"ds_read_b128 v[{b+4+4*rt}:{b+7+4*rt}], v{xa} offset:{xo+4096*rt}")
        L += [f"ds_read_b64_tr_b16 v[{b+20}:{b+21}], v5 offset:{wo+8192}", f"ds_read_b64_tr_b16 v[{b+22}:{b+23}], v5 offset:{wo+8192+512}"]
        return L
    stamp(a, 1)
    a("s_waitcnt vmcnt(0)")
    a(f"v_mov_b32 v56, {L_CNT+80}"); a("v_mov_b32 v57, 1")
    a("s_mov_b64 exec, 1"); a("ds_add_u32 v56, v57"); a("s_mov_b64 exec, -1")
    a.label("A_C0")
    a("ds_read_b32 v57, v56"); a("s_waitcnt lgkmcnt(0)"); a("v_readfirstlane_b32 s41, v57")
    a("s_cmp_lt_u32 s41, 4"); a("s_cbranch_scc1 A_C0")
    stamp(a, 2)
    for r in reads(0): a(r)
    for g in range(32):
        j, s = g >> 2, g & 3
        b = FB + 24*(g & 1)
        nxt = reads(g+1) if g < 31 else []
        def mf(gu, rt):
            ac = ACC + 16*(4*gu + rt)
            c = "0" if g == 0 else f"v[{ac}:{ac+15}]"
            wa = b if gu == 0 else b + 20
            xb = b + 4 + 4*rt
            a(f"v_mfma_f32_32x32x16_bf16 v[{ac}:{ac+15}], v[{wa}:{wa+3}], v[{xb}:{xb+3}], {c}")
        a("s_waitcnt lgkmcnt(0)")
        mf(0, 0)
        if s == 3 and j < 7:
            if j == 1:
                a("v_lshrrev_b32 v58, 5, v1"); a("v_lshlrev_b32 v58, 4, v58")
                a("s_lshl_b32 s41, s47, 9"); a("s_lshl_b32 s46, s48, 7"); a("s_add_u32 s41, s41, s46"); a(f"s_add_u32 s41, s41, {L_PCS}")
                a("v_add_u32 v58, s41, v58")
                a("s_mov_b32 exec_lo, 1"); a("s_mov_b32 exec_hi, 1")
                for gu in range(2):
                    for q in range(4): a(f"ds_write_b128 v58, v[{16+16*gu+4*q}:{16+16*gu+4*q+3}] offset:{gu*256+q*32}")
                a("s_mov_b64 exec, -1")
                a("s_waitcnt lgkmcnt(0)")
            if j == 2: a("s_waitcnt vmcnt(0)")
            a("s_barrier")
            if OPT.get("stA"): stamp(a, 6+j, force=True)
            if j == 0:
                prefill(a, 240)
                a("v_mov_b32 v60, 0"); a("buffer_load_dword v61, v60, s[24:27], 0 offen sc1")
            if j == 1:
                lab = a.newlabel("A_CP")
                a("s_cmp_ge_u32 s36, 2"); a(f"s_cbranch_scc1 {lab}")
                a.skip_begin()
                a("v_lshlrev_b32 v58, 2, v0"); a(f"v_add_u32 v59, {L_PCS}, v58")
                a("ds_read_b32 v56, v59"); a("ds_read_b32 v57, v59 offset:512")
                a("s_lshl_b32 s41, s40, 3"); a("s_add_u32 s41, s41, s39"); a("s_lshl_b32 s41, s41, 9"); a(f"s_add_u32 s41, s41, {WS_PCS}")
                a("s_waitcnt lgkmcnt(0)")
                a("v_add_f32 v56, v56, v57")
                a("buffer_store_dword v56, v58, s[20:23], s41 offen sc1")
                a.skip_end()
                a.label(lab)
                def st():
                    a("v_and_b32 v58, 15, v1"); a("v_lshlrev_b32 v58, 2, v58"); a(f"v_add_u32 v59, {L_STAT}, v58")
                    a("ds_read_b32 v56, v59")
                    a("s_lshl_b32 s41, s53, 6"); a(f"s_add_u32 s41, s41, {G.WS_STATS}")
                    a("s_waitcnt lgkmcnt(0)")
                    a("s_mov_b64 exec, 0xffff")
                    a("buffer_store_dword v56, v58, s[20:23], s41 offen sc1")
                    a("s_mov_b64 exec, -1")
                only_wave(a, 2, st)
            if j == 2:
                def pub():
                    init_check(a, "A_INIT", 61, tc=18)
                    publish_ready(a, True, ta=16, tb=17)
                only_wave0(a, pub)
            if j == 5:
                a("v_and_b32 v14, 31, v1"); a("v_lshlrev_b32 v14, 3, v14")
                a("s_lshl_b32 s41, s39, 11"); a("s_lshl_b32 s46, s47, 10"); a("s_add_u32 s41, s41, s46"); a(f"s_add_u32 s41, s41, {G.WS_STATS}")
                for rt in range(4): a(f"buffer_load_dwordx2 v[{52+2*rt}:{53+2*rt}], v14, s[20:23], s41 offen offset:{256*rt} sc1")
        for r in nxt[0:2]: a(r)
        mf(0, 1)
        for r in nxt[2:4]: a(r)
        mf(0, 2)
        for r in nxt[4:6]: a(r)
        mf(0, 3)
        for r in nxt[6:8]: a(r)
        for rt in range(4): mf(1, rt)
        if g < 4:
            lab = a.newlabel("A_CM")
            a(f"s_cmp_lg_u32 s47, {g>>1}"); a(f"s_cbranch_scc1 {lab}")
            a.skip_begin()
            c0 = "0" if (g & 1) == 0 else "v[16:31]"; c1 = "0" if (g & 1) == 0 else "v[32:47]"
            a(f"v_mfma_f32_32x32x16_bf16 v[16:31], v[{b}:{b+3}], v[48:51], {c0}")
            a(f"v_mfma_f32_32x32x16_bf16 v[32:47], v[{b+20}:{b+23}], v[48:51], {c1}")
            a.skip_end()
            a.label(lab)
    stamp(a, 3)
    a("v_lshrrev_b32 v15, 5, v1"); a("v_lshlrev_b32 v15, 4, v15"); a("s_lshl_b32 s41, s48, 7"); a(f"s_add_u32 s41, s41, {L_CSF}"); a("v_add_u32 v15, s41, v15")
    for gu in range(2):
        for q in range(4): a(f"ds_read_b128 v[{16+16*gu+4*q}:{16+16*gu+4*q+3}], v15 offset:{gu*256+q*32}")
    a(f"v_mov_b32 v14, {L_MODE}"); a("ds_read_b32 v13, v14")
    a("s_lshl_b32 s41, s47, 2"); a("s_lshl_b32 s50, s39, 3"); a("s_add_u32 s41, s41, s50")
    a("s_mul_i32 s41, s41, 112"); a("s_lshl_b32 s50, s40, 2"); a("s_add_u32 s41, s41, s50"); a("s_lshl_b32 s50, s48, 1"); a("s_add_u32 s41, s41, s50")
    a("s_lshl_b32 s56, s41, 10")
    if G.WS_HF: a(f"s_add_u32 s56, s56, {G.WS_HF}")
    for rt in range(1, 4): a(f"s_add_u32 s{56+rt}, s56, {rt*114688}")
    a("s_mov_b32 s46, 1.0"); a("s_mov_b32 s47, 1.0")
    a("v_lshlrev_b32 v62, 4, v1")
    a("s_waitcnt vmcnt(0) lgkmcnt(0)")
    a("v_readfirstlane_b32 s91, v13")
    HR = 192; TM = 224
    for rt in range(4):
        nm, rsd = 52+2*rt, 53+2*rt
        o = 2 + 6*(rt & 1)
        a(f"v_mov_b32 v{o}, v{nm}"); a(f"v_mov_b32 v{o+1}, v{nm}")
        a(f"v_mul_f32 v{o+2}, {f2u(-1.4426950408889634):#x}, v{rsd}"); a(f"v_mov_b32 v{o+3}, v{o+2}")
        a(f"v_mul_f32 v{o+4}, v{rsd}, v{rsd}"); a(f"v_mov_b32 v{o+5}, v{o+4}")
        for half in range(2):
            prs = [8*half + 2*k for k in range(4)]
            Gp = lambda i: f"v[{ACC+16*rt+i}:{ACC+16*rt+i+1}]"
            Up = lambda i: f"v[{ACC+64+16*rt+i}:{ACC+64+16*rt+i+1}]"
            CG = lambda i: f"v[{16+i}:{16+i+1}]"
            CU = lambda i: f"v[{32+i}:{32+i+1}]"
            Tm = lambda k: TM + 8*half + 2*k
            if OPT.get("epk", 1):
                for i in prs: a(f"v_pk_fma_f32 {Gp(i)}, {CG(i)}, v[{o}:{o+1}], {Gp(i)}")
                for i in prs: a(f"v_pk_fma_f32 {Up(i)}, {CU(i)}, v[{o}:{o+1}], {Up(i)}")
                for k, i in enumerate(prs): a(f"v_pk_mul_f32 v[{Tm(k)}:{Tm(k)+1}], {Gp(i)}, v[{o+2}:{o+3}]")
                for k, i in enumerate(prs):
                    a(f"v_exp_f32 v{Tm(k)}, v{Tm(k)}"); a(f"v_exp_f32 v{Tm(k)+1}, v{Tm(k)+1}")
                for k, i in enumerate(prs): a(f"v_pk_mul_f32 {Gp(i)}, {Gp(i)}, {Up(i)}")
                for k, i in enumerate(prs): a(f"v_pk_add_f32 v[{Tm(k)}:{Tm(k)+1}], v[{Tm(k)}:{Tm(k)+1}], s[46:47]")
                for k, i in enumerate(prs): a(f"v_pk_mul_f32 {Gp(i)}, {Gp(i)}, v[{o+4}:{o+5}]")
                for k, i in enumerate(prs):
                    a(f"v_rcp_f32 v{Tm(k)}, v{Tm(k)}"); a(f"v_rcp_f32 v{Tm(k)+1}, v{Tm(k)+1}")
                for k, i in enumerate(prs): a(f"v_pk_mul_f32 {Gp(i)}, {Gp(i)}, v[{Tm(k)}:{Tm(k)+1}]")
            else:
                els = [8*half + k for k in range(8)]
                g = lambda i: ACC+16*rt+i
                u = lambda i: ACC+64+16*rt+i
                t = lambda k: TM + 8*half + k
                for i in els: a(f"v_fma_f32 v{g(i)}, v{16+i}, v{o}, v{g(i)}")
                for k, i in enumerate(els): a(f"v_mul_f32 v{t(k)}, v{g(i)}, v{o+2}")
                for i in els: a(f"v_fma_f32 v{u(i)}, v{32+i}, v{o}, v{u(i)}")
                for k, i in enumerate(els): a(f"v_exp_f32 v{t(k)}, v{t(k)}")
                for i in els: a(f"v_mul_f32 v{g(i)}, v{g(i)}, v{u(i)}")
                for k, i in enumerate(els): a(f"v_add_f32 v{t(k)}, 1.0, v{t(k)}")
                for i in els: a(f"v_mul_f32 v{g(i)}, v{g(i)}, v{o+4}")
                for k, i in enumerate(els): a(f"v_rcp_f32 v{t(k)}, v{t(k)}")
                for k, i in enumerate(els): a(f"v_mul_f32 v{g(i)}, v{g(i)}, v{t(k)}")
            F = 2*rt + half
            for k, i in enumerate(prs):
                a(f"v_cvt_pk_bf16_f32 v{HR+4*F+k}, v{ACC+16*rt+i}, v{ACC+16*rt+i+1}")
            l1 = a.newlabel("A_S"); l2 = a.newlabel("A_S")
            a("s_cmp_eq_u32 s91, 1"); a(f"s_cbranch_scc0 {l1}")
            a(f"buffer_store_dwordx4 v[{HR+4*F}:{HR+4*F+3}], v62, s[20:23], s{56+rt} offen offset:{half*1024}")
            a(f"s_branch {l2}")
            a.label(l1)
            a(f"buffer_store_dwordx4 v[{HR+4*F}:{HR+4*F+3}], v62, s[20:23], s{56+rt} offen offset:{half*1024} sc1")
            a.label(l2)
    stamp(a, 4)
    a("s_waitcnt vmcnt(0)")
    a("s_setprio 0")
    a(f"v_mov_b32 v2, {L_CNT+76}"); a("v_mov_b32 v3, 1")
    a("s_mov_b64 exec, 1")
    a("ds_add_rtn_u32 v4, v2, v3")
    a("s_waitcnt lgkmcnt(0)")
    a("v_readfirstlane_b32 s41, v4")
    a("s_mov_b64 exec, -1")
    labn = a.newlabel("A_NH")
    a("s_cmp_lg_u32 s41, 3"); a(f"s_cbranch_scc1 {labn}")
    a.skip_begin()
    a("s_lshl_b32 s41, s39, 7"); a("s_lshl_b32 s46, s40, 2"); a("s_add_u32 s41, s41, s46"); a(f"s_add_u32 s41, s41, {F_H}")
    l1 = a.newlabel("A_F"); l2 = a.newlabel("A_F")
    a("v_mov_b32 v4, 0")
    a("s_mov_b64 exec, 1")
    a("s_cmp_eq_u32 s91, 1"); a(f"s_cbranch_scc0 {l1}")
    a("buffer_store_dword v3, v4, s[20:23], s41 offen")
    a(f"s_branch {l2}")
    a.label(l1)
    a("buffer_store_dword v3, v4, s[20:23], s41 offen sc1")
    a.label(l2)
    a("s_mov_b64 exec, -1")
    a.skip_end()
    a.label(labn)
    stamp(a, 5)
    a("s_branch B_GEMM2")

    a.label("A_LOAD")
    a.barrier_hazard()
    a("s_sub_u32 s47, s36, 4")
    a(f"s_setprio {OPT.get('lprio', 3)}")
    dma_setup(a, "s47")
    a(f"v_mov_b32 v56, {L_CNT+84}")
    a.label("A_L0")
    a("ds_read_b32 v57, v56"); a("s_waitcnt lgkmcnt(0)"); a("v_readfirstlane_b32 s41, v57")
    a("s_cmp_lt_u32 s41, 4"); a("s_cbranch_scc1 A_L0")
    dma(a, 1)
    a("s_lshl_b32 s41, s53, 3"); a("s_lshl_b32 s46, s47, 1"); a("s_add_u32 s41, s41, s46"); a("s_lshl_b32 s41, s41, 10")
    a("s_lshl_b32 s52, s47, 4"); a(f"s_add_u32 s52, s52, {L_STAT}")
    a("v_lshlrev_b32 v245, 4, v1")
    a("buffer_load_dwordx4 v[220:223], v245, s[8:11], s41 offen")
    a("buffer_load_dwordx4 v[224:227], v245, s[8:11], s41 offen offset:1024")
    dma(a, 2)
    srd(a, 24, 32, 33, 256)
    kops = kgen_ops()
    nea = 0
    iea = next(k for k, o in enumerate(kops) if isinstance(o, str) and o.startswith("s_and_b32 s92, s36, 1"))
    ea_ops, k_ops = kops[iea:], kops[:iea]
    stamp(a, 1)
    def dummy(): a("buffer_load_dword v218, v245, s[8:11], 0 offen")
    rs = row_stats2_ops((220, 224), 132)
    allk = k_ops + ea_ops
    ntail = OPT.get("ntail", 0)
    body, tail_ops = (allk[:len(allk)-ntail], allk[len(allk)-ntail:]) if ntail else (allk, [])
    per = (len(body) + 4)//5
    fills = {1: rs}
    for idx, key in enumerate((2, 3, 4, 5, 6)):
        fills[key] = body[idx*per:(idx+1)*per]
    for j in range(7):
        if j == 5:
            a("s_waitcnt vmcnt(12)")
            only_wave(a, 4, lambda: flags_check(a, "A_POLL", 10, 9))
        if j == 6:
            emit_ops(a, fills[6])
            a("s_waitcnt vmcnt(1)")
            a("v_add_f32 v144, v144, v145"); a("v_add_f32 v146, v146, v147"); a("v_add_f32 v148, v148, v149"); a("v_add_f32 v150, v150, v151")
            a("v_add_f32 v144, v144, v146"); a("v_add_f32 v148, v148, v150"); a("v_add_f32 v144, v144, v148")
            a(f"v_add_u32 v153, {L_CSF}, v152"); a("ds_write_b32 v153, v144")
        n = {0: 12, 1: 12, 2: 12, 3: 12, 4: 12, 5: 12, 6: 1}[j]
        a(f"s_waitcnt vmcnt({n}) lgkmcnt(0)")
        a("s_barrier")
        if j == 1:
            a("v_and_b32 v152, 31, v1"); a("s_lshl_b32 s41, s47, 5"); a("v_add_u32 v152, s41, v152"); a("v_lshlrev_b32 v152, 2, v152")
        if j == 4:
            flags_poll_setup(a, 10)
            a("v_mov_b32 v9, 0")
            either(a, 4, lambda: a("buffer_load_dword v9, v10, s[20:23], 0 offen sc1"), dummy)
        if j == 0:
            dma(a, 3, fills[1])
        elif j + 3 <= 7: dma(a, j+3, fills[j+1])
        if j == 5:
            a("s_lshl_b32 s41, s40, 12"); a(f"s_add_u32 s41, s41, {WS_PCS}")
            for m8 in range(8): a(f"buffer_load_dword v{144+m8}, v152, s[20:23], s41 offen offset:{m8*512} sc1")
            a("v_and_b32 v7, 31, v1"); a("v_lshlrev_b32 v7, 2, v7"); a("s_lshl_b32 s41, s37, 7"); a(f"s_add_u32 s41, s41, {F_A}"); a("v_add_u32 v7, s41, v7")
            a("v_mov_b32 v8, 0")
            either(a, 7, lambda: a("buffer_load_dword v8, v7, s[20:23], 0 offen sc1"), dummy)
    stamp(a, 3)
    emit_ops(a, tail_ops)
    a("s_branch B_CONV")

def phaseA_aux(a):
    a("s_sub_u32 s39, s38, 28"); a("s_lshl_b32 s39, s39, 3"); a("s_add_u32 s39, s39, s37")
    a("s_cmp_ge_u32 s39, 28"); a("s_cselect_b32 s40, 28, 0"); a("s_sub_u32 s40, s39, s40")
    a("v_lshlrev_b32 v2, 4, v1"); a("v_add_u32 v3, 4096, v2")
    srd(a, 24, 32, 33, 256)
    labz = a.newlabel("A_NZ")
    a("s_cmp_lg_u32 s39, 31"); a(f"s_cbranch_scc1 {labz}")
    a("s_cmp_lg_u32 s36, 0"); a(f"s_cbranch_scc1 {labz}")
    a.skip_begin()
    for r in range(8, 12): a(f"v_mov_b32 v{r}, 0")
    a(f"s_mov_b32 s45, {G.WS_FLAG}")
    for z in range(8):
        a(f"buffer_store_dwordx4 v[8:11], v{2 if z < 4 else 3}, s[20:23], s45 offen offset:{(z&3)*1024} sc1")
    a("s_waitcnt vmcnt(0)")
    a("v_mov_b32 v12, 1")
    a("s_mov_b64 exec, 1")
    a("buffer_store_dword v12, v8, s[24:27], 0 offen sc1")
    a("s_mov_b64 exec, -1")
    a.skip_end()
    a.label(labz)
    a("s_lshl_b32 s41, s53, 3"); a("s_add_u32 s41, s41, s36"); a("s_lshl_b32 s52, s41, 3"); a(f"s_add_u32 s52, s52, {G.WS_STATS}"); a("s_lshl_b32 s41, s41, 10")
    a("buffer_load_dwordx4 v[40:43], v2, s[8:11], s41 offen")
    a("s_lshl_b32 s42, s36, 13")
    a("s_lshl_b32 s41, s39, 16"); a("s_add_u32 s41, s41, s42")
    for i in range(8):
        a(f"buffer_load_dwordx4 v[{96+4*i}:{96+4*i+3}], v{2 if i<4 else 3}, s[8:11], s41 offen offset:{(i&3)*1024}")
    srd(a, 24, 6, 7, 1792*512*2)
    a("s_lshl_b32 s44, s40, 16"); a("s_add_u32 s44, s44, s42")
    for i in range(8):
        a(f"buffer_load_dwordx4 v[{176+4*i}:{176+4*i+3}], v{2 if i<4 else 3}, s[24:27], s44 offen offset:{(i&3)*1024}")
    srd(a, 24, 32, 33, 256)
    labq = a.newlabel("A_NPF")
    a("s_cmp_lt_u32 s36, 4"); a(f"s_cbranch_scc1 {labq}")
    a.skip_begin()
    a("v_lshlrev_b32 v245, 4, v1")
    prefill(a)
    a.skip_end()
    a.label(labq)
    a("s_mov_b32 s84, 0xaaaaaaaa"); a("s_mov_b32 s85, 0xaaaaaaaa"); a("s_mov_b32 s86, 0xcccccccc"); a("s_mov_b32 s87, 0xcccccccc"); a("s_mov_b32 s88, 0xf0f0f0f0"); a("s_mov_b32 s89, 0xf0f0f0f0")
    stamp(a, 1)
    a("s_waitcnt vmcnt(16) lgkmcnt(0)")
    for grp in row_stats_ops(40, 44):
        for i in grp: a(i)
    a("s_waitcnt vmcnt(9)")
    X = 32
    for i in range(8):
        for d in range(4):
            a(f"v_lshlrev_b32 v{X+8*i+2*d}, 16, v{96+4*i+d}")
            a(f"v_and_b32 v{X+8*i+2*d+1}, 0xffff0000, v{96+4*i+d}")
    for i in range(8):
        b = X + 8*i; t = 144 + 2*(i & 3)
        a(f"v_pk_add_f32 v[{t}:{t+1}], v[{b}:{b+1}], v[{b+2}:{b+3}]")
        a(f"v_pk_mul_f32 v[{t+8}:{t+9}], v[{b}:{b+1}], v[{b}:{b+1}]")
        a(f"v_pk_add_f32 v[{t}:{t+1}], v[{t}:{t+1}], v[{b+4}:{b+5}]")
        a(f"v_pk_fma_f32 v[{t+8}:{t+9}], v[{b+2}:{b+3}], v[{b+2}:{b+3}], v[{t+8}:{t+9}]")
        a(f"v_pk_add_f32 v[{t}:{t+1}], v[{t}:{t+1}], v[{b+6}:{b+7}]")
        a(f"v_pk_fma_f32 v[{t+8}:{t+9}], v[{b+4}:{b+5}], v[{b+4}:{b+5}], v[{t+8}:{t+9}]")
        a(f"v_add_f32 v{128+i}, v{t}, v{t+1}")
        a(f"v_pk_fma_f32 v[{t+8}:{t+9}], v[{b+6}:{b+7}], v[{b+6}:{b+7}], v[{t+8}:{t+9}]")
        a(f"v_add_f32 v{136+i}, v{t+8}, v{t+9}")
    def rs_level(src, n, mask, perm, dst, tmp):
        for k in range(n):
            A_, B_ = src[2*k], src[2*k+1]
            a(f"v_cndmask_b32 v{dst[k]}, v{A_}, v{B_}, {mask}")
            a(f"v_cndmask_b32 v{tmp+k}, v{B_}, v{A_}, {mask}")
        for k in range(n):
            a(f"v_add_f32_dpp v{dst[k]}, v{tmp+k}, v{dst[k]} {perm} row_mask:0xf bank_mask:0xf")
    src = [128+i for i in range(16)]
    d1 = [144+k for k in range(8)]
    rs_level(src, 8, "s[84:85]", "quad_perm:[1,0,3,2]", d1, 160)
    d2 = [128+k for k in range(4)]
    rs_level(d1, 4, "s[86:87]", "quad_perm:[2,3,0,1]", d2, 160)
    for m in ("row_ror:4", "row_ror:8"):
        for r in d2: a(f"v_add_f32_dpp v{r}, v{r}, v{r} {m} row_mask:0xf bank_mask:0xf")
    for sw in ("v_permlane16_swap_b32", "v_permlane32_swap_b32"):
        for k, r in enumerate(d2): a(f"v_mov_b32 v{160+k}, v{r}")
        for k, r in enumerate(d2): a(f"{sw} v{r}, v{160+k}")
        for k, r in enumerate(d2): a(f"v_add_f32 v{r}, v{r}, v{160+k}")
    a("v_cndmask_b32 v8, v128, v129, s[88:89]")
    a("v_cndmask_b32 v9, v130, v131, s[88:89]")
    a(f"v_mul_f32 v8, {f2u(1/512):#x}, v8"); a(f"v_mul_f32 v9, {f2u(1/512):#x}, v9")
    a("v_fma_f32 v9, -v8, v8, v9"); a("v_max_f32 v9, 0, v9")
    bf16r(a, 8, 8); bf16r(a, 9, 9)
    a(f"v_add_f32 v9, {f2u(1e-5):#x}, v9"); bf16r(a, 9, 9)
    a("v_sqrt_f32 v9, v9"); bf16r(a, 9, 9)
    a("v_rcp_f32 v9, v9"); a("v_sub_f32 v8, 0, v8")
    a("v_mul_f32 v11, v8, v9")
    stamp(a, 2)
    RS = [92, 94, 56, 58, 80, 82, 84, 86]
    for i in range(8):
        a(f"v_readlane_b32 s{RS[i]}, v9, {i}"); a(f"v_readlane_b32 s{RS[i]+1}, v9, {i}")
    for i in range(8):
        a(f"v_readlane_b32 s{46+(i&1)}, v11, {i}"); a(f"v_mov_b32 v{224+2*i}, s{46+(i&1)}"); a(f"v_mov_b32 v{225+2*i}, s{46+(i&1)}")
    for i in range(8):
        for d in range(4):
            a(f"v_pk_fma_f32 v[{X+8*i+2*d}:{X+8*i+2*d+1}], v[{X+8*i+2*d}:{X+8*i+2*d+1}], s[{RS[i]}:{RS[i]+1}], v[{224+2*i}:{225+2*i}]")
    a("s_add_u32 s45, s42, 65536")
    for i in range(4):
        a(f"v_xor_b32 v{4+i}, {4*i}, v1"); a(f"v_lshlrev_b32 v{4+i}, 4, v{4+i}"); a(f"v_add_u32 v{4+i}, s45, v{4+i}")
    a("s_waitcnt vmcnt(0)")
    for i in range(8): a(f"ds_write_b128 v{4+(i&3)}, v[{176+4*i}:{176+4*i+3}] offset:{i*1024}")
    P = 128
    for i in range(8):
        for d in range(4): a(f"v_cvt_pk_bf16_f32 v{P+4*i+d}, v{X+8*i+2*d}, v{X+8*i+2*d+1}")
    a("s_mov_b32 s46, 0x05040100"); a("s_mov_b32 s47, 0x07060302")
    for e in range(8):
        for k in range(4):
            a(f"v_perm_b32 v{64+4*e+k}, v{P+4*(2*k+1)+(e>>1)}, v{P+4*(2*k)+(e>>1)}, s{46+(e&1)}")
    a("v_and_b32 v16, 7, v1"); a("v_xor_b32 v16, s36, v16"); a("v_lshlrev_b32 v16, 4, v16"); a("v_lshl_add_u32 v16, v1, 10, v16")
    for e in range(8): a(f"ds_write_b128 v16, v[{64+4*e}:{64+4*e+3}] offset:{e*128}")
    a("s_waitcnt vmcnt(0) lgkmcnt(0)")
    a("s_barrier")
    def pubx():
        a("v_mov_b32 v158, 0"); a("buffer_load_dword v9, v158, s[24:27], 0 offen sc1"); a("s_waitcnt vmcnt(0)")
        init_check(a, "X_INIT", 9)
        publish_ready(a, False)
    only_wave0(a, pubx)
    stamp(a, 3)
    a("v_lshrrev_b32 v16, 3, v1"); a("v_and_b32 v17, 7, v1")
    a("v_lshlrev_b32 v18, 12, v16"); a("v_lshl_add_u32 v18, v17, 4, v18")
    a("v_lshlrev_b32 v19, 7, v16"); a("s_lshl_b32 s45, s36, 13"); a("v_add_u32 v19, s45, v19")
    for z in range(8):
        a(f"v_xor_b32 v20, {z}, v17"); a(f"v_lshl_add_u32 v20, v20, 4, v19")
        a(f"ds_read_b128 v[{32+4*z}:{32+4*z+3}], v20 offset:{z*1024}")
    a("s_lshl_b32 s45, s36, 18"); a("s_lshl_b32 s46, s39, 7"); a("s_add_u32 s45, s45, s46"); a(f"s_add_u32 s45, s45, {G.WS_UT}")
    a("v_lshrrev_b32 v24, 5, v1"); a("v_bfe_u32 v25, v1, 4, 1"); a("v_bfe_u32 v26, v1, 2, 2"); a("v_bfe_u32 v27, v1, 1, 1"); a("v_and_b32 v28, 1, v1")
    a("s_and_b32 s43, s36, 3")
    a("v_xor_b32 v21, s43, v26"); a("v_lshlrev_b32 v21, 2, v21"); a("v_lshl_add_u32 v21, v25, 1, v21"); a("v_add_u32 v21, v21, v27")
    a("v_lshlrev_b32 v21, 4, v21"); a("v_lshl_add_u32 v21, v28, 3, v21")
    a("v_lshl_add_u32 v22, v24, 2, v26"); a("v_lshl_add_u32 v21, v22, 10, v21")
    a("s_and_b32 s43, s36, 4"); a("s_lshl_b32 s43, s43, 6"); a("s_add_u32 s43, s43, 65536"); a("v_add_u32 v21, s43, v21")
    for y in range(2):
        for sp in range(4):
            b = 64 + 4*(4*y+sp)
            for rd in range(2):
                a(f"ds_read_b64_tr_b16 v[{b+2*rd}:{b+2*rd+1}], v21 offset:{sp*16384 + rd*8192 + y*512}")
    a("s_waitcnt lgkmcnt(0)")
    for z in range(8):
        a(f"s_add_u32 s46, s45, {z*32768}")
        a(f"buffer_store_dwordx4 v[{32+4*z}:{32+4*z+3}], v18, s[20:23], s46 offen sc1")
    labn = a.newlabel("A_NOWD")
    a("s_cmp_ge_u32 s39, 28"); a(f"s_cbranch_scc1 {labn}")
    a.skip_begin()
    a("s_mul_i32 s44, s36, 112"); a("s_lshl_b32 s45, s39, 2"); a("s_add_u32 s44, s44, s45"); a("s_lshl_b32 s44, s44, 10")
    a(f"s_add_u32 s44, s44, {G.WS_WDF}")
    for y in range(2):
        if y: a(f"s_add_u32 s44, s44, {8*112*1024}")
        for sp in range(4):
            b = 64 + 4*(4*y+sp)
            a(f"buffer_store_dwordx4 v[{b}:{b+3}], v2, s[20:23], s44 offen offset:{sp*1024} sc1")
    a.skip_end()
    a.label(labn)
    stamp(a, 4)
    a("s_waitcnt vmcnt(0)")
    a("s_barrier")
    a("s_lshl_b32 s41, s39, 2"); a(f"s_add_u32 s41, s41, {F_A}")
    def af():
        a("v_mov_b32 v154, 1"); a("v_lshlrev_b32 v219, 7, v1")
        a("s_mov_b64 exec, 0xff")
        a("buffer_store_dword v154, v219, s[20:23], s41 offen sc1")
        a("s_mov_b64 exec, -1")
    only_wave0(a, af)
    stamp(a, 5)
    a("s_cmp_lt_u32 s36, 4"); a("s_cbranch_scc1 B_GEMM2")
    emit_ops(a, kgen_ops())
    a("v_mov_b32 v8, 0")
    a("s_branch B_CONV")

def phaseB_common(a):
    a("s_lshl_b32 s39, s37, 2"); a("s_lshr_b32 s3, s38, 3"); a("s_add_u32 s39, s39, s3")
    a("s_and_b32 s3, s38, 7")
    srd(a, 12, 96, 97, 2048*512*2)
    a("v_lshrrev_b32 v5, 3, v1"); a("v_lshlrev_b32 v5, 10, v5")
    a("v_and_b32 v6, 7, v1"); a("v_lshl_add_u32 v5, v6, 4, v5")
    a("s_lshl_b32 s34, s39, 16"); a("s_lshl_b32 s35, s36, 13"); a("s_add_u32 s34, s34, s35")
    a("s_lshl_b32 s35, s3, 7"); a("s_add_u32 s34, s34, s35")
    a("buffer_load_dwordx4 v[252:255], v5, s[8:11], s34 offen")

def phaseB(a):
    if OPT.get('stA'): OPT['stB_off'] = 1
    a.label("B_GEMM2")
    a.barrier_hazard()
    phaseB_common(a)
    WD = OPT.get("wd", 11); HD = OPT.get("hd", 8)
    WB = 24; HB = WB + 8*WD; AC = 176
    assert HB + 8*HD <= AC
    a("v_lshlrev_b32 v2, 4, v1")
    for q in range(7): a(f"v_add_u32 v{12+q}, {q*4096}, v2")
    a("s_mul_i32 s26, s39, 224"); a("s_mul_i32 s27, s36, 28"); a("s_add_u32 s26, s26, s27"); a("s_lshl_b32 s26, s26, 10")
    if G.WS_HF: a(f"s_add_u32 s26, s26, {G.WS_HF}")
    a("s_add_u32 s28, s26, 114688")
    a("s_mul_i32 s29, s3, 224"); a("s_add_u32 s29, s29, s27"); a("s_lshl_b32 s29, s29, 10"); a(f"s_add_u32 s29, s29, {G.WS_WDF}")
    a("s_add_u32 s30, s29, 114688")
    issued = []
    def ldW(s):
        b = WB + (s % WD)*8
        for j, sr in enumerate(["s29","s30"]):
            a(f"buffer_load_dwordx4 v[{b+4*j}:{b+4*j+3}], v{12+s//4}, s[20:23], {sr} offen offset:{(s%4)*1024} sc1"); issued.append(("W", s))
    def ldH(s):
        b = HB + (s % HD)*8
        for j, sr in enumerate(["s26","s28"]):
            a(f"buffer_load_dwordx4 v[{b+4*j}:{b+4*j+3}], v{12+s//4}, s[20:23], {sr} offen offset:{(s%4)*1024} sc1"); issued.append(("H", s))
    a(f"v_mov_b32 v20, {L_CNT+68}")
    lds_spin(a, "B_WWAIT", 20, 21, sleep=2)
    for s in range(WD): ldW(s)
    a("v_and_b32 v22, 31, v1"); a("v_lshlrev_b32 v19, 2, v22"); a("s_lshl_b32 s27, s37, 7"); a(f"s_add_u32 s27, s27, {F_H}"); a("v_add_u32 v19, s27, v19")
    a("v_cmp_gt_u32 vcc, 28, v22"); a("v_mov_b32 v20, 0"); a("v_mov_b32 v21, 1"); a("v_cndmask_b32 v20, v20, v21, vcc")
    a(f"v_mov_b32 v22, {L_CNT+72}")
    a("s_cmp_lg_u32 s36, 0"); a("s_cbranch_scc1 B_GWAIT")
    poll(a, "B_GPOLL", 20, 19, 20, 23, sleep=OPT.get("hsleep", 2))
    a("ds_write_b32 v22, v21")
    a("s_branch B_GGO")
    lds_spin(a, "B_GWAIT", 22, 23)
    a.label("B_GGO")
    stamp(a, 6)
    for s in range(HD): ldH(s)
    for s in range(28):
        last = max(i for i, o in enumerate(issued) if o[1] == s)
        a(f"s_waitcnt vmcnt({len(issued) - 1 - last})")
        bw = WB + (s % WD)*8; bh = HB + (s % HD)*8
        for nt2 in range(2):
            for rt in range(2):
                ac = AC + 16*(2*nt2+rt)
                c = "0" if s == 0 else f"v[{ac}:{ac+15}]"
                a(f"v_mfma_f32_32x32x16_bf16 v[{ac}:{ac+15}], v[{bw+4*nt2}:{bw+3+4*nt2}], v[{bh+4*rt}:{bh+3+4*rt}], {c}")
        if s + HD < 28: ldH(s + HD)
        if s + WD < 28: ldW(s + WD)
        if s == OPT.get("near", 14):
            def sig():
                a(f"v_mov_b32 v2, {L_CNT+64}"); a("v_mov_b32 v3, 1"); a("ds_write_b32 v2, v3")
            only_wave0(a, sig)
    stamp(a, 7)
    a("v_and_b32 v2, 31, v1"); a("v_and_b32 v3, 15, v1"); a("v_lshrrev_b32 v4, 5, v1"); a("v_xor_b32 v3, v3, v4")
    a("s_and_b32 s26, s36, 1"); a("s_lshl_b32 s26, s26, 14"); a("s_lshr_b32 s27, s36, 1"); a("s_lshl_b32 s27, s27, 16"); a("s_add_u32 s26, s26, s27"); a("s_add_u32 s26, s26, 32768")
    a("v_lshlrev_b32 v2, 8, v2"); a("v_add_u32 v2, s26, v2")
    for cq in range(8):
        a(f"v_xor_b32 v6, {2*cq}, v3"); a(f"v_lshl_add_u32 v{12+cq}, v6, 4, v2")
    for nt2 in range(2):
        for rt in range(2):
            ac = AC + 16*(2*nt2+rt)
            for q in range(4):
                a(f"ds_write_b128 v{12+4*nt2+q}, v[{ac+4*q}:{ac+4*q+3}] offset:{rt*32*256}")
    a("s_waitcnt lgkmcnt(0)")
    stamp(a, 8)
    a("s_branch K2_FINAL")

    a.label("B_CONV")
    a.barrier_hazard()
    a(f"s_setprio {OPT.get('cprio', 1)}")
    phaseB_common(a)
    a("s_sub_u32 s24, s36, 4")
    a("s_lshr_b32 s25, s24, 1")
    a("s_and_b32 s26, s24, 1")
    a("s_lshl_b32 s27, s2, 1"); a("s_add_u32 s27, s27, s25")
    a("s_mov_b32 s31, s93")
    UB = 200
    a("v_and_b32 v3, 15, v1"); a("v_lshrrev_b32 v4, 4, v1")
    a("v_lshlrev_b32 v7, 4, v1")
    a("s_lshl_b32 s17, s25, 16")
    a("s_add_u32 s18, s17, 16384")
    a("s_lshl_b32 s16, s26, 14"); a("s_add_u32 s16, s16, s17")
    stamp(a, 6)
    a("v_lshlrev_b32 v6, 2, v1"); a("v_add_u32 v6, s16, v6")
    for row in range(57): a(f"ds_write_b32 v6, v{PK+row} offset:{row*288}")
    for e in range(17): a(f"v_add_u32 v{EA+e}, s17, v{EA+e}")
    a(f"v_mov_b32 v45, {L_CNT+68}"); a("v_mov_b32 v46, 1")
    a("s_cmp_lg_u32 s36, 7"); a("s_cbranch_scc1 B_UWAIT")
    a("v_and_b32 v48, 31, v1"); a("v_lshlrev_b32 v48, 2, v48"); a("s_lshl_b32 s28, s37, 7"); a(f"s_add_u32 s28, s28, {F_A}"); a("v_add_u32 v48, s28, v48"); a("v_mov_b32 v49, 1")
    a("s_waitcnt vmcnt(0)")
    a("v_cmp_ne_u32 vcc, 1, v8"); a("s_nop 4"); a("s_cbranch_vccz B_UPOLL_OK")
    poll(a, "B_UPOLL", 20, 48, 49, 47, sleep=4)
    a("ds_write_b32 v45, v46")
    a("s_branch B_UGO")
    lds_spin(a, "B_UWAIT", 45, 47)
    a.label("B_UGO")
    a("s_lshl_b32 s28, s27, 12"); a("s_lshl_b32 s35, s26, 11"); a("s_add_u32 s28, s28, s35"); a(f"s_add_u32 s29, s28, {G.WS_UT}")
    a("buffer_load_dwordx4 v[144:147], v7, s[20:23], s29 offen sc1")
    a("buffer_load_dwordx4 v[148:151], v7, s[20:23], s29 offen offset:1024 sc1")
    a("v_mul_u32_u24 v44, 288, v3"); a("v_lshl_add_u32 v44, v4, 4, v44"); a("v_add_u32 v44, s16, v44")
    a("s_waitcnt lgkmcnt(0)")
    AF = 64; BF = 112; KA = 128
    for ks in range(4):
        a(f"ds_read_b128 v[{BF+4*ks}:{BF+4*ks+3}], v44 offset:{41*288 + ks*64}")
        for mt in range(3):
            b = AF + 4*(3*ks+mt)
            a(f"ds_read_b128 v[{b}:{b+3}], v44 offset:{mt*16*288 + ks*64}")
    a("s_waitcnt lgkmcnt(0)")
    for ks in range(4):
        for mt in range(3):
            b = AF + 4*(3*ks+mt)
            c = "0" if ks == 0 else f"v[{KA+4*mt}:{KA+4*mt+3}]"
            a(f"v_mfma_f32_16x16x32_bf16 v[{KA+4*mt}:{KA+4*mt+3}], v[{b}:{b+3}], v[{BF+4*ks}:{BF+4*ks+3}], {c}")
    def set_flag(off_sgpr_expr_fn):
        pass
    a(f"v_mov_b32 v45, {L_CNT}")
    a("s_lshl_b32 s28, s25, 2"); a("v_add_u32 v45, s28, v45")
    a("v_mov_b32 v46, 1")
    a("v_mul_u32_u24 v47, 48, v1"); a("v_add_u32 v47, s18, v47")
    labE = "K2_EVEN"; labX = "K2_EXPAND"
    a("s_cmp_eq_u32 s26, 0")
    a(f"s_cbranch_scc1 {labE}")
    for mt in range(3): a(f"ds_write_b128 v47, v[{KA+4*mt}:{KA+4*mt+3}] offset:{16*mt}")
    a("s_waitcnt lgkmcnt(0)")
    a("ds_write_b32 v45, v46")
    def spin(vaddr, off, lab):
        a.label(lab)
        a(f"ds_read_b32 v48, v{vaddr} offset:{off}")
        a("s_waitcnt lgkmcnt(0)")
        a("v_readfirstlane_b32 s28, v48")
        a("s_cmp_eq_u32 s28, 0")
        a(f"s_cbranch_scc1 {lab}")
    spin(45, 8, "K2_SP2")
    a(f"s_branch {labX}")
    a.label(labE)
    a.barrier_hazard()
    spin(45, 0, "K2_SP1")
    for mt in range(3): a(f"ds_read_b128 v[{64+4*mt}:{64+4*mt+3}], v47 offset:{16*mt}")
    a("v_lshrrev_b32 v48, 1, v4"); a("v_lshlrev_b32 v48, 7, v48")
    a("v_and_b32 v49, 1, v4"); a("v_lshl_add_u32 v48, v49, 2, v48"); a("v_lshl_add_u32 v48, v3, 3, v48")
    a("v_lshl_add_u32 v48, v48, 1, s17")
    a("v_lshlrev_b32 v49, 6, v4"); a("v_add_u32 v49, 256, v49")
    a("v_cmp_gt_u32 vcc, 2, v4")
    a("v_lshlrev_b32 v50, 2, v3"); a("v_lshlrev_b32 v51, 1, v3")
    a("v_cndmask_b32 v50, v51, v50, vcc")
    a("v_add_u32 v49, v49, v50"); a("v_lshl_add_u32 v49, v49, 1, s17")
    a("v_mov_b32 v50, 64"); a("v_mov_b32 v51, 4"); a("v_cndmask_b32 v50, v50, v51, vcc"); a("v_add_u32 v50, v49, v50")
    a("v_lshlrev_b32 v51, 6, v4"); a("v_add_u32 v51, v51, v3"); a("v_add_u32 v51, 512, v51")
    a("v_mov_b32 v52, 704"); a("v_cndmask_b32 v51, v52, v51, vcc")
    a("v_cmp_eq_u32 vcc, 32, v1"); a("v_mov_b32 v52, 640"); a("v_cndmask_b32 v51, v51, v52, vcc")
    a("v_lshl_add_u32 v51, v51, 1, s17")
    a("s_waitcnt lgkmcnt(0)")
    for i in range(12): a(f"v_add_f32 v{KA+i}, v{KA+i}, v{64+i}")
    a("v_cmp_eq_u32 vcc, 0, v1"); a("v_mov_b32 v52, 0"); a("v_mov_b32 v53, s31"); a("v_cndmask_b32 v52, v52, v53, vcc")
    a(f"v_add_f32 v{KA}, v{KA}, v52")
    for i in range(6): a(f"v_cvt_pk_bf16_f32 v{76+i}, v{KA+2*i}, v{KA+2*i+1}")
    a("ds_write_b64 v48, v[76:77]")
    a("ds_write_b32 v49, v78"); a("ds_write_b32 v50, v79")
    a("ds_write_b16 v51, v80"); a("ds_write_b16_d16_hi v51, v80 offset:32")
    a("ds_write_b16 v51, v81 offset:64"); a("ds_write_b16_d16_hi v51, v81 offset:96")
    a("v_mov_b32 v52, 0"); a("v_mov_b32 v53, s17"); a("ds_write_b16 v53, v52 offset:1282")
    a("s_waitcnt lgkmcnt(0)")
    a("ds_write_b32 v45, v46 offset:8")
    a.label(labX)
    a.barrier_hazard()
    DD = 88
    for e in range(17):
        a(f"ds_read_u16 v{DD+e}, v{EA+e}")
    a("s_lshl_b32 s28, s26, 11"); a("s_add_u32 s28, s28, s18")
    a("v_lshl_add_u32 v48, v1, 5, s28")
    a("v_mov_b32 v52, 0")
    a("v_and_b32 v49, 15, v1"); a("v_lshl_add_u32 v49, v49, 2, s18")
    a("s_waitcnt lgkmcnt(0)")
    for i in range(8): a(f"v_lshl_or_b32 v{64+i}, v{DD+2*i+1}, 16, v{DD+2*i}")
    for i in range(8): a(f"v_lshl_or_b32 v{76+i}, v{DD+2*i+2}, 16, v{DD+2*i+1}")
    a(f"ds_write_b128 v48, v[64:67] offset:{R0_OFF}"); a(f"ds_write_b128 v48, v[68:71] offset:{R0_OFF+16}")
    a(f"ds_write_b128 v48, v[76:79] offset:{R1_OFF}"); a(f"ds_write_b128 v48, v[80:83] offset:{R1_OFF+16}")
    a(f"ds_write_b32 v49, v52 offset:{R0_OFF+4096}"); a(f"ds_write_b32 v49, v52 offset:{R1_OFF+4096}")
    a("s_lshl_b32 s28, s25, 12"); a("s_lshl_b32 s35, s26, 11"); a("s_add_u32 s28, s28, s35"); a(f"s_add_u32 s28, s28, {L_U}"); a("v_add_u32 v49, s28, v7")
    a("s_waitcnt vmcnt(0)")
    a("ds_write_b128 v49, v[144:147]"); a("ds_write_b128 v49, v[148:151] offset:1024")
    a("s_waitcnt lgkmcnt(0)")
    a(f"v_mov_b32 v48, {L_CNT+16}")
    a("s_lshl_b32 s28, s24, 2"); a("v_add_u32 v49, s28, v48")
    a("s_xor_b32 s28, s28, 4"); a("v_add_u32 v50, s28, v48")
    a("ds_write_b32 v49, v46")
    spin(50, 0, "K2_SP3")
    stamp(a, 7)
    if OPT.get("dumpK"):
        a("s_lshl_b32 s28, s26, 11"); a("s_add_u32 s28, s28, s18")
        a("v_lshl_add_u32 v48, v1, 5, s28")
        a(f"ds_read_b128 v[64:67], v48 offset:{R0_OFF}"); a(f"ds_read_b128 v[68:71], v48 offset:{R0_OFF+16}")
        a(f"ds_read_b128 v[72:75], v48 offset:{R1_OFF}"); a(f"ds_read_b128 v[76:79], v48 offset:{R1_OFF+16}")
        a("s_waitcnt lgkmcnt(0)")
        a("v_lshlrev_b32 v48, 5, v1")
        a("s_lshl_b32 s28, s27, 13"); a("s_lshl_b32 s29, s26, 11"); a("s_add_u32 s28, s28, s29"); a(f"s_add_u32 s28, s28, {0x1000000}")
        a("s_mov_b32 s22, 0x2000000")
        a("buffer_store_dwordx4 v[64:67], v48, s[20:23], s28 offen"); a("buffer_store_dwordx4 v[68:71], v48, s[20:23], s28 offen offset:16")
        a("s_add_u32 s28, s28, 4096")
        a("buffer_store_dwordx4 v[72:75], v48, s[20:23], s28 offen"); a("buffer_store_dwordx4 v[76:79], v48, s[20:23], s28 offen offset:16")
        a("s_waitcnt vmcnt(0)")
    a("v_lshlrev_b32 v48, 3, v4"); a("v_sub_u32 v48, v48, v3"); a("v_add_u32 v48, 2047, v48"); a("v_and_b32 v48, -2, v48"); a("v_lshlrev_b32 v48, 1, v48")
    a("v_and_b32 v49, 1, v3"); a("v_xor_b32 v49, 1, v49"); a("v_mul_u32_u24 v49, 4160, v49")
    a("v_add_u32 v48, v48, v49")
    a(f"s_add_u32 s28, s18, {R0_OFF}"); a("s_lshl_b32 s29, s26, 5"); a("s_sub_u32 s28, s28, s29")
    a("v_add_u32 v48, s28, v48")
    BZ = 52
    for z in range(4): a(f"v_subrev_u32 v{BZ+z}, {32*(32*z+30)}, v48")
    FRG = 64
    ACC = 112
    for i in range(16): a(f"v_mov_b32 v{ACC+i}, 0")
    def fr(q): return FRG + 4*(q % 12)
    def fread(q):
        z = q >> 4; o = 8*(32*z + 30 - 2*q); b = fr(q)
        a(f"ds_read2_b32 v[{b}:{b+1}], v{BZ+z} offset0:{o} offset1:{o+1}")
        a(f"ds_read2_b32 v[{b+2}:{b+3}], v{BZ+z} offset0:{o+2} offset1:{o+3}")
    a("v_lshlrev_b32 v49, 8, v3"); a("v_lshl_add_u32 v49, v4, 4, v49"); a("s_lshl_b32 s28, s25, 12"); a(f"s_add_u32 s28, s28, {L_U}"); a("v_add_u32 v49, s28, v49")
    for h in range(4): a(f"ds_read_b128 v[{UB+4*h}:{UB+4*h+3}], v49 offset:{64*h}")
    for q in range(4): fread(q)
    for dl in range(16):
        a("s_waitcnt lgkmcnt(0)")
        if dl < 15:
            for q in range(4*(dl+1), 4*(dl+1)+4): fread(q)
        for h in (3, 2, 1, 0):
            for j in range(4):
                m = j - h
                q = 4*dl + m
                if q < 0: continue
                b = fr(q)
                a(f"v_mfma_f32_16x16x32_bf16 v[{ACC+4*j}:{ACC+4*j+3}], v[{b}:{b+3}], v[{UB+4*h}:{UB+4*h+3}], v[{ACC+4*j}:{ACC+4*j+3}]")
            if dl < 15:
                for i in range(4):
                    a(f"v_mov_b32_dpp v{UB+4*h+i}, v{UB+4*h+i} row_shr:1 row_mask:0xf bank_mask:0xf bound_ctrl:0")
    stamp(a, 8)
    a("v_lshlrev_b32 v48, 8, v3"); a("v_lshl_add_u32 v48, v4, 3, v48")
    a("s_lshl_b32 s28, s26, 5"); a("s_add_u32 s28, s28, s17"); a(f"s_add_u32 s28, s28, {SROW_OFF}"); a("v_add_u32 v48, s28, v48")
    for j in range(4):
        y = ACC + 4*j
        a(f"v_cvt_pk_bf16_f32 v{64+2*j}, v{y}, v{y+1}"); a(f"v_cvt_pk_bf16_f32 v{65+2*j}, v{y+2}, v{y+3}")
    for j in range(4): a(f"ds_write_b64 v48, v[{64+2*j}:{65+2*j}] offset:{64*j}")
    a("s_waitcnt lgkmcnt(0)")
    a(f"v_mov_b32 v48, {L_CNT+40}")
    a("s_lshl_b32 s28, s24, 2"); a("v_add_u32 v49, s28, v48")
    a("s_xor_b32 s28, s28, 4"); a("v_add_u32 v50, s28, v48")
    a("ds_write_b32 v49, v46")
    spin(50, 0, "K2_SP5")
    a("s_lshl_b32 s28, s26, 11"); a("s_add_u32 s29, s28, s17"); a(f"s_add_u32 s29, s29, {SROW_OFF}")
    a("v_add_u32 v48, s29, v7")
    a("ds_read_b128 v[64:67], v48"); a("ds_read_b128 v[68:71], v48 offset:1024")
    a("s_lshl_b32 s29, s27, 12"); a("s_add_u32 s29, s29, s28"); a(f"s_add_u32 s29, s29, {G.WS_ST}")
    a("s_waitcnt lgkmcnt(0)")
    for d in range(8): a(f"v_min_u32 v{64+d}, -2, v{64+d}")
    a("buffer_store_dwordx4 v[64:67], v7, s[20:23], s29 offen sc1")
    a("buffer_store_dwordx4 v[68:71], v7, s[20:23], s29 offen offset:1024 sc1")
    stamp(a, 9)
    a(f"v_mov_b32 v50, {L_CNT+64}")
    a("v_and_b32 v48, 31, v1"); a("v_lshlrev_b32 v48, 2, v48"); a("s_lshl_b32 s28, s3, 7"); a(f"s_add_u32 s28, s28, {F_P}"); a("v_add_u32 v48, s28, v48")
    a.label("B_PPOLL")
    a("buffer_load_dword v49, v48, s[20:23], 0 offen sc1"); a("s_waitcnt vmcnt(0)")
    a("v_cmp_eq_u32 vcc, 0, v49"); a("s_nop 4"); a("s_cbranch_vccz B_PPOLL_OK"); a("s_sleep 8"); a("s_branch B_PPOLL")
    a.label("B_PPOLL_OK")
    lds_spin(a, "B_SWAIT", 50, 49, sleep=4)
    stamp(a, 10)
    a("v_lshrrev_b32 v48, 3, v1"); a("v_and_b32 v49, 7, v1")
    a("v_lshlrev_b32 v50, 12, v48"); a("v_lshl_add_u32 v50, v49, 4, v50")
    a("s_lshl_b32 s28, s3, 18"); a("s_lshl_b32 s29, s24, 16"); a("s_add_u32 s28, s28, s29")
    a("s_lshl_b32 s29, s39, 7"); a("s_add_u32 s28, s28, s29"); a(f"s_add_u32 s28, s28, {G.WS_ST}")
    a("s_add_u32 s29, s28, 32768")
    a(f"v_mul_u32_u24 v51, {STL_PITCH}, v48"); a("v_lshl_add_u32 v51, v49, 4, v51")
    a(f"s_mul_i32 s30, s24, {16*STL_PITCH}"); a(f"s_add_u32 s30, s30, {L_STL}"); a("v_add_u32 v51, s30, v51")
    a.label("B_SLOAD")
    a("buffer_load_dwordx4 v[64:67], v50, s[20:23], s28 offen sc1")
    a("buffer_load_dwordx4 v[68:71], v50, s[20:23], s29 offen sc1")
    a("s_waitcnt vmcnt(0)")
    a("v_max3_u32 v72, v64, v65, v66"); a("v_max3_u32 v73, v67, v68, v69"); a("v_max3_u32 v72, v72, v70, v71"); a("v_max_u32 v72, v72, v73")
    a("v_cmp_eq_u32 vcc, -1, v72")
    a("s_nop 4")
    a("s_cbranch_vccz B_SLOADED")
    a("s_sleep 8")
    a("s_branch B_SLOAD")
    a.label("B_SLOADED")
    a("ds_write_b128 v51, v[64:67]"); a(f"ds_write_b128 v51, v[68:71] offset:{8*STL_PITCH}")
    a("s_waitcnt lgkmcnt(0)")
    stamp(a, 11)
    a.label("K2_FINAL")
    a.barrier_hazard()
    a("s_barrier")
    a("v_lshrrev_b32 v2, 3, v1"); a("s_lshl_b32 s28, s36, 3"); a("v_add_u32 v2, s28, v2")
    a("v_and_b32 v3, 7, v1")
    a("v_and_b32 v4, 15, v2"); a("v_lshlrev_b32 v6, 1, v3"); a("v_xor_b32 v4, v4, v6"); a("v_lshlrev_b32 v4, 4, v4"); a("v_lshl_add_u32 v4, v2, 8, v4")
    a("v_xor_b32 v7, 16, v4")
    a("v_add_u32 v12, 65536, v4"); a("v_add_u32 v13, 65536, v7")
    for w in range(4):
        off = 32768 + (w & 1)*16384
        a(f"ds_read_b128 v[{16+8*w}:{19+8*w}], v{4 if w < 2 else 12} offset:{off}")
        a(f"ds_read_b128 v[{20+8*w}:{23+8*w}], v{7 if w < 2 else 13} offset:{off}")
    a(f"v_mul_u32_u24 v6, {8*STL_PITCH}, v3"); a("v_lshl_add_u32 v6, v2, 1, v6"); a(f"v_add_u32 v6, {L_STL}, v6")
    for e in range(8):
        a(f"ds_read_u16 v{48+e}, v6 offset:{e*STL_PITCH}")
    a("s_waitcnt lgkmcnt(0)")
    for e in range(8): a(f"v_add_f32 v{16+e}, v{16+e}, v{24+e}")
    for e in range(8): a(f"v_add_f32 v{32+e}, v{32+e}, v{40+e}")
    for e in range(8): a(f"v_add_f32 v{16+e}, v{16+e}, v{32+e}")
    for d in range(4): a(f"v_cvt_pk_bf16_f32 v{24+d}, v{16+2*d}, v{17+2*d}")
    for d in range(4):
        a(f"v_lshlrev_b32 v{16+2*d}, 16, v{24+d}"); a(f"v_and_b32 v{17+2*d}, 0xffff0000, v{24+d}")
    for e in range(8): a(f"v_mul_f32 v{24+e}, {f2u(-1.4426950408889634):#x}, v{16+e}")
    for e in range(8): a(f"v_exp_f32 v{24+e}, v{24+e}")
    for e in range(8): a(f"v_add_f32 v{24+e}, 1.0, v{24+e}")
    for e in range(8): a(f"v_rcp_f32 v{24+e}, v{24+e}")
    for e in range(8): a(f"v_mul_f32 v{16+e}, v{16+e}, v{24+e}")
    for d in range(4): a(f"v_cvt_pk_bf16_f32 v{24+d}, v{16+2*d}, v{17+2*d}")
    for d in range(4):
        a(f"v_lshlrev_b32 v{16+2*d}, 16, v{24+d}"); a(f"v_and_b32 v{17+2*d}, 0xffff0000, v{24+d}")
        a(f"v_lshlrev_b32 v{32+2*d}, 16, v{48+2*d}"); a(f"v_lshlrev_b32 v{33+2*d}, 16, v{49+2*d}")
    for e in range(8): a(f"v_mul_f32 v{16+e}, v{16+e}, v{32+e}")
    for d in range(4): a(f"v_cvt_pk_bf16_f32 v{24+d}, v{16+2*d}, v{17+2*d}")
    a("s_waitcnt vmcnt(0)")
    for d in range(4):
        a(f"v_lshlrev_b32 v{16+2*d}, 16, v{24+d}"); a(f"v_and_b32 v{17+2*d}, 0xffff0000, v{24+d}")
        a(f"v_lshlrev_b32 v{32+2*d}, 16, v{252+d}"); a(f"v_and_b32 v{33+2*d}, 0xffff0000, v{252+d}")
    for e in range(8): a(f"v_add_f32 v{16+e}, v{16+e}, v{32+e}")
    for d in range(4): a(f"v_cvt_pk_bf16_f32 v{24+d}, v{16+2*d}, v{17+2*d}")
    a("buffer_store_dwordx4 v[24:27], v5, s[12:15], s34 offen")
    stamp(a, 12)
    stamp_store(a, 13, 0)


def gen_mk():
    a = Asm()
    a("s_cmp_ge_u32 s2, 256")
    a("s_cbranch_scc1 MK_END")
    stamp(a, 0)
    a("s_getpc_b64 s[94:95]")
    a.label("MK_PC")
    a("s_load_dwordx2 s[4:5], s[0:1], 0")
    a("s_load_dwordx4 s[28:31], s[0:1], 80")
    a("s_load_dwordx2 s[6:7], s[0:1], 96")
    a("s_load_dwordx4 s[32:35], s[0:1], 112")
    a("s_load_dwordx16 s[40:55], s[0:1], 0")
    a("s_load_dwordx2 s[56:57], s[0:1], 64")
    a("s_load_dwordx2 s[96:97], s[0:1], 104")
    a("v_lshrrev_b32 v1, 6, v0")
    a("v_readfirstlane_b32 s36, v1")
    a("v_and_b32 v1, 63, v0")
    a("s_and_b32 s37, s2, 7")
    a("s_lshr_b32 s38, s2, 3")
    if OPT.get("ipf", 1):
        a("s_lshl_b32 s92, s38, 3"); a("s_add_u32 s92, s92, s36"); a("s_lshl_b32 s92, s92, 10")
        labi = a.newlabel("MK_NI")
        a("s_cmp_ge_u32 s92, MK_CODE_END-MK_PC"); a(f"s_cbranch_scc1 {labi}")
        a.skip_begin()
        a("s_min_u32 s92, s92, MK_CODE_END-MK_PC-1024")
        a("v_lshlrev_b32 v2, 4, v1"); a("v_add_u32 v2, s92, v2")
        a("global_load_dwordx4 v[240:243], v2, s[94:95]")
        a.skip_end()
        a.label(labi)
    a("s_getreg_b32 s90, hwreg(HW_REG_XCC_ID)"); a("s_and_b32 s90, s90, 15"); a("s_add_u32 s90, s90, 1")
    a(f"v_and_b32 v2, 31, v1"); a("v_lshlrev_b32 v2, 2, v2"); a(f"v_add_u32 v2, {L_CNT}, v2"); a("v_mov_b32 v3, 0"); a("ds_write_b32 v2, v3")
    a("s_waitcnt lgkmcnt(0)")
    a("s_barrier")
    srd(a, 8, 4, 5, 2048*512*2)
    labp = a.newlabel("MK_NP")
    a("s_cmp_lt_u32 s36, 4"); a(f"s_cbranch_scc1 {labp}")
    a.skip_begin()
    a("s_bfe_u32 s58, s36, 0x10001"); a("s_lshl_b32 s59, s2, 1"); a("s_add_u32 s58, s58, s59"); a("s_lshl_b32 s58, s58, 8")
    a("s_and_b32 s59, s36, 1"); a("s_lshl_b32 s59, s59, 7"); a("s_add_u32 s58, s58, s59")
    a("v_lshl_add_u32 v2, v1, 1, s58")
    for i, base in enumerate((42, 44, 46, 48, 50, 52)):
        a(f"global_load_ushort v{PRM+i}, v2, s[{base}:{base+1}]")
    a("s_lshl_b32 s58, s2, 2")
    a("s_load_dword s100, s[54:55], s58")
    a("s_load_dword s101, s[56:57], s58")
    a.skip_end()
    a.label(labp)
    a("s_lshl_b32 s53, s37, 5"); a("s_add_u32 s53, s53, s38")
    srd(a, 12, 28, 29, 512*1792*2)
    srd(a, 16, 30, 31, 512*1792*2)
    srd(a, 20, 34, 35, G.WS_END)
    a("s_cmp_ge_u32 s38, 28")
    a("s_cbranch_scc1 MK_AUX")
    phaseA_gemm1(a)
    a.label("MK_AUX")
    a.barrier_hazard()
    phaseA_aux(a)
    phaseB(a)
    a.label("MK_END")
    a("s_endpgm")
    a.label("MK_CODE_END")
    return a, LDS_TOTAL
```

```python
from asmlib import Asm
import gen as G
from gen import srd, bf16r, f2u, stamp, stamp_store, OPT
import gen2
from gen2 import cmul, STL_PITCH, R0_OFF, R1_OFF, SROW_OFF
L_U = 131072
L_STL = 139264
L_CNT = 150080

XSLOT = 32768
WBASE = 3*XSLOT
WSLOT = 16384
L_PCS = WBASE + 3*WSLOT
L_STAT = L_PCS + 1024
L_CSF = L_PCS + 2048
L_MODE = L_CSF + 512
LDS_TOTAL = L_CNT + 128
assert L_MODE + 64 <= L_CNT
WS_PCS = G.WS_CS
F_H = G.WS_FLAG
F_A = G.WS_FLAG + 1024
F_R = G.WS_FLAG + 2048
F_P = G.WS_FLAG + 3072
F_C = G.WS_FLAG + 4096
FLAG_BYTES = 8192

def allreduce_ops(regs, t):
    L = []
    for mod in ("quad_perm:[1,0,3,2]", "quad_perm:[2,3,0,1]", "row_half_mirror", "row_mirror"):
        for r in regs: L.append(f"v_add_f32_dpp v{r}, v{r}, v{r} {mod} row_mask:0xf bank_mask:0xf")
    for sw in ("v_permlane16_swap_b32", "v_permlane32_swap_b32"):
        for k, r in enumerate(regs): L.append(f"v_mov_b32 v{t+k}, v{r}")
        for k, r in enumerate(regs): L.append(f"{sw} v{r}, v{t+k}")
        for k, r in enumerate(regs): L.append(f"v_add_f32 v{r}, v{r}, v{t+k}")
    return L

def row_stats_ops(raw, t, soff=0):
    L = []
    for d in range(4):
        L += [f"v_lshlrev_b32 v{t+2*d}, 16, v{raw+d}", f"v_and_b32 v{t+2*d+1}, 0xffff0000, v{raw+d}"]
    L += [f"v_pk_add_f32 v[{t+8}:{t+9}], v[{t}:{t+1}], v[{t+2}:{t+3}]",
          f"v_pk_add_f32 v[{t+10}:{t+11}], v[{t+4}:{t+5}], v[{t+6}:{t+7}]",
          f"v_pk_add_f32 v[{t+8}:{t+9}], v[{t+8}:{t+9}], v[{t+10}:{t+11}]",
          f"v_add_f32 v{t+8}, v{t+8}, v{t+9}"]
    L += allreduce_ops([t+8], t+9)
    L.append(f"v_mul_f32 v{t+8}, {f2u(1/512):#x}, v{t+8}")
    for k in range(8): L.append(f"v_sub_f32 v{t+k}, v{t+k}, v{t+8}")
    L += [f"v_mul_f32 v{t+9}, v{t}, v{t}", f"v_mul_f32 v{t+10}, v{t+1}, v{t+1}"]
    for k in range(2, 8): L.append(f"v_fmac_f32 v{t+9+(k&1)}, v{t+k}, v{t+k}")
    L.append(f"v_add_f32 v{t+9}, v{t+9}, v{t+10}")
    L += allreduce_ops([t+9], t+10)
    L.append(f"v_mul_f32 v{t+9}, {f2u(1/512):#x}, v{t+9}")
    def r16(x): return [f"v_cvt_pk_bf16_f32 v{x}, v{x}, v{x}", f"v_lshlrev_b32 v{x}, 16, v{x}"]
    L += r16(t+8) + r16(t+9)
    L.append(f"v_add_f32 v{t+9}, {f2u(1e-5):#x}, v{t+9}")
    L += r16(t+9)
    L.append(f"v_sqrt_f32 v{t+9}, v{t+9}")
    L += r16(t+9)
    L += [f"v_rcp_f32 v{t+9}, v{t+9}", f"v_sub_f32 v{t+8}, 0, v{t+8}", f"v_mov_b32 v{t+10}, 0"]
    groups = [[x] for x in L]
    groups.append(["s_mov_b64 exec, 1", f"buffer_store_dwordx2 v[{t+8}:{t+9}], v{t+10}, s[20:23], s52 offen offset:{soff} sc1", "s_mov_b64 exec, -1"])
    return groups

def set_flag_byte(a, val):
    a(f"v_mov_b32 v154, {val}"); a("v_mov_b32 v219, 0")
    a("s_mov_b64 exec, 1")
    a("buffer_store_byte v154, v219, s[24:27], s53 offen sc1")
    a("s_mov_b64 exec, -1")

def set_flag_dword(a, soff):
    a("v_mov_b32 v154, 1"); a("v_mov_b32 v219, 0")
    a("s_mov_b64 exec, 1")
    a(f"buffer_store_dword v154, v219, s[20:23], {soff} offen sc1")
    a("s_mov_b64 exec, -1")

def poll(a, lab, srdn, vaddr, vmask, vt, sleep=2):
    a.label(lab)
    a(f"buffer_load_dword v{vt}, v{vaddr}, s[{srdn}:{srdn+3}], 0 offen sc1")
    a("s_waitcnt vmcnt(0)")
    a(f"v_and_b32 v{vt}, v{vt}, v{vmask}")
    a(f"v_cmp_ne_u32 vcc, v{vt}, v{vmask}")
    a("s_nop 4")
    a(f"s_cbranch_vccz {lab}_OK")
    a(f"s_sleep {sleep}")
    a(f"s_branch {lab}")
    a.label(lab + "_OK")

def lds_spin(a, lab, vaddr, vt, sleep=1):
    a.label(lab)
    a(f"ds_read_b32 v{vt}, v{vaddr}")
    a("s_waitcnt lgkmcnt(0)")
    a(f"v_readfirstlane_b32 s92, v{vt}")
    a("s_cmp_eq_u32 s92, 0")
    a("s_cbranch_scc0 " + lab + "_OK")
    a(f"s_sleep {sleep}")
    a(f"s_branch {lab}")
    a.label(lab + "_OK")

def only_wave0(a, fn):
    lab = a.newlabel("W0")
    a("s_cmp_lg_u32 s36, 0"); a(f"s_cbranch_scc1 {lab}")
    a.skip_begin(); fn(); a._skip = a._skip; a.skip_end()
    a.label(lab)


def publish_ready(a, gemm, ta=219, tb=154):
    a("s_lshl_b32 s41, s37, 7"); a("s_lshl_b32 s46, s38, 2"); a("s_add_u32 s41, s41, s46"); a(f"s_add_u32 s41, s41, {F_R}")
    a(f"v_mov_b32 v{ta}, s41")
    if gemm:
        a("s_lshl_b32 s41, s40, 7"); a("s_lshl_b32 s46, s39, 2"); a("s_add_u32 s41, s41, s46"); a(f"s_add_u32 s41, s41, {F_C}")
        a(f"v_mov_b32 v{tb}, s41"); a(f"v_cmp_eq_u32 vcc, 1, v1"); a(f"v_cndmask_b32 v{ta}, v{ta}, v{tb}, vcc")
    a("s_lshr_b32 s41, s2, 5"); a("s_lshl_b32 s41, s41, 7"); a("s_and_b32 s46, s2, 31"); a("s_lshl_b32 s46, s46, 2"); a("s_add_u32 s41, s41, s46"); a(f"s_add_u32 s41, s41, {F_P}")
    a(f"v_mov_b32 v{tb}, s41"); a(f"v_cmp_eq_u32 vcc, 2, v1"); a(f"v_cndmask_b32 v{ta}, v{ta}, v{tb}, vcc")
    a(f"v_mov_b32 v{tb}, 1")
    a("s_mov_b64 exec, 7")
    a(f"buffer_store_dword v{tb}, v{ta}, s[20:23], 0 offen sc1")
    a("s_mov_b64 exec, -1")

def init_check(a, lab, vval, tc=158):
    a.label(lab)
    a(f"v_readfirstlane_b32 s41, v{vval}")
    a("s_cmp_lg_u32 s41, 0"); a(f"s_cbranch_scc1 {lab}_OK")
    a("s_sleep 8")
    a(f"v_mov_b32 v{tc}, 0")
    a(f"buffer_load_dword v{vval}, v{tc}, s[24:27], 0 offen sc1")
    a("s_waitcnt vmcnt(0)")
    a(f"s_branch {lab}")
    a.label(lab + "_OK")

def flags_poll_setup(a, vaddr):
    a(f"v_and_b32 v{vaddr}, 31, v1"); a(f"v_lshlrev_b32 v{vaddr}, 2, v{vaddr}")
    a("s_lshl_b32 s41, s39, 7"); a(f"s_add_u32 s41, s41, {F_R}"); a("s_lshl_b32 s46, s40, 7"); a(f"s_add_u32 s46, s46, {F_C}")
    a("v_mov_b32 v158, s41"); a("v_mov_b32 v159, s46")
    a("v_cmp_gt_u32 vcc, 32, v1"); a("v_cndmask_b32 v158, v159, v158, vcc")
    a(f"v_add_u32 v{vaddr}, v{vaddr}, v158")
    a("v_cmp_lt_u32 vcc, 39, v1"); a("v_mov_b32 v158, s41"); a(f"v_cndmask_b32 v{vaddr}, v{vaddr}, v158, vcc")

def flags_check(a, lab, vaddr, vval):
    a.label(lab)
    a(f"v_cmp_eq_u32 vcc, 0, v{vval}")
    a("s_nop 4")
    a(f"s_cbranch_vccz {lab}_OK")
    a("s_sleep 8")
    a(f"buffer_load_dword v{vval}, v{vaddr}, s[20:23], 0 offen sc1")
    a("s_waitcnt vmcnt(0)")
    a(f"s_branch {lab}")
    a.label(lab + "_OK")


PK = 160
EA = 228
PRM = 246
def kgen_ops():
    L = []
    A = L.append
    A("s_bfe_u32 s92, s36, 0x10001"); A("s_lshl_b32 s92, s92, 4")
    A("s_lshr_b32 s94, s100, s92"); A("s_lshl_b32 s94, s94, 16")
    A("s_lshr_b32 s93, s101, s92"); A("s_lshl_b32 s93, s93, 16")
    for i in range(6): A(f"v_lshlrev_b32 v{12+i}, 16, v{PRM+i}")
    A(f"v_mov_b32 v18, {G.LOG2E:#x}"); A("v_mul_f32 v18, s94, v18"); A("v_exp_f32 v18, v18")
    A("v_cvt_pk_bf16_f32 v18, v18, v18"); A("v_lshlrev_b32 v18, 16, v18")
    A("v_mul_f32 v12, v18, v12"); A("v_mul_f32 v13, v18, v13"); A("v_mul_f32 v14, v18, v14"); A("v_mul_f32 v15, v18, v15")
    A(f"v_mul_f32 v12, {G.LOG2E:#x}, v12"); A(f"v_mul_f32 v13, {f2u(0.15915494309189535):#x}, v13")
    F = lambda c: 20 + 2*(c-1)
    W1 = 34; V1 = 36; W2 = 38; V2 = 40
    cx = [(F(1), 1, 44), (W1, 8, 46), (V1, 128, 48)]
    for d, m, t in cx:
        if m != 1: A(f"v_mul_f32 v{t}, {f2u(float(m)):#x}, v12"); A(f"v_mul_f32 v{t+1}, {f2u(float(m)):#x}, v13")
        else: A(f"v_mov_b32 v{t}, v12"); A(f"v_mov_b32 v{t+1}, v13")
    for d, m, t in cx: A(f"v_fract_f32 v{t+1}, v{t+1}")
    for d, m, t in cx: A(f"v_exp_f32 v{t}, v{t}")
    for d, m, t in cx: A(f"v_cos_f32 v{d}, v{t+1}")
    for d, m, t in cx: A(f"v_sin_f32 v{d+1}, v{t+1}")
    for d, m, t in cx: A(f"v_mul_f32 v{d}, v{d}, v{t}"); A(f"v_mul_f32 v{d+1}, v{d+1}, v{t}")
    def cm(tasks):
        if OPT.get("pkc"):
            pairs = [cmul(None, d, x, y, 50 + 2*(k % 6)) for k, (d, x, y) in enumerate(tasks)]
            for i1, _ in pairs: A(i1)
            for _, i2 in pairs: A(i2)
        else:
            T = [(50 + 2*(k % 6)) for k in range(len(tasks))]
            for t, (d, x, y) in zip(T, tasks): A(f"v_mul_f32 v{t}, v{x}, v{y}")
            for t, (d, x, y) in zip(T, tasks): A(f"v_mul_f32 v{t+1}, v{x}, v{y+1}")
            for t, (d, x, y) in zip(T, tasks): A(f"v_fma_f32 v{d}, -v{x+1}, v{y+1}, v{t}")
            for t, (d, x, y) in zip(T, tasks): A(f"v_fma_f32 v{d+1}, v{x+1}, v{y}, v{t+1}")
    Y = lambda b: 64 + 2*b
    Gq = lambda q: 96 + 2*q
    def put(row, reg, neg): A(f"v_cvt_pk_bf16_f32 v{PK+row}, v{reg}, {'-' if neg else ''}v{reg+1}")
    A(f"v_mov_b32 v{Y(0)}, 1.0"); A(f"v_mov_b32 v{Y(0)+1}, 0"); A(f"v_mov_b32 v{Y(1)}, v{W1}"); A(f"v_mov_b32 v{Y(1)+1}, v{W1+1}")
    cm([(Gq(0), 16, 14), (F(2), F(1), F(1)), (W2, W1, W1), (V2, V1, V1)])
    cm([(Gq(1), Gq(0), V1), (F(3), F(2), F(1)), (F(4), F(2), F(2)), (Y(2), Y(0), W2), (Y(3), Y(1), W2)])
    cm([(Gq(2), Gq(0), V2), (Gq(3), Gq(1), V2), (F(5), F(4), F(1)), (F(6), F(4), F(2)), (F(7), F(4), F(3)), (Y(4), Y(2), W2)])
    for b in range(4): put(41+b, Y(b), False)
    put(0, Gq(0), True); put(8, Gq(1), True); put(16, Gq(2), True); put(20, Gq(3), True)
    for k in range(2, 8):
        t = [(Gq(2*k), Gq(2*k-2), V2), (Gq(2*k+1), Gq(2*k-1), V2), (Y(2*k+1), Y(2*k-1), W2)]
        if 2*k+2 <= 15: t.append((Y(2*k+2), Y(2*k), W2))
        cm(t)
    cm([(Gq(16), Gq(14), V2)])
    for b in range(4, 16): put(41+b, Y(b), False)
    for q in range(4): put(24+2*q, Gq(4+q), True)
    for q in range(8): put(32+q, Gq(8+q), True)
    put(40, Gq(16), True)
    ex = []
    for c in range(1, 8): ex.append((c, 0, c)); ex.append((8+c, 1, c))
    for c in range(1, 4): ex.append((16+c, 2, 2*c)); ex.append((20+c, 3, 2*c))
    for q in range(4): ex.append((24+2*q+1, 4+q, 4))
    XT = 130
    for i in range(0, len(ex), 6):
        grp = ex[i:i+6]
        cm([(XT+2*k, Gq(g), F(c)) for k, (row, g, c) in enumerate(grp)])
        for k, (row, g, c) in enumerate(grp): put(row, XT+2*k, True)
    A("s_and_b32 s92, s36, 1"); A("s_lshl_b32 s92, s92, 10")
    A("v_lshlrev_b32 v44, 4, v1"); A("v_add_u32 v44, s92, v44"); A("v_sub_u32 v44, 2047, v44")
    for e in range(17): A(f"v_subrev_u32 v{EA+e}, {e}, v44")
    for e in range(0, 17, 2):
        e2 = min(e+1, 16); t = 46 + 2*((e//2) & 3)
        A(f"v_cvt_f32_i32 v{t}, v{EA+e}"); A(f"v_cvt_f32_i32 v{t+1}, v{EA+e2}")
        A(f"v_cvt_pk_bf16_f32 v{t}, v{t}, v{t+1}")
        A(f"v_lshrrev_b32 v{t+1}, 16, v{t}"); A(f"v_and_b32 v{t}, 0xffff, v{t}")
        A(f"v_subrev_u32 v{t}, 17024, v{t}"); A(f"v_subrev_u32 v{t+1}, 17024, v{t+1}")
        A([f"v_cmp_gt_i32 vcc, 128, v{EA+e}", "s_nop 1", f"v_cndmask_b32 v{EA+e}, v{t}, v{EA+e}, vcc"])
        if e2 != e: A([f"v_cmp_gt_i32 vcc, 128, v{EA+e2}", "s_nop 1", f"v_cndmask_b32 v{EA+e2}, v{t+1}, v{EA+e2}, vcc"])
    A([f"v_cmp_gt_i32 vcc, 0, v{EA+16}", "v_mov_b32 v46, 641", "s_nop 0", f"v_cndmask_b32 v{EA+16}, v{EA+16}, v46, vcc"])
    for e in range(17): A(f"v_lshlrev_b32 v{EA+e}, 1, v{EA+e}")
    return L

def emit_ops(a, ops):
    for o in ops:
        if isinstance(o, list):
            for i in o: a(i)
        else: a(o)

def row_stats2_ops(raws, t):
    L = []
    for r, raw in enumerate(raws):
        b = t + 12*r
        for d in range(4): L += [f"v_lshlrev_b32 v{b+2*d}, 16, v{raw+d}", f"v_and_b32 v{b+2*d+1}, 0xffff0000, v{raw+d}"]
    for r in range(2):
        b = t + 12*r
        L += [f"v_pk_add_f32 v[{b+8}:{b+9}], v[{b}:{b+1}], v[{b+2}:{b+3}]", f"v_pk_add_f32 v[{b+10}:{b+11}], v[{b+4}:{b+5}], v[{b+6}:{b+7}]"]
    for r in range(2):
        b = t + 12*r
        L += [f"v_pk_add_f32 v[{b+8}:{b+9}], v[{b+8}:{b+9}], v[{b+10}:{b+11}]", f"v_add_f32 v{b+8}, v{b+8}, v{b+9}"]
    def allred(off, toff):
        regs = [t + off, t + 12 + off]
        for mod in ("quad_perm:[1,0,3,2]", "quad_perm:[2,3,0,1]", "row_half_mirror", "row_mirror"):
            for x in regs: L.append(f"v_add_f32_dpp v{x}, v{x}, v{x} {mod} row_mask:0xf bank_mask:0xf")
        for sw in ("v_permlane16_swap_b32", "v_permlane32_swap_b32"):
            for x in regs: L.append(f"v_mov_b32 v{x - off + toff}, v{x}")
            for x in regs: L.append(f"{sw} v{x}, v{x - off + toff}")
            for x in regs: L.append(f"v_add_f32 v{x}, v{x}, v{x - off + toff}")
    allred(8, 9)
    for r in range(2): L.append(f"v_mul_f32 v{t+12*r+8}, {f2u(1/512):#x}, v{t+12*r+8}")
    for r in range(2):
        b = t + 12*r
        for k in range(8): L.append(f"v_sub_f32 v{b+k}, v{b+k}, v{b+8}")
    for r in range(2):
        b = t + 12*r
        L += [f"v_mul_f32 v{b+9}, v{b}, v{b}", f"v_mul_f32 v{b+10}, v{b+1}, v{b+1}"]
    for k in range(2, 8):
        for r in range(2):
            b = t + 12*r
            L.append(f"v_fmac_f32 v{b+9+(k&1)}, v{b+k}, v{b+k}")
    for r in range(2): L.append(f"v_add_f32 v{t+12*r+9}, v{t+12*r+9}, v{t+12*r+10}")
    allred(9, 10)
    def both(fmt):
        for r in range(2): L.append(fmt.format(m=t+12*r+8, v=t+12*r+9))
    both(f"v_mul_f32 v{{v}}, {f2u(1/512):#x}, v{{v}}")
    both("v_cvt_pk_bf16_f32 v{m}, v{m}, v{m}"); both("v_cvt_pk_bf16_f32 v{v}, v{v}, v{v}")
    both("v_lshlrev_b32 v{m}, 16, v{m}"); both("v_lshlrev_b32 v{v}, 16, v{v}")
    both(f"v_add_f32 v{{v}}, {f2u(1e-5):#x}, v{{v}}")
    both("v_cvt_pk_bf16_f32 v{v}, v{v}, v{v}"); both("v_lshlrev_b32 v{v}, 16, v{v}")
    both("v_sqrt_f32 v{v}, v{v}")
    both("v_cvt_pk_bf16_f32 v{v}, v{v}, v{v}"); both("v_lshlrev_b32 v{v}, 16, v{v}")
    both("v_rcp_f32 v{v}, v{v}"); both("v_sub_f32 v{m}, 0, v{m}")
    L += [f"v_mov_b32 v{t+10}, v{t+12+8}", f"v_mov_b32 v{t+11}, v{t+12+9}", f"v_mov_b32 v{t+7}, 0"]
    L[-1] = f"v_mov_b32 v{t+7}, s52"
    L.append(["s_mov_b64 exec, 1", f"ds_write_b128 v{t+7}, v[{t+8}:{t+11}]", "s_mov_b64 exec, -1"])
    return L

def only_wave(a, w, fn):
    lab = a.newlabel("W")
    a(f"s_cmp_lg_u32 s36, {w}"); a(f"s_cbranch_scc1 {lab}")
    a.skip_begin(); fn(); a.skip_end()
    a.label(lab)


def either(a, w, fn1, fn2):
    l1 = a.newlabel("E"); l2 = a.newlabel("E")
    a(f"s_cmp_lg_u32 s36, {w}"); a(f"s_cbranch_scc1 {l1}")
    fn1()
    a(f"s_branch {l2}")
    a.label(l1)
    fn2()
    a.label(l2)

def dma_setup(a, wq):
    a("s_lshl_b32 s43, s39, 18"); a(f"s_lshl_b32 s41, {wq}, 16"); a("s_add_u32 s43, s43, s41")
    a(f"s_mul_i32 s42, {wq}, 57344"); a("s_lshl_b32 s41, s40, 7"); a("s_add_u32 s42, s42, s41")
    a(f"s_lshl_b32 s44, {wq}, 13")
    a(f"s_lshl_b32 s45, {wq}, 11"); a(f"s_add_u32 s45, s45, {WBASE}")

def dma(a, j, fill=None):
    fill = list(fill or [])
    per = (len(fill) + 11)//12
    def f():
        nonlocal fill
        emit_ops(a, fill[:per]); fill = fill[per:]
    sl = j % 3
    a(f"s_add_u32 s41, s39, {j}"); a("s_and_b32 s41, s41, 7"); a("s_lshl_b32 s55, s41, 7"); a("s_add_u32 s55, s55, s43")
    a("s_mul_i32 s41, s41, 229376"); a("s_add_u32 s41, s41, s42"); a("s_add_u32 s49, s41, 28672")
    for gu in range(2):
        for z in range(2):
            a(f"s_add_u32 m0, s45, {sl*WSLOT + gu*8192 + z*1024}")
            a("s_nop 0")
            a(f"buffer_load_dwordx4 v4, s[{12+4*gu}:{15+4*gu}], s{41 if z == 0 else 49} offen lds")
            f()
    for z in range(8):
        a(f"s_add_u32 m0, s44, {sl*XSLOT + z*1024}"); a(f"s_add_u32 s46, s55, {z*8192}")
        a(f"buffer_load_dwordx4 v{2 + (z&1)}, s[8:11], s46 offen lds")
        f()
    emit_ops(a, fill)

def dma_voff(a):
    a("v_lshrrev_b32 v16, 3, v1"); a("v_lshrrev_b32 v17, 4, v1"); a("v_and_b32 v18, 7, v1")
    a("v_xor_b32 v19, v18, v17"); a("v_lshlrev_b32 v19, 4, v19"); a("v_lshl_add_u32 v2, v16, 10, v19")
    a("v_xor_b32 v3, 64, v2")
    a("v_mul_u32_u24 v4, 3584, v16"); a("v_and_b32 v19, 1, v17"); a("v_lshlrev_b32 v19, 2, v19"); a("v_xor_b32 v19, v19, v18")
    a("v_lshl_add_u32 v4, v19, 4, v4")

def dma0(a):
    a("s_mul_i32 s41, s39, 229376"); a("s_mul_i32 s46, s36, 28672"); a("s_add_u32 s41, s41, s46"); a("s_lshl_b32 s46, s40, 7"); a("s_add_u32 s41, s41, s46")
    a("s_lshl_b32 s46, s36, 10"); a(f"s_add_u32 m0, s46, {WBASE}")
    a("s_nop 0")
    a("buffer_load_dwordx4 v4, s[12:15], s41 offen lds")
    a(f"s_add_u32 m0, s46, {WBASE+8192}")
    a("s_nop 0")
    a("buffer_load_dwordx4 v4, s[16:19], s41 offen lds")
    a("s_lshl_b32 s41, s39, 18"); a("s_lshl_b32 s46, s36, 15"); a("s_add_u32 s41, s41, s46"); a("s_lshl_b32 s46, s39, 7"); a("s_add_u32 s41, s41, s46")
    a("s_lshl_b32 s49, s36, 12")
    for z in range(4):
        a(f"s_add_u32 m0, s49, {z*1024}"); a(f"s_add_u32 s46, s41, {z*8192}")
        a(f"buffer_load_dwordx4 v{2 + (z&1)}, s[8:11], s46 offen lds")

def prefill(a, r=156):
    a("s_bfe_u32 s58, s36, 0x10001"); a("s_lshl_b32 s59, s2, 1"); a("s_add_u32 s58, s58, s59"); a("s_lshl_b32 s58, s58, 12")
    a("s_and_b32 s59, s36, 1"); a("s_lshl_b32 s59, s59, 11"); a("s_add_u32 s58, s58, s59"); a(f"s_add_u32 s58, s58, {G.WS_ST}")
    for i in range(4): a(f"v_mov_b32 v{r+i}, -1")
    a(f"buffer_store_dwordx4 v[{r}:{r+3}], v245, s[20:23], s58 offen sc1")
    a(f"buffer_store_dwordx4 v[{r}:{r+3}], v245, s[20:23], s58 offen offset:1024 sc1")


def common_srds(a):
    srd(a, 8, 4, 5, 2048*512*2)
    srd(a, 12, 28, 29, 512*1792*2)
    srd(a, 16, 30, 31, 512*1792*2)
    srd(a, 20, 34, 35, G.WS_END)

def param_prefetch(a):
    PP = 80
    labp = a.newlabel("MK_NP")
    a("s_cmp_lt_u32 s36, 4"); a(f"s_cbranch_scc1 {labp}")
    a.skip_begin()
    a("s_bfe_u32 s58, s36, 0x10001"); a("s_lshl_b32 s59, s2, 1"); a("s_add_u32 s58, s58, s59"); a("s_lshl_b32 s58, s58, 8")
    a("s_and_b32 s59, s36, 1"); a("s_lshl_b32 s59, s59, 7"); a("s_add_u32 s58, s58, s59")
    a("v_lshl_add_u32 v39, v1, 1, s58")
    for i in range(6):
        a(f"global_load_ushort v{PRM+i}, v39, s[{PP+2+2*i}:{PP+3+2*i}]")
    a("s_lshl_b32 s58, s2, 2")
    a(f"s_load_dword s100, s[{PP+14}:{PP+15}], s58")
    a("s_load_dword s101, s[56:57], s58")
    a.skip_end()
    a.label(labp)

def phaseA_gemm1(a):
    if OPT.get("local"):
        a("s_mov_b32 s39, s37"); a("s_mov_b32 s40, s38")
    else:
        a("s_mul_i32 s41, s38, 37"); a("s_lshr_b32 s41, s41, 8"); a("s_mul_i32 s42, s41, 7"); a("s_sub_u32 s42, s38, s42")
        a("s_lshr_b32 s39, s37, 2"); a("s_lshl_b32 s39, s39, 2"); a("s_add_u32 s39, s39, s41")
        a("s_and_b32 s40, s37, 3"); a("s_mul_i32 s40, s40, 7"); a("s_add_u32 s40, s40, s42")
    dma_voff(a)
    a("s_and_b32 s47, s36, 3")
    dma_setup(a, "s47")
    a("s_waitcnt lgkmcnt(0)")
    a("s_barrier")
    common_srds(a)
    a("s_cmp_ge_u32 s36, 4"); a("s_cbranch_scc1 A_LOAD")
    dma(a, 0)
    a(f"v_mov_b32 v56, {L_CNT+84}"); a("v_mov_b32 v57, 1")
    a("s_mov_b64 exec, 1"); a("ds_add_u32 v56, v57"); a("s_mov_b64 exec, -1")
    a("v_lshlrev_b32 v245, 4, v1")
    a("s_lshl_b32 s41, s53, 3"); a("s_lshl_b32 s46, s36, 1"); a("s_add_u32 s41, s41, s46")
    a("s_lshl_b32 s52, s41, 3"); a(f"s_add_u32 s52, s52, {G.WS_STATS}"); a("s_lshl_b32 s41, s41, 10")
    a("buffer_load_dwordx4 v[240:243], v245, s[8:11], s41 offen")
    a("buffer_load_dwordx4 v[252:255], v245, s[8:11], s41 offen offset:1024")
    srd(a, 24, 32, 33, 256)
    a("s_setprio 2")
    a("s_lshr_b32 s47, s36, 1"); a("s_and_b32 s48, s36, 1")
    a("v_and_b32 v16, 31, v1"); a("v_lshlrev_b32 v16, 7, v16")
    a("s_lshl_b32 s41, s47, 14"); a("v_add_u32 v16, s41, v16")
    a("v_lshrrev_b32 v17, 5, v1"); a("v_bfe_u32 v18, v1, 1, 3")
    XA = 6
    for s in range(4):
        a(f"v_add_u32 v19, {2*s}, v17"); a("v_xor_b32 v19, v19, v18")
        a(f"v_lshl_add_u32 v{XA+s}, v19, 4, v16")
        a(f"v_add_u32 v{XA+4+s}, 65536, v{XA+s}")
    a("v_bfe_u32 v18, v1, 2, 2")
    a("v_lshl_add_u32 v19, v17, 3, v18"); a("v_lshlrev_b32 v19, 7, v19")
    a("v_lshrrev_b32 v20, 1, v18"); a("v_xor_b32 v20, s48, v20"); a("v_lshlrev_b32 v20, 2, v20")
    a("v_bfe_u32 v21, v1, 4, 1"); a("v_lshl_add_u32 v20, v21, 1, v20")
    a("v_bfe_u32 v21, v1, 1, 1"); a("v_add_u32 v20, v20, v21")
    a("v_lshl_add_u32 v19, v20, 4, v19")
    a("v_and_b32 v21, 1, v1"); a("v_lshl_add_u32 v19, v21, 3, v19")
    a(f"v_add_u32 v5, {WBASE}, v19")
    for i in range(4): a(f"v_mov_b32 v{48+i}, 0x3f803f80")
    FB = 192; ACC = 64
    def reads(g):
        j, s = g >> 2, g & 3
        sl = j % 3; b = FB + 24*(g & 1)
        xa = XA + s + (4 if sl == 2 else 0); xo = (sl*XSLOT) & 0xffff
        wo = sl*WSLOT + 16*s*128
        L = [f"ds_read_b64_tr_b16 v[{b}:{b+1}], v5 offset:{wo}", f"ds_read_b64_tr_b16 v[{b+2}:{b+3}], v5 offset:{wo+512}"]
        for rt in range(4): L.append(f"ds_read_b128 v[{b+4+4*rt}:{b+7+4*rt}], v{xa} offset:{xo+4096*rt}")
        L += [f"ds_read_b64_tr_b16 v[{b+20}:{b+21}], v5 offset:{wo+8192}", f"ds_read_b64_tr_b16 v[{b+22}:{b+23}], v5 offset:{wo+8192+512}"]
        return L
    stamp(a, 1)
    a("s_waitcnt vmcnt(2)")
    a(f"v_mov_b32 v56, {L_CNT+80}"); a("v_mov_b32 v57, 1")
    a("s_mov_b64 exec, 1"); a("ds_add_u32 v56, v57"); a("s_mov_b64 exec, -1")
    a.label("A_C0")
    a("ds_read_b32 v57, v56"); a("s_waitcnt lgkmcnt(0)"); a("v_readfirstlane_b32 s41, v57")
    a("s_cmp_lt_u32 s41, 4"); a("s_cbranch_scc1 A_C0")
    stamp(a, 2)
    for r in reads(0): a(r)
    rsq = row_stats_ops(240, 52, 0) + row_stats_ops(252, 52, 8)
    def fl(n):
        nonlocal rsq
        if 1 <= g <= 6:
            for _ in range(n):
                if rsq:
                    for i in rsq.pop(0): a(i)
    for g in range(32):
        j, s = g >> 2, g & 3
        b = FB + 24*(g & 1)
        nxt = reads(g+1) if g < 31 else []
        if g == 1: a("s_waitcnt vmcnt(0)")
        def mf(gu, rt):
            ac = ACC + 16*(4*gu + rt)
            c = "0" if g == 0 else f"v[{ac}:{ac+15}]"
            wa = b if gu == 0 else b + 20
            xb = b + 4 + 4*rt
            a(f"v_mfma_f32_32x32x16_bf16 v[{ac}:{ac+15}], v[{wa}:{wa+3}], v[{xb}:{xb+3}], {c}")
        a("s_waitcnt lgkmcnt(0)")
        mf(0, 0)
        if s == 3 and j < 7:
            if j == 1:
                a("v_lshrrev_b32 v58, 5, v1"); a("v_lshlrev_b32 v58, 4, v58")
                a("s_lshl_b32 s41, s47, 9"); a("s_lshl_b32 s46, s48, 7"); a("s_add_u32 s41, s41, s46"); a(f"s_add_u32 s41, s41, {L_PCS}")
                a("v_add_u32 v58, s41, v58")
                a("s_mov_b32 exec_lo, 1"); a("s_mov_b32 exec_hi, 1")
                for gu in range(2):
                    for q in range(4): a(f"ds_write_b128 v58, v[{16+16*gu+4*q}:{16+16*gu+4*q+3}] offset:{gu*256+q*32}")
                a("s_mov_b64 exec, -1")
                a("s_waitcnt lgkmcnt(0)")
            if j == 2: a("s_waitcnt vmcnt(0)")
            a("s_barrier")
            if OPT.get("stA"): stamp(a, 6+j, force=True)
            if j == 0:
                prefill(a, 248)
                a("v_mov_b32 v14, 0"); a("buffer_load_dword v15, v14, s[24:27], 0 offen sc1")
            if j == 1:
                lab = a.newlabel("A_CP")
                a("s_cmp_ge_u32 s36, 2"); a(f"s_cbranch_scc1 {lab}")
                a.skip_begin()
                a("v_lshlrev_b32 v58, 2, v0"); a(f"v_add_u32 v59, {L_PCS}, v58")
                a("ds_read_b32 v56, v59"); a("ds_read_b32 v57, v59 offset:512")
                a("s_lshl_b32 s41, s40, 3"); a("s_add_u32 s41, s41, s39"); a("s_lshl_b32 s41, s41, 9"); a(f"s_add_u32 s41, s41, {WS_PCS}")
                a("s_waitcnt lgkmcnt(0)")
                a("v_add_f32 v56, v56, v57")
                a("buffer_store_dword v56, v58, s[20:23], s41 offen sc1")
                a.skip_end()
                a.label(lab)
            if j == 2:
                def pub():
                    init_check(a, "A_INIT", 15, tc=18)
                    publish_ready(a, True, ta=16, tb=17)
                only_wave0(a, pub)
            if j == 5:
                a("v_and_b32 v14, 31, v1"); a("v_lshlrev_b32 v14, 3, v14")
                a("s_lshl_b32 s41, s39, 11"); a("s_lshl_b32 s46, s47, 10"); a("s_add_u32 s41, s41, s46"); a(f"s_add_u32 s41, s41, {G.WS_STATS}")
                for rt in range(4): a(f"buffer_load_dwordx2 v[{52+2*rt}:{53+2*rt}], v14, s[20:23], s41 offen offset:{256*rt} sc1")
        for r in nxt[0:2]: a(r)
        fl(2)
        mf(0, 1)
        for r in nxt[2:4]: a(r)
        fl(2)
        mf(0, 2)
        for r in nxt[4:6]: a(r)
        fl(2)
        mf(0, 3)
        for r in nxt[6:8]: a(r)
        fl(4)
        for rt in range(4):
            mf(1, rt); fl(4 if rt < 3 else 6)
        if g == 6: assert not rsq, len(rsq)
        if g < 4:
            lab = a.newlabel("A_CM")
            a(f"s_cmp_lg_u32 s47, {g>>1}"); a(f"s_cbranch_scc1 {lab}")
            a.skip_begin()
            c0 = "0" if (g & 1) == 0 else "v[16:31]"; c1 = "0" if (g & 1) == 0 else "v[32:47]"
            a(f"v_mfma_f32_32x32x16_bf16 v[16:31], v[{b}:{b+3}], v[48:51], {c0}")
            a(f"v_mfma_f32_32x32x16_bf16 v[32:47], v[{b+20}:{b+23}], v[48:51], {c1}")
            a.skip_end()
            a.label(lab)
    stamp(a, 3)
    a("v_lshrrev_b32 v15, 5, v1"); a("v_lshlrev_b32 v15, 4, v15"); a("s_lshl_b32 s41, s48, 7"); a(f"s_add_u32 s41, s41, {L_CSF}"); a("v_add_u32 v15, s41, v15")
    for gu in range(2):
        for q in range(4): a(f"ds_read_b128 v[{16+16*gu+4*q}:{16+16*gu+4*q+3}], v15 offset:{gu*256+q*32}")
    a("s_lshl_b32 s41, s47, 2"); a("s_lshl_b32 s50, s39, 3"); a("s_add_u32 s41, s41, s50")
    a("s_mul_i32 s41, s41, 112"); a("s_lshl_b32 s50, s40, 2"); a("s_add_u32 s41, s41, s50"); a("s_lshl_b32 s50, s48, 1"); a("s_add_u32 s41, s41, s50")
    a("s_lshl_b32 s56, s41, 10")
    if G.WS_HF: a(f"s_add_u32 s56, s56, {G.WS_HF}")
    for rt in range(1, 4): a(f"s_add_u32 s{56+rt}, s56, {rt*114688}")
    a("s_mov_b32 s46, 1.0"); a("s_mov_b32 s47, 1.0")
    a("v_lshlrev_b32 v62, 4, v1")
    a("s_waitcnt vmcnt(0) lgkmcnt(0)")
    HR = 192; TM = 224
    for rt in range(4):
        nm, rsd = 52+2*rt, 53+2*rt
        o = 2 + 6*(rt & 1)
        a(f"v_mov_b32 v{o}, v{nm}"); a(f"v_mov_b32 v{o+1}, v{nm}")
        a(f"v_mul_f32 v{o+2}, {f2u(-1.4426950408889634):#x}, v{rsd}"); a(f"v_mov_b32 v{o+3}, v{o+2}")
        a(f"v_mul_f32 v{o+4}, v{rsd}, v{rsd}"); a(f"v_mov_b32 v{o+5}, v{o+4}")
        for half in range(2):
            prs = [8*half + 2*k for k in range(4)]
            Gp = lambda i: f"v[{ACC+16*rt+i}:{ACC+16*rt+i+1}]"
            Up = lambda i: f"v[{ACC+64+16*rt+i}:{ACC+64+16*rt+i+1}]"
            CG = lambda i: f"v[{16+i}:{16+i+1}]"
            CU = lambda i: f"v[{32+i}:{32+i+1}]"
            Tm = lambda k: TM + 8*half + 2*k
            if OPT.get("epk", 1):
                for i in prs: a(f"v_pk_fma_f32 {Gp(i)}, {CG(i)}, v[{o}:{o+1}], {Gp(i)}")
                for i in prs: a(f"v_pk_fma_f32 {Up(i)}, {CU(i)}, v[{o}:{o+1}], {Up(i)}")
                for k, i in enumerate(prs): a(f"v_pk_mul_f32 v[{Tm(k)}:{Tm(k)+1}], {Gp(i)}, v[{o+2}:{o+3}]")
                for k, i in enumerate(prs):
                    a(f"v_exp_f32 v{Tm(k)}, v{Tm(k)}"); a(f"v_exp_f32 v{Tm(k)+1}, v{Tm(k)+1}")
                for k, i in enumerate(prs): a(f"v_pk_mul_f32 {Gp(i)}, {Gp(i)}, {Up(i)}")
                for k, i in enumerate(prs): a(f"v_pk_add_f32 v[{Tm(k)}:{Tm(k)+1}], v[{Tm(k)}:{Tm(k)+1}], s[46:47]")
                for k, i in enumerate(prs): a(f"v_pk_mul_f32 {Gp(i)}, {Gp(i)}, v[{o+4}:{o+5}]")
                for k, i in enumerate(prs):
                    a(f"v_rcp_f32 v{Tm(k)}, v{Tm(k)}"); a(f"v_rcp_f32 v{Tm(k)+1}, v{Tm(k)+1}")
                for k, i in enumerate(prs): a(f"v_pk_mul_f32 {Gp(i)}, {Gp(i)}, v[{Tm(k)}:{Tm(k)+1}]")
            else:
                els = [8*half + k for k in range(8)]
                g = lambda i: ACC+16*rt+i
                u = lambda i: ACC+64+16*rt+i
                t = lambda k: TM + 8*half + k
                for i in els: a(f"v_fma_f32 v{g(i)}, v{16+i}, v{o}, v{g(i)}")
                for k, i in enumerate(els): a(f"v_mul_f32 v{t(k)}, v{g(i)}, v{o+2}")
                for i in els: a(f"v_fma_f32 v{u(i)}, v{32+i}, v{o}, v{u(i)}")
                for k, i in enumerate(els): a(f"v_exp_f32 v{t(k)}, v{t(k)}")
                for i in els: a(f"v_mul_f32 v{g(i)}, v{g(i)}, v{u(i)}")
                for k, i in enumerate(els): a(f"v_add_f32 v{t(k)}, 1.0, v{t(k)}")
                for i in els: a(f"v_mul_f32 v{g(i)}, v{g(i)}, v{o+4}")
                for k, i in enumerate(els): a(f"v_rcp_f32 v{t(k)}, v{t(k)}")
                for k, i in enumerate(els): a(f"v_mul_f32 v{g(i)}, v{g(i)}, v{t(k)}")
            F = 2*rt + half
            for k, i in enumerate(prs):
                a(f"v_cvt_pk_bf16_f32 v{HR+4*F+k}, v{ACC+16*rt+i}, v{ACC+16*rt+i+1}")
            a(f"buffer_store_dwordx4 v[{HR+4*F}:{HR+4*F+3}], v62, s[20:23], s{56+rt} offen offset:{half*1024} sc1")
    stamp(a, 4)
    a("s_waitcnt vmcnt(0)")
    a("s_setprio 0")
    a(f"v_mov_b32 v2, {L_CNT+76}"); a("v_mov_b32 v3, 1")
    a("s_mov_b64 exec, 1")
    a("ds_add_rtn_u32 v4, v2, v3")
    a("s_waitcnt lgkmcnt(0)")
    a("v_readfirstlane_b32 s41, v4")
    a("s_mov_b64 exec, -1")
    labn = a.newlabel("A_NH")
    a("s_cmp_lg_u32 s41, 3"); a(f"s_cbranch_scc1 {labn}")
    a.skip_begin()
    a("s_lshl_b32 s41, s39, 7"); a("s_lshl_b32 s46, s40, 2"); a("s_add_u32 s41, s41, s46"); a(f"s_add_u32 s41, s41, {F_H}")
    a("v_mov_b32 v4, 0")
    a("s_mov_b64 exec, 1")
    a("buffer_store_dword v3, v4, s[20:23], s41 offen sc1")
    a("s_mov_b64 exec, -1")
    a.skip_end()
    a.label(labn)
    stamp(a, 5)
    a("s_branch B_GEMM2")

    a.label("A_LOAD")
    a.barrier_hazard()
    a(f"s_setprio {OPT.get('lprio', 3)}")
    param_prefetch(a)
    a(f"v_mov_b32 v56, {L_CNT+84}")
    a.label("A_L0")
    a("ds_read_b32 v57, v56"); a("s_waitcnt lgkmcnt(0)"); a("v_readfirstlane_b32 s41, v57")
    a("s_cmp_lt_u32 s41, 4"); a("s_cbranch_scc1 A_L0")
    dma(a, 1)
    a("v_lshlrev_b32 v245, 4, v1")
    dma(a, 2)
    srd(a, 24, 32, 33, 256)
    kops = kgen_ops()
    nea = 0
    iea = next(k for k, o in enumerate(kops) if isinstance(o, str) and o.startswith("s_and_b32 s92, s36, 1"))
    ea_ops, k_ops = kops[iea:], kops[:iea]
    stamp(a, 1)
    def dummy(): a("buffer_load_dword v218, v245, s[8:11], 0 offen")
    rs = row_stats2_ops((220, 224), 132)
    allk = k_ops + ea_ops
    ntail = OPT.get("ntail", 0)
    body, tail_ops = (allk[:len(allk)-ntail], allk[len(allk)-ntail:]) if ntail else (allk, [])
    per = (len(body) + 5)//6
    fills = {}
    for idx, key in enumerate((1, 2, 3, 4, 5, 6)):
        fills[key] = body[idx*per:(idx+1)*per]
    for j in range(7):
        if j == 5:
            a("s_waitcnt vmcnt(12)")
            only_wave(a, 4, lambda: flags_check(a, "A_POLL", 10, 9))
        if j == 6:
            emit_ops(a, fills[6])
            a("s_waitcnt vmcnt(1)")
            a("v_add_f32 v144, v144, v145"); a("v_add_f32 v146, v146, v147"); a("v_add_f32 v148, v148, v149"); a("v_add_f32 v150, v150, v151")
            a("v_add_f32 v144, v144, v146"); a("v_add_f32 v148, v148, v150"); a("v_add_f32 v144, v144, v148")
            a(f"v_add_u32 v153, {L_CSF}, v152"); a("ds_write_b32 v153, v144")
        n = {0: 12, 1: 12, 2: 12, 3: 12, 4: 12, 5: 12, 6: 1}[j]
        a(f"s_waitcnt vmcnt({n}) lgkmcnt(0)")
        a("s_barrier")
        if j == 1:
            a("v_and_b32 v152, 31, v1"); a("s_lshl_b32 s41, s47, 5"); a("v_add_u32 v152, s41, v152"); a("v_lshlrev_b32 v152, 2, v152")
        if j == 4:
            flags_poll_setup(a, 10)
            a("v_mov_b32 v9, 0")
            either(a, 4, lambda: a("buffer_load_dword v9, v10, s[20:23], 0 offen sc1"), dummy)
        if j == 0:
            dma(a, 3, fills[1])
        elif j + 3 <= 7: dma(a, j+3, fills[j+1])
        if j == 5:
            a("s_lshl_b32 s41, s40, 12"); a(f"s_add_u32 s41, s41, {WS_PCS}")
            for m8 in range(8): a(f"buffer_load_dword v{144+m8}, v152, s[20:23], s41 offen offset:{m8*512} sc1")
            a("v_and_b32 v7, 31, v1"); a("v_lshlrev_b32 v7, 2, v7"); a("s_lshl_b32 s41, s37, 7"); a(f"s_add_u32 s41, s41, {F_A}"); a("v_add_u32 v7, s41, v7")
            a("v_mov_b32 v8, 0")
            either(a, 7, lambda: a("buffer_load_dword v8, v7, s[20:23], 0 offen sc1"), dummy)
    stamp(a, 3)
    emit_ops(a, tail_ops)
    a("s_branch B_CONV")

def phaseA_aux(a):
    a("s_sub_u32 s39, s38, 28"); a("s_lshl_b32 s39, s39, 3"); a("s_add_u32 s39, s39, s37")
    a("s_cmp_ge_u32 s39, 28"); a("s_cselect_b32 s40, 28, 0"); a("s_sub_u32 s40, s39, s40")
    a("v_lshlrev_b32 v2, 4, v1"); a("v_add_u32 v3, 4096, v2")
    srd(a, 24, 32, 33, 256)
    labz = a.newlabel("A_NZ")
    a("s_cmp_lg_u32 s39, 31"); a(f"s_cbranch_scc1 {labz}")
    a("s_cmp_lg_u32 s36, 0"); a(f"s_cbranch_scc1 {labz}")
    a.skip_begin()
    for r in range(8, 12): a(f"v_mov_b32 v{r}, 0")
    a(f"s_mov_b32 s45, {G.WS_FLAG}")
    for z in range(8):
        a(f"buffer_store_dwordx4 v[8:11], v{2 if z < 4 else 3}, s[20:23], s45 offen offset:{(z&3)*1024} sc1")
    a("s_waitcnt vmcnt(0)")
    a("v_mov_b32 v12, 1")
    a("s_mov_b64 exec, 1")
    a("buffer_store_dword v12, v8, s[24:27], 0 offen sc1")
    a("s_mov_b64 exec, -1")
    a.skip_end()
    a.label(labz)
    a("s_lshl_b32 s41, s53, 3"); a("s_add_u32 s41, s41, s36"); a("s_lshl_b32 s52, s41, 3"); a(f"s_add_u32 s52, s52, {G.WS_STATS}"); a("s_lshl_b32 s41, s41, 10")
    a("buffer_load_dwordx4 v[40:43], v2, s[8:11], s41 offen")
    a("s_lshl_b32 s42, s36, 13")
    a("s_lshl_b32 s41, s39, 16"); a("s_add_u32 s41, s41, s42")
    for i in range(8):
        a(f"buffer_load_dwordx4 v[{96+4*i}:{96+4*i+3}], v{2 if i<4 else 3}, s[8:11], s41 offen offset:{(i&3)*1024}")
    srd(a, 24, 6, 7, 1792*512*2)
    a("s_lshl_b32 s44, s40, 16"); a("s_add_u32 s44, s44, s42")
    for i in range(8):
        a(f"buffer_load_dwordx4 v[{176+4*i}:{176+4*i+3}], v{2 if i<4 else 3}, s[24:27], s44 offen offset:{(i&3)*1024}")
    srd(a, 24, 32, 33, 256)
    labq = a.newlabel("A_NPF")
    a("s_cmp_lt_u32 s36, 4"); a(f"s_cbranch_scc1 {labq}")
    a.skip_begin()
    a("v_lshlrev_b32 v245, 4, v1")
    prefill(a)
    a.skip_end()
    a.label(labq)
    a("s_mov_b32 s84, 0xaaaaaaaa"); a("s_mov_b32 s85, 0xaaaaaaaa"); a("s_mov_b32 s86, 0xcccccccc"); a("s_mov_b32 s87, 0xcccccccc"); a("s_mov_b32 s88, 0xf0f0f0f0"); a("s_mov_b32 s89, 0xf0f0f0f0")
    stamp(a, 1)
    a("s_waitcnt vmcnt(16) lgkmcnt(0)")
    for grp in row_stats_ops(40, 44):
        for i in grp: a(i)
    a("s_waitcnt vmcnt(9)")
    X = 32
    for i in range(8):
        for d in range(4):
            a(f"v_lshlrev_b32 v{X+8*i+2*d}, 16, v{96+4*i+d}")
            a(f"v_and_b32 v{X+8*i+2*d+1}, 0xffff0000, v{96+4*i+d}")
    for i in range(8):
        b = X + 8*i; t = 144 + 2*(i & 3)
        a(f"v_pk_add_f32 v[{t}:{t+1}], v[{b}:{b+1}], v[{b+2}:{b+3}]")
        a(f"v_pk_mul_f32 v[{t+8}:{t+9}], v[{b}:{b+1}], v[{b}:{b+1}]")
        a(f"v_pk_add_f32 v[{t}:{t+1}], v[{t}:{t+1}], v[{b+4}:{b+5}]")
        a(f"v_pk_fma_f32 v[{t+8}:{t+9}], v[{b+2}:{b+3}], v[{b+2}:{b+3}], v[{t+8}:{t+9}]")
        a(f"v_pk_add_f32 v[{t}:{t+1}], v[{t}:{t+1}], v[{b+6}:{b+7}]")
        a(f"v_pk_fma_f32 v[{t+8}:{t+9}], v[{b+4}:{b+5}], v[{b+4}:{b+5}], v[{t+8}:{t+9}]")
        a(f"v_add_f32 v{128+i}, v{t}, v{t+1}")
        a(f"v_pk_fma_f32 v[{t+8}:{t+9}], v[{b+6}:{b+7}], v[{b+6}:{b+7}], v[{t+8}:{t+9}]")
        a(f"v_add_f32 v{136+i}, v{t+8}, v{t+9}")
    def rs_level(src, n, mask, perm, dst, tmp):
        for k in range(n):
            A_, B_ = src[2*k], src[2*k+1]
            a(f"v_cndmask_b32 v{dst[k]}, v{A_}, v{B_}, {mask}")
            a(f"v_cndmask_b32 v{tmp+k}, v{B_}, v{A_}, {mask}")
        for k in range(n):
            a(f"v_add_f32_dpp v{dst[k]}, v{tmp+k}, v{dst[k]} {perm} row_mask:0xf bank_mask:0xf")
    src = [128+i for i in range(16)]
    d1 = [144+k for k in range(8)]
    rs_level(src, 8, "s[84:85]", "quad_perm:[1,0,3,2]", d1, 160)
    d2 = [128+k for k in range(4)]
    rs_level(d1, 4, "s[86:87]", "quad_perm:[2,3,0,1]", d2, 160)
    for m in ("row_ror:4", "row_ror:8"):
        for r in d2: a(f"v_add_f32_dpp v{r}, v{r}, v{r} {m} row_mask:0xf bank_mask:0xf")
    for sw in ("v_permlane16_swap_b32", "v_permlane32_swap_b32"):
        for k, r in enumerate(d2): a(f"v_mov_b32 v{160+k}, v{r}")
        for k, r in enumerate(d2): a(f"{sw} v{r}, v{160+k}")
        for k, r in enumerate(d2): a(f"v_add_f32 v{r}, v{r}, v{160+k}")
    a("v_cndmask_b32 v8, v128, v129, s[88:89]")
    a("v_cndmask_b32 v9, v130, v131, s[88:89]")
    a(f"v_mul_f32 v8, {f2u(1/512):#x}, v8"); a(f"v_mul_f32 v9, {f2u(1/512):#x}, v9")
    a("v_fma_f32 v9, -v8, v8, v9"); a("v_max_f32 v9, 0, v9")
    bf16r(a, 8, 8); bf16r(a, 9, 9)
    a(f"v_add_f32 v9, {f2u(1e-5):#x}, v9"); bf16r(a, 9, 9)
    a("v_sqrt_f32 v9, v9"); bf16r(a, 9, 9)
    a("v_rcp_f32 v9, v9"); a("v_sub_f32 v8, 0, v8")
    a("v_mul_f32 v11, v8, v9")
    stamp(a, 2)
    RS = [92, 94, 56, 58, 80, 82, 84, 86]
    for i in range(8):
        a(f"v_readlane_b32 s{RS[i]}, v9, {i}"); a(f"v_readlane_b32 s{RS[i]+1}, v9, {i}")
    for i in range(8):
        a(f"v_readlane_b32 s{46+(i&1)}, v11, {i}"); a(f"v_mov_b32 v{224+2*i}, s{46+(i&1)}"); a(f"v_mov_b32 v{225+2*i}, s{46+(i&1)}")
    for i in range(8):
        for d in range(4):
            a(f"v_pk_fma_f32 v[{X+8*i+2*d}:{X+8*i+2*d+1}], v[{X+8*i+2*d}:{X+8*i+2*d+1}], s[{RS[i]}:{RS[i]+1}], v[{224+2*i}:{225+2*i}]")
    a("s_add_u32 s45, s42, 65536")
    for i in range(4):
        a(f"v_xor_b32 v{4+i}, {4*i}, v1"); a(f"v_lshlrev_b32 v{4+i}, 4, v{4+i}"); a(f"v_add_u32 v{4+i}, s45, v{4+i}")
    a("s_waitcnt vmcnt(0)")
    for i in range(8): a(f"ds_write_b128 v{4+(i&3)}, v[{176+4*i}:{176+4*i+3}] offset:{i*1024}")
    P = 128
    for i in range(8):
        for d in range(4): a(f"v_cvt_pk_bf16_f32 v{P+4*i+d}, v{X+8*i+2*d}, v{X+8*i+2*d+1}")
    a("s_mov_b32 s46, 0x05040100"); a("s_mov_b32 s47, 0x07060302")
    for e in range(8):
        for k in range(4):
            a(f"v_perm_b32 v{64+4*e+k}, v{P+4*(2*k+1)+(e>>1)}, v{P+4*(2*k)+(e>>1)}, s{46+(e&1)}")
    a("v_and_b32 v16, 7, v1"); a("v_xor_b32 v16, s36, v16"); a("v_lshlrev_b32 v16, 4, v16"); a("v_lshl_add_u32 v16, v1, 10, v16")
    for e in range(8): a(f"ds_write_b128 v16, v[{64+4*e}:{64+4*e+3}] offset:{e*128}")
    a("s_waitcnt vmcnt(0) lgkmcnt(0)")
    a("s_barrier")
    def pubx():
        a("v_mov_b32 v158, 0"); a("buffer_load_dword v9, v158, s[24:27], 0 offen sc1"); a("s_waitcnt vmcnt(0)")
        init_check(a, "X_INIT", 9)
        publish_ready(a, False)
    only_wave0(a, pubx)
    stamp(a, 3)
    a("v_lshrrev_b32 v16, 3, v1"); a("v_and_b32 v17, 7, v1")
    a("v_lshlrev_b32 v18, 12, v16"); a("v_lshl_add_u32 v18, v17, 4, v18")
    a("v_lshlrev_b32 v19, 7, v16"); a("s_lshl_b32 s45, s36, 13"); a("v_add_u32 v19, s45, v19")
    for z in range(8):
        a(f"v_xor_b32 v20, {z}, v17"); a(f"v_lshl_add_u32 v20, v20, 4, v19")
        a(f"ds_read_b128 v[{32+4*z}:{32+4*z+3}], v20 offset:{z*1024}")
    a("s_lshl_b32 s45, s36, 18"); a("s_lshl_b32 s46, s39, 7"); a("s_add_u32 s45, s45, s46"); a(f"s_add_u32 s45, s45, {G.WS_UT}")
    a("v_lshrrev_b32 v24, 5, v1"); a("v_bfe_u32 v25, v1, 4, 1"); a("v_bfe_u32 v26, v1, 2, 2"); a("v_bfe_u32 v27, v1, 1, 1"); a("v_and_b32 v28, 1, v1")
    a("s_and_b32 s43, s36, 3")
    a("v_xor_b32 v21, s43, v26"); a("v_lshlrev_b32 v21, 2, v21"); a("v_lshl_add_u32 v21, v25, 1, v21"); a("v_add_u32 v21, v21, v27")
    a("v_lshlrev_b32 v21, 4, v21"); a("v_lshl_add_u32 v21, v28, 3, v21")
    a("v_lshl_add_u32 v22, v24, 2, v26"); a("v_lshl_add_u32 v21, v22, 10, v21")
    a("s_and_b32 s43, s36, 4"); a("s_lshl_b32 s43, s43, 6"); a("s_add_u32 s43, s43, 65536"); a("v_add_u32 v21, s43, v21")
    for y in range(2):
        for sp in range(4):
            b = 64 + 4*(4*y+sp)
            for rd in range(2):
                a(f"ds_read_b64_tr_b16 v[{b+2*rd}:{b+2*rd+1}], v21 offset:{sp*16384 + rd*8192 + y*512}")
    a("s_waitcnt lgkmcnt(0)")
    for z in range(8):
        a(f"s_add_u32 s46, s45, {z*32768}")
        a(f"buffer_store_dwordx4 v[{32+4*z}:{32+4*z+3}], v18, s[20:23], s46 offen sc1")
    labn = a.newlabel("A_NOWD")
    a("s_cmp_ge_u32 s39, 28"); a(f"s_cbranch_scc1 {labn}")
    a.skip_begin()
    a("s_mul_i32 s44, s36, 112"); a("s_lshl_b32 s45, s39, 2"); a("s_add_u32 s44, s44, s45"); a("s_lshl_b32 s44, s44, 10")
    a(f"s_add_u32 s44, s44, {G.WS_WDF}")
    for y in range(2):
        if y: a(f"s_add_u32 s44, s44, {8*112*1024}")
        for sp in range(4):
            b = 64 + 4*(4*y+sp)
            a(f"buffer_store_dwordx4 v[{b}:{b+3}], v2, s[20:23], s44 offen offset:{sp*1024} sc1")
    a.skip_end()
    a.label(labn)
    stamp(a, 4)
    a("s_waitcnt vmcnt(0)")
    a("s_barrier")
    a("s_lshl_b32 s41, s39, 2"); a(f"s_add_u32 s41, s41, {F_A}")
    def af():
        a("v_mov_b32 v154, 1"); a("v_lshlrev_b32 v219, 7, v1")
        a("s_mov_b64 exec, 0xff")
        a("buffer_store_dword v154, v219, s[20:23], s41 offen sc1")
        a("s_mov_b64 exec, -1")
    only_wave0(a, af)
    stamp(a, 5)
    a("s_cmp_lt_u32 s36, 4"); a("s_cbranch_scc1 B_GEMM2")
    emit_ops(a, kgen_ops())
    a("v_mov_b32 v8, 0")
    a("s_branch B_CONV")

def phaseB_common(a):
    a("s_lshl_b32 s39, s37, 2"); a("s_lshr_b32 s3, s38, 3"); a("s_add_u32 s39, s39, s3")
    a("s_and_b32 s3, s38, 7")
    srd(a, 12, 96, 97, 2048*512*2)
    a("v_lshrrev_b32 v5, 3, v1"); a("v_lshlrev_b32 v5, 10, v5")
    a("v_and_b32 v6, 7, v1"); a("v_lshl_add_u32 v5, v6, 4, v5")
    a("s_lshl_b32 s34, s39, 16"); a("s_lshl_b32 s35, s36, 13"); a("s_add_u32 s34, s34, s35")
    a("s_lshl_b32 s35, s3, 7"); a("s_add_u32 s34, s34, s35")
    a("buffer_load_dwordx4 v[252:255], v5, s[8:11], s34 offen")

def phaseB(a):
    if OPT.get('stA'): OPT['stB_off'] = 1
    a.label("B_GEMM2")
    a.barrier_hazard()
    phaseB_common(a)
    WD = OPT.get("wd", 11); HD = OPT.get("hd", 8)
    WB = 24; HB = WB + 8*WD; AC = 176
    assert HB + 8*HD <= AC
    a("v_lshlrev_b32 v2, 4, v1")
    for q in range(7): a(f"v_add_u32 v{12+q}, {q*4096}, v2")
    a("s_mul_i32 s26, s39, 224"); a("s_mul_i32 s27, s36, 28"); a("s_add_u32 s26, s26, s27"); a("s_lshl_b32 s26, s26, 10")
    if G.WS_HF: a(f"s_add_u32 s26, s26, {G.WS_HF}")
    a("s_add_u32 s28, s26, 114688")
    a("s_mul_i32 s29, s3, 224"); a("s_add_u32 s29, s29, s27"); a("s_lshl_b32 s29, s29, 10"); a(f"s_add_u32 s29, s29, {G.WS_WDF}")
    a("s_add_u32 s30, s29, 114688")
    issued = []
    def ldW(s):
        b = WB + (s % WD)*8
        for j, sr in enumerate(["s29","s30"]):
            a(f"buffer_load_dwordx4 v[{b+4*j}:{b+4*j+3}], v{12+s//4}, s[20:23], {sr} offen offset:{(s%4)*1024} sc1"); issued.append(("W", s))
    def ldH(s):
        b = HB + (s % HD)*8
        for j, sr in enumerate(["s26","s28"]):
            a(f"buffer_load_dwordx4 v[{b+4*j}:{b+4*j+3}], v{12+s//4}, s[20:23], {sr} offen offset:{(s%4)*1024} sc1"); issued.append(("H", s))
    a(f"v_mov_b32 v20, {L_CNT+68}")
    lds_spin(a, "B_WWAIT", 20, 21, sleep=2)
    for s in range(WD): ldW(s)
    a("v_and_b32 v22, 31, v1"); a("v_lshlrev_b32 v19, 2, v22"); a("s_lshl_b32 s27, s37, 7"); a(f"s_add_u32 s27, s27, {F_H}"); a("v_add_u32 v19, s27, v19")
    a("v_cmp_gt_u32 vcc, 28, v22"); a("v_mov_b32 v20, 0"); a("v_mov_b32 v21, 1"); a("v_cndmask_b32 v20, v20, v21, vcc")
    a(f"v_mov_b32 v22, {L_CNT+72}")
    a("s_cmp_lg_u32 s36, 0"); a("s_cbranch_scc1 B_GWAIT")
    poll(a, "B_GPOLL", 20, 19, 20, 23, sleep=OPT.get("hsleep", 2))
    a("ds_write_b32 v22, v21")
    a("s_branch B_GGO")
    lds_spin(a, "B_GWAIT", 22, 23)
    a.label("B_GGO")
    stamp(a, 6)
    for s in range(HD): ldH(s)
    for s in range(28):
        last = max(i for i, o in enumerate(issued) if o[1] == s)
        a(f"s_waitcnt vmcnt({len(issued) - 1 - last})")
        bw = WB + (s % WD)*8; bh = HB + (s % HD)*8
        for nt2 in range(2):
            for rt in range(2):
                ac = AC + 16*(2*nt2+rt)
                c = "0" if s == 0 else f"v[{ac}:{ac+15}]"
                a(f"v_mfma_f32_32x32x16_bf16 v[{ac}:{ac+15}], v[{bw+4*nt2}:{bw+3+4*nt2}], v[{bh+4*rt}:{bh+3+4*rt}], {c}")
        if s + HD < 28: ldH(s + HD)
        if s + WD < 28: ldW(s + WD)
        if s == OPT.get("near", 14):
            def sig():
                a(f"v_mov_b32 v2, {L_CNT+64}"); a("v_mov_b32 v3, 1"); a("ds_write_b32 v2, v3")
            only_wave0(a, sig)
    stamp(a, 7)
    a("v_and_b32 v2, 31, v1"); a("v_and_b32 v3, 15, v1"); a("v_lshrrev_b32 v4, 5, v1"); a("v_xor_b32 v3, v3, v4")
    a("s_and_b32 s26, s36, 1"); a("s_lshl_b32 s26, s26, 14"); a("s_lshr_b32 s27, s36, 1"); a("s_lshl_b32 s27, s27, 16"); a("s_add_u32 s26, s26, s27"); a("s_add_u32 s26, s26, 32768")
    a("v_lshlrev_b32 v2, 8, v2"); a("v_add_u32 v2, s26, v2")
    for cq in range(8):
        a(f"v_xor_b32 v6, {2*cq}, v3"); a(f"v_lshl_add_u32 v{12+cq}, v6, 4, v2")
    for nt2 in range(2):
        for rt in range(2):
            ac = AC + 16*(2*nt2+rt)
            for q in range(4):
                a(f"ds_write_b128 v{12+4*nt2+q}, v[{ac+4*q}:{ac+4*q+3}] offset:{rt*32*256}")
    a("s_waitcnt lgkmcnt(0)")
    stamp(a, 8)
    a("s_branch K2_FINAL")

    a.label("B_CONV")
    a.barrier_hazard()
    a(f"s_setprio {OPT.get('cprio', 1)}")
    phaseB_common(a)
    a("s_sub_u32 s24, s36, 4")
    a("s_lshr_b32 s25, s24, 1")
    a("s_and_b32 s26, s24, 1")
    a("s_lshl_b32 s27, s2, 1"); a("s_add_u32 s27, s27, s25")
    a("s_mov_b32 s31, s93")
    UB = 200
    a("v_and_b32 v3, 15, v1"); a("v_lshrrev_b32 v4, 4, v1")
    a("v_lshlrev_b32 v7, 4, v1")
    a("s_lshl_b32 s17, s25, 16")
    a("s_add_u32 s18, s17, 16384")
    a("s_lshl_b32 s16, s26, 14"); a("s_add_u32 s16, s16, s17")
    stamp(a, 6)
    a("v_lshlrev_b32 v6, 2, v1"); a("v_add_u32 v6, s16, v6")
    for row in range(57): a(f"ds_write_b32 v6, v{PK+row} offset:{row*288}")
    for e in range(17): a(f"v_add_u32 v{EA+e}, s17, v{EA+e}")
    a(f"v_mov_b32 v45, {L_CNT+68}"); a("v_mov_b32 v46, 1")
    a("s_cmp_lg_u32 s36, 7"); a("s_cbranch_scc1 B_UWAIT")
    a("v_and_b32 v48, 31, v1"); a("v_lshlrev_b32 v48, 2, v48"); a("s_lshl_b32 s28, s37, 7"); a(f"s_add_u32 s28, s28, {F_A}"); a("v_add_u32 v48, s28, v48"); a("v_mov_b32 v49, 1")
    a("s_waitcnt vmcnt(0)")
    a("v_cmp_ne_u32 vcc, 1, v8"); a("s_nop 4"); a("s_cbranch_vccz B_UPOLL_OK")
    poll(a, "B_UPOLL", 20, 48, 49, 47, sleep=4)
    a("ds_write_b32 v45, v46")
    a("s_branch B_UGO")
    lds_spin(a, "B_UWAIT", 45, 47)
    a.label("B_UGO")
    a("s_lshl_b32 s28, s27, 12"); a("s_lshl_b32 s35, s26, 11"); a("s_add_u32 s28, s28, s35"); a(f"s_add_u32 s29, s28, {G.WS_UT}")
    a("buffer_load_dwordx4 v[144:147], v7, s[20:23], s29 offen sc1")
    a("buffer_load_dwordx4 v[148:151], v7, s[20:23], s29 offen offset:1024 sc1")
    a("v_mul_u32_u24 v44, 288, v3"); a("v_lshl_add_u32 v44, v4, 4, v44"); a("v_add_u32 v44, s16, v44")
    a("s_waitcnt lgkmcnt(0)")
    AF = 64; BF = 112; KA = 128
    for ks in range(4):
        a(f"ds_read_b128 v[{BF+4*ks}:{BF+4*ks+3}], v44 offset:{41*288 + ks*64}")
        for mt in range(3):
            b = AF + 4*(3*ks+mt)
            a(f"ds_read_b128 v[{b}:{b+3}], v44 offset:{mt*16*288 + ks*64}")
    a("s_waitcnt lgkmcnt(0)")
    for ks in range(4):
        for mt in range(3):
            b = AF + 4*(3*ks+mt)
            c = "0" if ks == 0 else f"v[{KA+4*mt}:{KA+4*mt+3}]"
            a(f"v_mfma_f32_16x16x32_bf16 v[{KA+4*mt}:{KA+4*mt+3}], v[{b}:{b+3}], v[{BF+4*ks}:{BF+4*ks+3}], {c}")
    def set_flag(off_sgpr_expr_fn):
        pass
    a(f"v_mov_b32 v45, {L_CNT}")
    a("s_lshl_b32 s28, s25, 2"); a("v_add_u32 v45, s28, v45")
    a("v_mov_b32 v46, 1")
    a("v_mul_u32_u24 v47, 48, v1"); a("v_add_u32 v47, s18, v47")
    labE = "K2_EVEN"; labX = "K2_EXPAND"
    a("s_cmp_eq_u32 s26, 0")
    a(f"s_cbranch_scc1 {labE}")
    for mt in range(3): a(f"ds_write_b128 v47, v[{KA+4*mt}:{KA+4*mt+3}] offset:{16*mt}")
    a("s_waitcnt lgkmcnt(0)")
    a("ds_write_b32 v45, v46")
    def spin(vaddr, off, lab):
        a.label(lab)
        a(f"ds_read_b32 v48, v{vaddr} offset:{off}")
        a("s_waitcnt lgkmcnt(0)")
        a("v_readfirstlane_b32 s28, v48")
        a("s_cmp_eq_u32 s28, 0")
        a(f"s_cbranch_scc1 {lab}")
    spin(45, 8, "K2_SP2")
    a(f"s_branch {labX}")
    a.label(labE)
    a.barrier_hazard()
    spin(45, 0, "K2_SP1")
    for mt in range(3): a(f"ds_read_b128 v[{64+4*mt}:{64+4*mt+3}], v47 offset:{16*mt}")
    a("v_lshrrev_b32 v48, 1, v4"); a("v_lshlrev_b32 v48, 7, v48")
    a("v_and_b32 v49, 1, v4"); a("v_lshl_add_u32 v48, v49, 2, v48"); a("v_lshl_add_u32 v48, v3, 3, v48")
    a("v_lshl_add_u32 v48, v48, 1, s17")
    a("v_lshlrev_b32 v49, 6, v4"); a("v_add_u32 v49, 256, v49")
    a("v_cmp_gt_u32 vcc, 2, v4")
    a("v_lshlrev_b32 v50, 2, v3"); a("v_lshlrev_b32 v51, 1, v3")
    a("v_cndmask_b32 v50, v51, v50, vcc")
    a("v_add_u32 v49, v49, v50"); a("v_lshl_add_u32 v49, v49, 1, s17")
    a("v_mov_b32 v50, 64"); a("v_mov_b32 v51, 4"); a("v_cndmask_b32 v50, v50, v51, vcc"); a("v_add_u32 v50, v49, v50")
    a("v_lshlrev_b32 v51, 6, v4"); a("v_add_u32 v51, v51, v3"); a("v_add_u32 v51, 512, v51")
    a("v_mov_b32 v52, 704"); a("v_cndmask_b32 v51, v52, v51, vcc")
    a("v_cmp_eq_u32 vcc, 32, v1"); a("v_mov_b32 v52, 640"); a("v_cndmask_b32 v51, v51, v52, vcc")
    a("v_lshl_add_u32 v51, v51, 1, s17")
    a("s_waitcnt lgkmcnt(0)")
    for i in range(12): a(f"v_add_f32 v{KA+i}, v{KA+i}, v{64+i}")
    a("v_cmp_eq_u32 vcc, 0, v1"); a("v_mov_b32 v52, 0"); a("v_mov_b32 v53, s31"); a("v_cndmask_b32 v52, v52, v53, vcc")
    a(f"v_add_f32 v{KA}, v{KA}, v52")
    for i in range(6): a(f"v_cvt_pk_bf16_f32 v{76+i}, v{KA+2*i}, v{KA+2*i+1}")
    a("ds_write_b64 v48, v[76:77]")
    a("ds_write_b32 v49, v78"); a("ds_write_b32 v50, v79")
    a("ds_write_b16 v51, v80"); a("ds_write_b16_d16_hi v51, v80 offset:32")
    a("ds_write_b16 v51, v81 offset:64"); a("ds_write_b16_d16_hi v51, v81 offset:96")
    a("v_mov_b32 v52, 0"); a("v_mov_b32 v53, s17"); a("ds_write_b16 v53, v52 offset:1282")
    a("s_waitcnt lgkmcnt(0)")
    a("ds_write_b32 v45, v46 offset:8")
    a.label(labX)
    a.barrier_hazard()
    DD = 88
    for e in range(17):
        a(f"ds_read_u16 v{DD+e}, v{EA+e}")
    a("s_lshl_b32 s28, s26, 11"); a("s_add_u32 s28, s28, s18")
    a("v_lshl_add_u32 v48, v1, 5, s28")
    a("v_mov_b32 v52, 0")
    a("v_and_b32 v49, 15, v1"); a("v_lshl_add_u32 v49, v49, 2, s18")
    a("s_waitcnt lgkmcnt(0)")
    for i in range(8): a(f"v_lshl_or_b32 v{64+i}, v{DD+2*i+1}, 16, v{DD+2*i}")
    for i in range(8): a(f"v_lshl_or_b32 v{76+i}, v{DD+2*i+2}, 16, v{DD+2*i+1}")
    a(f"ds_write_b128 v48, v[64:67] offset:{R0_OFF}"); a(f"ds_write_b128 v48, v[68:71] offset:{R0_OFF+16}")
    a(f"ds_write_b128 v48, v[76:79] offset:{R1_OFF}"); a(f"ds_write_b128 v48, v[80:83] offset:{R1_OFF+16}")
    a(f"ds_write_b32 v49, v52 offset:{R0_OFF+4096}"); a(f"ds_write_b32 v49, v52 offset:{R1_OFF+4096}")
    a("s_lshl_b32 s28, s25, 12"); a("s_lshl_b32 s35, s26, 11"); a("s_add_u32 s28, s28, s35"); a(f"s_add_u32 s28, s28, {L_U}"); a("v_add_u32 v49, s28, v7")
    a("s_waitcnt vmcnt(0)")
    a("ds_write_b128 v49, v[144:147]"); a("ds_write_b128 v49, v[148:151] offset:1024")
    a("s_waitcnt lgkmcnt(0)")
    a(f"v_mov_b32 v48, {L_CNT+16}")
    a("s_lshl_b32 s28, s24, 2"); a("v_add_u32 v49, s28, v48")
    a("s_xor_b32 s28, s28, 4"); a("v_add_u32 v50, s28, v48")
    a("ds_write_b32 v49, v46")
    spin(50, 0, "K2_SP3")
    stamp(a, 7)
    if OPT.get("dumpK"):
        a("s_lshl_b32 s28, s26, 11"); a("s_add_u32 s28, s28, s18")
        a("v_lshl_add_u32 v48, v1, 5, s28")
        a(f"ds_read_b128 v[64:67], v48 offset:{R0_OFF}"); a(f"ds_read_b128 v[68:71], v48 offset:{R0_OFF+16}")
        a(f"ds_read_b128 v[72:75], v48 offset:{R1_OFF}"); a(f"ds_read_b128 v[76:79], v48 offset:{R1_OFF+16}")
        a("s_waitcnt lgkmcnt(0)")
        a("v_lshlrev_b32 v48, 5, v1")
        a("s_lshl_b32 s28, s27, 13"); a("s_lshl_b32 s29, s26, 11"); a("s_add_u32 s28, s28, s29"); a(f"s_add_u32 s28, s28, {0x1000000}")
        a("s_mov_b32 s22, 0x2000000")
        a("buffer_store_dwordx4 v[64:67], v48, s[20:23], s28 offen"); a("buffer_store_dwordx4 v[68:71], v48, s[20:23], s28 offen offset:16")
        a("s_add_u32 s28, s28, 4096")
        a("buffer_store_dwordx4 v[72:75], v48, s[20:23], s28 offen"); a("buffer_store_dwordx4 v[76:79], v48, s[20:23], s28 offen offset:16")
        a("s_waitcnt vmcnt(0)")
    a("v_lshlrev_b32 v48, 3, v4"); a("v_sub_u32 v48, v48, v3"); a("v_add_u32 v48, 2047, v48"); a("v_and_b32 v48, -2, v48"); a("v_lshlrev_b32 v48, 1, v48")
    a("v_and_b32 v49, 1, v3"); a("v_xor_b32 v49, 1, v49"); a("v_mul_u32_u24 v49, 4160, v49")
    a("v_add_u32 v48, v48, v49")
    a(f"s_add_u32 s28, s18, {R0_OFF}"); a("s_lshl_b32 s29, s26, 5"); a("s_sub_u32 s28, s28, s29")
    a("v_add_u32 v48, s28, v48")
    BZ = 52
    for z in range(4): a(f"v_subrev_u32 v{BZ+z}, {32*(32*z+30)}, v48")
    FRG = 64
    ACC = 112
    for i in range(16): a(f"v_mov_b32 v{ACC+i}, 0")
    def fr(q): return FRG + 4*(q % 12)
    def fread(q):
        z = q >> 4; o = 8*(32*z + 30 - 2*q); b = fr(q)
        a(f"ds_read2_b32 v[{b}:{b+1}], v{BZ+z} offset0:{o} offset1:{o+1}")
        a(f"ds_read2_b32 v[{b+2}:{b+3}], v{BZ+z} offset0:{o+2} offset1:{o+3}")
    a("v_lshlrev_b32 v49, 8, v3"); a("v_lshl_add_u32 v49, v4, 4, v49"); a("s_lshl_b32 s28, s25, 12"); a(f"s_add_u32 s28, s28, {L_U}"); a("v_add_u32 v49, s28, v49")
    for h in range(4): a(f"ds_read_b128 v[{UB+4*h}:{UB+4*h+3}], v49 offset:{64*h}")
    for q in range(4): fread(q)
    for dl in range(16):
        a("s_waitcnt lgkmcnt(0)")
        if dl < 15:
            for q in range(4*(dl+1), 4*(dl+1)+4): fread(q)
        for h in (3, 2, 1, 0):
            for j in range(4):
                m = j - h
                q = 4*dl + m
                if q < 0: continue
                b = fr(q)
                a(f"v_mfma_f32_16x16x32_bf16 v[{ACC+4*j}:{ACC+4*j+3}], v[{b}:{b+3}], v[{UB+4*h}:{UB+4*h+3}], v[{ACC+4*j}:{ACC+4*j+3}]")
            if dl < 15:
                for i in range(4):
                    a(f"v_mov_b32_dpp v{UB+4*h+i}, v{UB+4*h+i} row_shr:1 row_mask:0xf bank_mask:0xf bound_ctrl:0")
    stamp(a, 8)
    a("v_lshlrev_b32 v48, 8, v3"); a("v_lshl_add_u32 v48, v4, 3, v48")
    a("s_lshl_b32 s28, s26, 5"); a("s_add_u32 s28, s28, s17"); a(f"s_add_u32 s28, s28, {SROW_OFF}"); a("v_add_u32 v48, s28, v48")
    for j in range(4):
        y = ACC + 4*j
        a(f"v_cvt_pk_bf16_f32 v{64+2*j}, v{y}, v{y+1}"); a(f"v_cvt_pk_bf16_f32 v{65+2*j}, v{y+2}, v{y+3}")
    for j in range(4): a(f"ds_write_b64 v48, v[{64+2*j}:{65+2*j}] offset:{64*j}")
    a("s_waitcnt lgkmcnt(0)")
    a(f"v_mov_b32 v48, {L_CNT+40}")
    a("s_lshl_b32 s28, s24, 2"); a("v_add_u32 v49, s28, v48")
    a("s_xor_b32 s28, s28, 4"); a("v_add_u32 v50, s28, v48")
    a("ds_write_b32 v49, v46")
    spin(50, 0, "K2_SP5")
    a("s_lshl_b32 s28, s26, 11"); a("s_add_u32 s29, s28, s17"); a(f"s_add_u32 s29, s29, {SROW_OFF}")
    a("v_add_u32 v48, s29, v7")
    a("ds_read_b128 v[64:67], v48"); a("ds_read_b128 v[68:71], v48 offset:1024")
    a("s_lshl_b32 s29, s27, 12"); a("s_add_u32 s29, s29, s28"); a(f"s_add_u32 s29, s29, {G.WS_ST}")
    a("s_waitcnt lgkmcnt(0)")
    for d in range(8): a(f"v_min_u32 v{64+d}, -2, v{64+d}")
    a("buffer_store_dwordx4 v[64:67], v7, s[20:23], s29 offen sc1")
    a("buffer_store_dwordx4 v[68:71], v7, s[20:23], s29 offen offset:1024 sc1")
    stamp(a, 9)
    a(f"v_mov_b32 v50, {L_CNT+64}")
    a("v_and_b32 v48, 31, v1"); a("v_lshlrev_b32 v48, 2, v48"); a("s_lshl_b32 s28, s3, 7"); a(f"s_add_u32 s28, s28, {F_P}"); a("v_add_u32 v48, s28, v48")
    a.label("B_PPOLL")
    a("buffer_load_dword v49, v48, s[20:23], 0 offen sc1"); a("s_waitcnt vmcnt(0)")
    a("v_cmp_eq_u32 vcc, 0, v49"); a("s_nop 4"); a("s_cbranch_vccz B_PPOLL_OK"); a("s_sleep 8"); a("s_branch B_PPOLL")
    a.label("B_PPOLL_OK")
    lds_spin(a, "B_SWAIT", 50, 49, sleep=4)
    stamp(a, 10)
    a("v_lshrrev_b32 v48, 3, v1"); a("v_and_b32 v49, 7, v1")
    a("v_lshlrev_b32 v50, 12, v48"); a("v_lshl_add_u32 v50, v49, 4, v50")
    a("s_lshl_b32 s28, s3, 18"); a("s_lshl_b32 s29, s24, 16"); a("s_add_u32 s28, s28, s29")
    a("s_lshl_b32 s29, s39, 7"); a("s_add_u32 s28, s28, s29"); a(f"s_add_u32 s28, s28, {G.WS_ST}")
    a("s_add_u32 s29, s28, 32768")
    a(f"v_mul_u32_u24 v51, {STL_PITCH}, v48"); a("v_lshl_add_u32 v51, v49, 4, v51")
    a(f"s_mul_i32 s30, s24, {16*STL_PITCH}"); a(f"s_add_u32 s30, s30, {L_STL}"); a("v_add_u32 v51, s30, v51")
    a.label("B_SLOAD")
    a("buffer_load_dwordx4 v[64:67], v50, s[20:23], s28 offen sc1")
    a("buffer_load_dwordx4 v[68:71], v50, s[20:23], s29 offen sc1")
    a("s_waitcnt vmcnt(0)")
    a("v_max3_u32 v72, v64, v65, v66"); a("v_max3_u32 v73, v67, v68, v69"); a("v_max3_u32 v72, v72, v70, v71"); a("v_max_u32 v72, v72, v73")
    a("v_cmp_eq_u32 vcc, -1, v72")
    a("s_nop 4")
    a("s_cbranch_vccz B_SLOADED")
    a("s_sleep 8")
    a("s_branch B_SLOAD")
    a.label("B_SLOADED")
    a("ds_write_b128 v51, v[64:67]"); a(f"ds_write_b128 v51, v[68:71] offset:{8*STL_PITCH}")
    a("s_waitcnt lgkmcnt(0)")
    stamp(a, 11)
    a.label("K2_FINAL")
    a.barrier_hazard()
    a("s_barrier")
    a("v_lshrrev_b32 v2, 3, v1"); a("s_lshl_b32 s28, s36, 3"); a("v_add_u32 v2, s28, v2")
    a("v_and_b32 v3, 7, v1")
    a("v_and_b32 v4, 15, v2"); a("v_lshlrev_b32 v6, 1, v3"); a("v_xor_b32 v4, v4, v6"); a("v_lshlrev_b32 v4, 4, v4"); a("v_lshl_add_u32 v4, v2, 8, v4")
    a("v_xor_b32 v7, 16, v4")
    a("v_add_u32 v12, 65536, v4"); a("v_add_u32 v13, 65536, v7")
    for w in range(4):
        off = 32768 + (w & 1)*16384
        a(f"ds_read_b128 v[{16+8*w}:{19+8*w}], v{4 if w < 2 else 12} offset:{off}")
        a(f"ds_read_b128 v[{20+8*w}:{23+8*w}], v{7 if w < 2 else 13} offset:{off}")
    a(f"v_mul_u32_u24 v6, {8*STL_PITCH}, v3"); a("v_lshl_add_u32 v6, v2, 1, v6"); a(f"v_add_u32 v6, {L_STL}, v6")
    for e in range(8):
        a(f"ds_read_u16 v{48+e}, v6 offset:{e*STL_PITCH}")
    a("s_waitcnt lgkmcnt(0)")
    for e in range(8): a(f"v_add_f32 v{16+e}, v{16+e}, v{24+e}")
    for e in range(8): a(f"v_add_f32 v{32+e}, v{32+e}, v{40+e}")
    for e in range(8): a(f"v_add_f32 v{16+e}, v{16+e}, v{32+e}")
    for d in range(4): a(f"v_cvt_pk_bf16_f32 v{24+d}, v{16+2*d}, v{17+2*d}")
    for d in range(4):
        a(f"v_lshlrev_b32 v{16+2*d}, 16, v{24+d}"); a(f"v_and_b32 v{17+2*d}, 0xffff0000, v{24+d}")
    for e in range(8): a(f"v_mul_f32 v{24+e}, {f2u(-1.4426950408889634):#x}, v{16+e}")
    for e in range(8): a(f"v_exp_f32 v{24+e}, v{24+e}")
    for e in range(8): a(f"v_add_f32 v{24+e}, 1.0, v{24+e}")
    for e in range(8): a(f"v_rcp_f32 v{24+e}, v{24+e}")
    for e in range(8): a(f"v_mul_f32 v{16+e}, v{16+e}, v{24+e}")
    for d in range(4): a(f"v_cvt_pk_bf16_f32 v{24+d}, v{16+2*d}, v{17+2*d}")
    for d in range(4):
        a(f"v_lshlrev_b32 v{16+2*d}, 16, v{24+d}"); a(f"v_and_b32 v{17+2*d}, 0xffff0000, v{24+d}")
        a(f"v_lshlrev_b32 v{32+2*d}, 16, v{48+2*d}"); a(f"v_lshlrev_b32 v{33+2*d}, 16, v{49+2*d}")
    for e in range(8): a(f"v_mul_f32 v{16+e}, v{16+e}, v{32+e}")
    for d in range(4): a(f"v_cvt_pk_bf16_f32 v{24+d}, v{16+2*d}, v{17+2*d}")
    a("s_waitcnt vmcnt(0)")
    for d in range(4):
        a(f"v_lshlrev_b32 v{16+2*d}, 16, v{24+d}"); a(f"v_and_b32 v{17+2*d}, 0xffff0000, v{24+d}")
        a(f"v_lshlrev_b32 v{32+2*d}, 16, v{252+d}"); a(f"v_and_b32 v{33+2*d}, 0xffff0000, v{252+d}")
    for e in range(8): a(f"v_add_f32 v{16+e}, v{16+e}, v{32+e}")
    for d in range(4): a(f"v_cvt_pk_bf16_f32 v{24+d}, v{16+2*d}, v{17+2*d}")
    a("buffer_store_dwordx4 v[24:27], v5, s[12:15], s34 offen")
    stamp(a, 12)
    stamp_store(a, 13, 0)


def gen_mk():
    a = Asm()
    a("s_cmp_ge_u32 s2, 256")
    a("s_cbranch_scc1 MK_END")
    stamp(a, 0)
    a("s_getpc_b64 s[94:95]")
    a.label("MK_PC")
    a("s_load_dwordx2 s[4:5], s[0:1], 0")
    a("s_load_dwordx4 s[28:31], s[0:1], 80")
    a("s_load_dwordx4 s[32:35], s[0:1], 112")
    a("v_lshrrev_b32 v1, 6, v0")
    a("s_and_b32 s37, s2, 7")
    a("v_readfirstlane_b32 s36, v1")
    a("s_lshr_b32 s38, s2, 3")
    a("v_and_b32 v1, 63, v0")
    a("s_lshl_b32 s92, s38, 3"); a("s_add_u32 s92, s92, s36"); a("s_lshl_b32 s92, s92, 10")
    labi = a.newlabel("MK_NI")
    a("s_cmp_ge_u32 s92, MK_CODE_END-MK_PC"); a(f"s_cbranch_scc1 {labi}")
    a.skip_begin()
    a("s_min_u32 s92, s92, MK_CODE_END-MK_PC-1024")
    a("v_lshlrev_b32 v2, 4, v1"); a("v_add_u32 v2, s92, v2")
    a("global_load_dwordx4 v[248:251], v2, s[94:95]")
    a.skip_end()
    a.label(labi)
    a("s_load_dwordx2 s[6:7], s[0:1], 96")
    a("s_load_dwordx16 s[80:95], s[0:1], 0")
    a("s_load_dwordx2 s[56:57], s[0:1], 64")
    a("s_load_dwordx2 s[96:97], s[0:1], 104")
    a(f"v_and_b32 v2, 31, v1"); a("v_lshlrev_b32 v2, 2, v2"); a(f"v_add_u32 v2, {L_CNT}, v2"); a("v_mov_b32 v3, 0"); a("ds_write_b32 v2, v3")
    a("s_lshl_b32 s53, s37, 5"); a("s_add_u32 s53, s53, s38")
    a("s_cmp_ge_u32 s38, 28")
    a("s_cbranch_scc1 MK_AUX")
    phaseA_gemm1(a)
    a.label("MK_AUX")
    a.barrier_hazard()
    a("s_waitcnt lgkmcnt(0)")
    a("s_barrier")
    common_srds(a)
    param_prefetch(a)
    phaseA_aux(a)
    phaseB(a)
    a.label("MK_END")
    a("s_endpgm")
    a.label("MK_CODE_END")
    return a, LDS_TOTAL
```

```python
import sys, os
sys.path.insert(0, os.path.dirname(os.path.abspath(__file__)))
import gen, gen9
out = sys.argv[1] if len(sys.argv) > 1 else "u.s"
for arg in sys.argv[2:]:
    k, v = arg.split("=")
    gen.OPT[k] = int(v)
k, lds = gen9.gen_mk()
gen.build([("recurrent_scan__ssm_conv_s4__swiglu_ffn__prompt_kernel", k, 256, 512, lds)], out)
print("written", out, "nops:", k.total_nops, "lds", lds, "bytes", os.path.getsize(out))
```
